```python
import torch

def _softmax(x, axis=-1):
    return torch.softmax(x, dim=axis)
def _gelu(x):
    return torch.nn.functional.gelu(x, approximate="tanh")
def _silu(x):
    return torch.nn.functional.silu(x)
def _sigmoid(x):
    return torch.sigmoid(x)
def _layernorm(x, axis=-1, eps=1e-5):
    m = x.mean(dim=axis, keepdim=True)
    v = x.var(dim=axis, keepdim=True, unbiased=False)
    return (x - m) / torch.sqrt(v + eps)
def _scatter_add(tgt, idx, src, axis=0):
    return tgt.clone().index_add_(axis, idx, src)
def _segment_sum(src, seg, n):
    out = torch.zeros((n,) + src.shape[1:], dtype=src.dtype)
    return out.index_add_(0, seg, src)
def _pad(x, pw):
    flat = tuple(v for pair in reversed(pw) for v in pair)
    return torch.nn.functional.pad(x, flat)

kernel_name = 'gated_mix__grouped_kv_mqa__ssm_conv_s4d__prompt'

def setup_inputs():

    _w = (lambda a: (lambda t: t.to(torch.bfloat16) if t.is_floating_point() else t)(torch.as_tensor(a)))
    def _A_setup():
        B, S, D, H = 1, 2048, 512, 32
        Dh = D // H
        return {
            "x": _w((lambda *s: torch.randn(*s, dtype=torch.bfloat16) * 0.05)(B, S, D)),
            "wq": _w((lambda *s: torch.randn(*s, dtype=torch.bfloat16) * 0.8)(D, H * Dh)),
            "wk": _w((lambda *s: torch.randn(*s, dtype=torch.bfloat16) * 0.8)(D, Dh)),
            "wv": _w((lambda *s: torch.randn(*s, dtype=torch.bfloat16) * 0.05)(D, Dh)),
            "wo": _w((lambda *s: torch.randn(*s, dtype=torch.bfloat16) * 0.05)(H * Dh, D)),
        }
    _A_in = _A_setup()

    def _B_setup():
        Bsz, L, D, N = 1, 2048, 512, 128
        return {
            "u": _w((lambda *s: torch.randn(*s, dtype=torch.bfloat16) * 0.05)(Bsz, L, D)),
            "log_A_real": _w((lambda *s: torch.randn(*s, dtype=torch.bfloat16) * 6.4)(D, N) * 0.5),
            "A_imag": _w((lambda *s: torch.randn(*s, dtype=torch.bfloat16) * 0.05)(D, N) * 3.14),
            "C_real": _w((lambda *s: torch.randn(*s, dtype=torch.bfloat16) * 0.05)(D, N) / N ** 0.5),
            "C_imag": _w((lambda *s: torch.randn(*s, dtype=torch.bfloat16) * 0.05)(D, N) / N ** 0.5),
            "log_dt": _w((lambda *s: torch.randn(*s, dtype=torch.bfloat16) * 0.05)(D) * 0.5 - 4.0),
            "D_skip": _w((lambda *s: torch.randn(*s, dtype=torch.bfloat16) * 0.05)(D)),
        }
    _B_in = _B_setup()

    return {
        "A_x": _A_in["x"],
        "A_wq": _A_in["wq"],
        "A_wk": _A_in["wk"],
        "A_wv": _A_in["wv"],
        "A_wo": _A_in["wo"],
        "B_u": _B_in["u"],
        "B_log_A_real": _B_in["log_A_real"],
        "B_A_imag": _B_in["A_imag"],
        "B_C_real": _B_in["C_real"],
        "B_C_imag": _B_in["C_imag"],
        "B_log_dt": _B_in["log_dt"],
        "B_D_skip": _B_in["D_skip"],
        "gate_w": _w((lambda *s: torch.randn(*s, dtype=torch.bfloat16) * 0.05)(512) * 16.0),
    }

def reference(A_x, A_wq, A_wk, A_wv, A_wo, B_u, B_log_A_real, B_A_imag, B_C_real, B_C_imag, B_log_dt, B_D_skip, gate_w):
    def _A_ref(x, wq, wk, wv, wo):
        B, S, D = x.shape
        H = 32
        Dh = D // H
        q = (lambda x, *d: x.permute(*d))((x @ wq).reshape(B, S, H, Dh), 0, 2, 1, 3)
        k = x @ wk
        v = x @ wv
        scores = torch.einsum("bhqd,bkd->bhqk", q, k) * (Dh ** -0.5)
        p = _softmax(scores, axis=-1)
        o = torch.einsum("bhqk,bkd->bhqd", p, v)
        return (lambda x, *d: x.permute(*d))(o, 0, 2, 1, 3).reshape(B, S, H * Dh) @ wo

    def _B_ref(u, log_A_real, A_imag, C_real, C_imag, log_dt, D_skip):
        L = u.shape[1]
        dt = torch.exp(log_dt)
        A = -torch.exp(log_A_real) + 1j * A_imag
        C = (C_real + 1j * C_imag) * dt[:, None]
        pos = (lambda x, dt: x.to(dt))(torch.arange(L), log_dt.dtype)
        P = torch.exp((A * dt[:, None])[:, :, None] * pos[None, None, :])
        K = 2.0 * torch.einsum("dn,dnl->dl", C, P).real
        L2 = 2 * L
        u_t = (lambda x, *d: x.permute(*d))(u, 0, 2, 1)
        Kf = (lambda x, *a, **k: torch.fft.rfft(x.float(), *a, **k))(K, L2)
        Uf = (lambda x, *a, **k: torch.fft.rfft(x.float(), *a, **k))(u_t, L2)
        y = (lambda x, *a, **k: torch.fft.irfft(x, *a, **k).to(torch.bfloat16))(Uf * Kf[None, :, :], L2)[:, :, :L]
        y = (lambda x, *d: x.permute(*d))(y, 0, 2, 1)
        return y + u * D_skip[None, None, :]

    x = A_x
    g = _sigmoid((x * gate_w).sum(-1, keepdims=True))
    a = _A_ref(x, A_wq, A_wk, A_wv, A_wo)
    b = _B_ref(x, B_log_A_real, B_A_imag, B_C_real, B_C_imag, B_log_dt, B_D_skip)
    return g * a + (1 - g) * b
```

```python
import re

TRANS = ('v_exp_f32','v_log_f32','v_rcp_f32','v_rsq_f32','v_sqrt_f32','v_sin_f32','v_cos_f32','v_exp_f16','v_rcp_iflag_f32')

def parse_regs(tok):
    tok = tok.strip()
    tok = re.sub(r'^-', '', tok)
    m = re.match(r'^abs\((.*)\)$', tok)
    if m: tok = m.group(1)
    m = re.match(r'^\|(.*)\|$', tok)
    if m: tok = m.group(1)
    m = re.match(r'^([vsa])(\d+)$', tok)
    if m: return {(m.group(1), int(m.group(2)))}
    m = re.match(r'^([vsa])\[(\d+):(\d+)\]$', tok)
    if m: return {(m.group(1), i) for i in range(int(m.group(2)), int(m.group(3))+1)}
    if tok in ('vcc','vcc_lo','vcc_hi'): return {('vcc',0)}
    if tok in ('exec','exec_lo','exec_hi'): return {('exec',0)}
    if tok == 'm0': return {('m0',0)}
    return set()

class Ins:
    def __init__(self, text):
        self.text = text
        t = text.split(';')[0].strip()
        self.is_label = t.endswith(':')
        self.is_dir = t.startswith('.')
        self.op = ''
        self.w = set(); self.r = set()
        self.kind = 'other'
        self.srcA=set(); self.srcB=set(); self.srcC=set()
        if self.is_label or self.is_dir or not t:
            return
        parts = t.split(None, 1)
        op = parts[0]; self.op = op
        rest = parts[1] if len(parts) > 1 else ''
        ops = []; depth = 0; cur = ''
        for ch in rest:
            if ch in '[(': depth += 1
            if ch in '])': depth -= 1
            if ch == ',' and depth == 0:
                ops.append(cur); cur = ''
            else: cur += ch
        ops.append(cur)
        ops = [o.strip() for o in ops]
        mods = ''
        if ops:
            sp = ops[-1].split(None, 1)
            if len(sp) > 1:
                ops[-1] = sp[0]; mods = sp[1]
        self.mods = mods
        R = [parse_regs(o) for o in ops]
        self.ops = ops
        base = re.sub(r'_(e32|e64|dpp|sdwa)$', '', op)
        self.base = base
        self.dpp = op.endswith('_dpp')
        if op.startswith('v_mfma') or op.startswith('v_smfmac'):
            self.kind = 'mfma'
            self.w = R[0]; self.srcA = R[1]; self.srcB = R[2]; self.srcC = R[3]
            self.r = R[1] | R[2] | R[3]
            self.passes = 8 if '32x32' in op else 4
        elif op.startswith('v_cmp'):
            self.kind = 'valu'; self.w = set(R[0]); self.r = set().union(*R[1:])
            if op.startswith('v_cmpx'): self.w |= {('exec',0)}
        elif base in ('v_readfirstlane_b32','v_readlane_b32'):
            self.kind = 'valu'; self.w = R[0]; self.r = set().union(*R[1:])
        elif base in ('v_permlane32_swap_b32','v_permlane16_swap_b32','v_swap_b32'):
            self.kind = 'valu'; self.w = R[0] | R[1]; self.r = R[0] | R[1]
        elif base in ('v_add_co_u32','v_sub_co_u32','v_addc_co_u32','v_subb_co_u32'):
            self.kind = 'valu'; self.w = R[0] | R[1]; self.r = set().union(*R[2:])
        elif op.startswith('v_'):
            self.kind = 'valu'; self.w = R[0]; self.r = set().union(*R[1:]) if len(R) > 1 else set()
            if base in ('v_fmac_f32','v_dot2c_f32_bf16','v_writelane_b32') or 'UNUSED_PRESERVE' in mods or self.dpp:
                self.r |= R[0]
        elif op.startswith('ds_'):
            self.kind = 'ds'
            if op.startswith('ds_read') or op.startswith('ds_bpermute') or op.startswith('ds_swizzle') or '_rtn' in op:
                self.w = R[0]; self.r = set().union(*R[1:])
                if 'd16' in op: self.r |= R[0]
            else:
                self.r = set().union(*R)
        elif op.startswith('buffer_') or op.startswith('global_'):
            self.kind = 'vmem'
            self.lds = bool(re.search(r'\blds\b', mods)) or 'load_lds' in op
            if 'load' in op and not self.lds:
                self.w = R[0]; self.r = set().union(*R[1:])
                if 'd16' in op: self.r |= R[0]
            else:
                self.r = set().union(*R) if R else set()
            if self.lds: self.r |= {('m0',0)}
            self.wide_store = set()
            if 'store' in op and ('x4' in op or 'x3' in op):
                self.wide_store = R[0] if op.startswith('buffer_') else R[1]
        elif op.startswith('s_'):
            self.kind = 'salu'
            if op in ('s_nop','s_waitcnt','s_barrier','s_endpgm','s_sleep','s_setprio') or op.startswith('s_cbranch') or op == 's_branch' or op.startswith('s_cmp'):
                self.r = set().union(*R) if R else set()
            else:
                self.w = R[0]; self.r = set().union(*R[1:]) if len(R) > 1 else set()
                if 'saveexec' in op: self.w = self.w | {('exec',0)}
    def states(self):
        if self.is_label or self.is_dir or not self.op: return 0
        if self.op == 's_nop': return int(self.ops[0], 0) + 1
        return 1

def need(prod, cons):
    n = 0
    isv = lambda s: {x for x in s if x[0] in 'va' and len(x[0]) == 1}
    iss = lambda s: {x for x in s if x[0] in ('s','vcc')}
    if prod.kind == 'valu':
        pw = isv(prod.w)
        if cons.kind == 'mfma' and pw & cons.r: n = max(n, 2)
        if cons.kind == 'valu':
            if prod.base in TRANS and cons.base not in TRANS and pw & (cons.r): n = max(n, 1)
            if cons.base in ('v_readfirstlane_b32','v_readlane_b32') and pw & cons.r: n = max(n, 1)
            if cons.base.startswith('v_permlane') and pw & cons.r: n = max(n, 2)
            if cons.dpp and pw & cons.r: n = max(n, 2)
            if ('sdwa' in prod.op or 'op_sel' in getattr(prod,'mods','')) and not prod.base.startswith('v_pk_') and pw & (cons.r | cons.w): n = max(n, 1)
        if prod.base in TRANS and cons.kind in ('ds','vmem') and pw & cons.r: n = max(n, 1)
        sw = iss(prod.w)
        if sw:
            if cons.kind == 'valu' and sw & cons.r:
                n = max(n, 4 if cons.base in ('v_readlane_b32','v_writelane_b32') else 2)
            if cons.kind == 'valu' and cons.base in ('v_cndmask_b32','v_addc_co_u32') and ('vcc',0) in sw and ('vcc',0) in cons.r: n = max(n, 2)
            if cons.kind == 'vmem' and sw & cons.r: n = max(n, 5)
            if cons.kind == 'salu' and sw & cons.r: n = max(n, 1)
            if cons.op in ('s_cbranch_vccz','s_cbranch_vccnz') and ('vcc',0) in sw: n = max(n, 1)
        if ('exec',0) in prod.w:
            if cons.kind == 'mfma': n = max(n, 4)
            if cons.kind == 'valu' and (cons.dpp): n = max(n, 5)
            if cons.kind == 'valu' and (cons.base.startswith('v_permlane') or cons.base.startswith('v_read')): n = max(n, 4)
    if prod.kind == 'mfma':
        p = prod.passes
        if cons.kind == 'mfma':
            if prod.w & (cons.srcA | cons.srcB): n = max(n, 8 if p == 4 else 12)
            if prod.w & cons.srcC:
                if not (prod.w == cons.srcC and p == cons.passes): n = max(n, 6 if p == 4 else 10)
            elif prod.w & cons.w: n = max(n, 6 if p == 4 else 10)
        elif cons.kind in ('valu','ds','vmem'):
            if prod.w & (cons.r | cons.w): n = max(n, 8 if p == 4 else 12)
            if cons.kind == 'valu' and prod.srcC & cons.w: n = max(n, 3 if p == 4 else 7)
            if cons.kind in ('ds','vmem') and prod.srcC & cons.w: n = max(n, 3 if p == 4 else 7)
    if prod.kind == 'salu':
        if ('m0',0) in prod.w and cons.kind == 'vmem' and getattr(cons,'lds',False): n = max(n, 1)
    if prod.kind == 'vmem' and getattr(prod,'wide_store',None):
        if prod.wide_store & cons.w: n = max(n, 2 if cons.kind in ('valu','mfma') else 1)
    return n

class Asm:
    def __init__(self):
        self.ins = []
    def __call__(self, text):
        for line in text.split('\n'):
            line = line.strip()
            if line: self.ins.append(Ins(line))
    def label(self, name): self(f'{name}:')
    def finalize(self, window=24):
        out = []
        nins = 0
        for I in self.ins:
            if I.op:
                dist = 0; req = 0
                for P in reversed(out[-window*2:]):
                    if P.op:
                        k = need(P, I)
                        if k - dist > req: req = k - dist
                        dist += P.states()
                        if P.op in ('s_branch','s_endpgm','s_setpc_b64'): break
                        if dist > 20: break
                while req > 0:
                    k = min(req, 16)
                    out.append(Ins(f's_nop {k-1}')); req -= k; nins += 1
            out.append(I)
        self.out = out
        return out
    def text(self):
        s = ''
        for I in self.finalize():
            s += (I.text if (I.is_label or I.is_dir) else '    ' + I.text) + '\n'
        return s
```

```python
import sys, struct, math
from asmlib import Asm

NAME = 'gated_mix__grouped_kv_mqa__ssm_conv_s4d__prompt'
def f32(x): return '0x%08x' % struct.unpack('<I', struct.pack('<f', x))[0]
def f32v(x): return struct.unpack('<f', struct.pack('<f', x))[0]

WS_KV = 0x0
WS_G  = 0x20000
WS_O  = 0x100000
WS_B  = 0x400000
WS_SIZE = 0x600000
R_X = 0; R_W = 65536; R_S = 131072
KTAB = R_S + 16384
KREV = R_S; KREV_CH = 8320; KREV_O = 4160
XC = R_S + 16640; XC_CH = 4608
GB = R_W
LDS_BYTES = 163840

P_X=4; P_WQ=6; P_WK=8; P_WV=10; P_WO=12; P_LAR=16; P_AIM=18; P_CR=20; P_CI=22; P_LDT=24; P_DSK=26; P_GATE=28; P_OUT=30; P_DBG=32; P_WS=34
S_X=36; S_WQ=40; S_WKV=44; S_WS=48; S_OUT=52; S_GATE=56; S_DBG=60; S_WO=64
sW=68; sRB=69; sCB=70; sD0=71; sLDT=72; sDSK=73; sT0=74; sT1=75; sT2=76; sT3=77; sRT=78; sCT=79; sKH=80; sCNT=81; sFB=82
sM0=84
sM1=86
sOB=88; sT4=89; sT5=90; sSC=91; sSCI=92

def srd(n): return f's[{n}:{n+3}]'
def sp(n): return f's[{n}:{n+1}]'
def v(n, k=1): return f'v{n}' if k == 1 else f'v[{n}:{n+k-1}]'

LOG2E = 1.4426950408889634
L2E_HI = f32v(LOG2E); L2E_LO = LOG2E - L2E_HI
INV2PI = 1.0/(2*math.pi); I2P_HI = f32v(INV2PI); I2P_LO = INV2PI - I2P_HI

def gen(stop_after=None):
    e = Asm()
    vT=0; vL=1; vL16=2
    vQ=4; vXC=8; vGI=16; vG=26
    e(f'''
    s_cmp_ge_u32 s2, 256
    s_cbranch_scc1 L_end
    s_load_dwordx16 s[4:19], s[0:1], 0
    s_load_dwordx16 s[20:35], s[0:1], 64
    v_and_b32 v{vL}, 63, v0
    v_lshrrev_b32 v3, 6, v0
    v_lshlrev_b32 v{vL16}, 4, v{vL}
    v_readfirstlane_b32 s{sW}, v3
    s_and_b32 s{sT0}, s2, 7
    s_lshr_b32 s{sT1}, s2, 3
    s_lshr_b32 s{sT2}, s{sT1}, 3
    s_lshl_b32 s{sRB}, s{sT0}, 2
    s_add_u32 s{sRB}, s{sRB}, s{sT2}
    s_and_b32 s{sCB}, s{sT1}, 7
    s_lshl_b32 s{sD0}, s{sT0}, 6
    s_lshl_b32 s{sT1}, s{sT1}, 1
    s_add_u32 s{sD0}, s{sD0}, s{sT1}
    s_and_b32 s{sRT}, s{sW}, 1
    s_lshr_b32 s{sCT}, s{sW}, 2
    s_lshr_b32 s{sKH}, s{sW}, 1
    s_and_b32 s{sKH}, s{sKH}, 1
    ''')
    vM15=44; vG4=45; vA=46; vB=47; vC=48
    xf=52; gf=60; vLAR=68; vAIM=69; vCR=70; vCI=71
    e(f'''
    v_and_b32 v{vM15}, 15, v{vL}
    v_lshrrev_b32 v{vG4}, 4, v{vL}
    s_lshl_b32 s{sT0}, s{sRB}, 6
    s_lshr_b32 s{sT1}, s{sCB}, 1
    s_lshl_b32 s{sT1}, s{sT1}, 4
    s_add_u32 s{sT0}, s{sT0}, s{sT1}
    s_lshl_b32 s{sT0}, s{sT0}, 10
    s_lshl_b32 s{sT1}, s{sW}, 7
    s_add_u32 s{sT0}, s{sT0}, s{sT1}          ; row0*1024 + w*128
    v_lshlrev_b32 v{vA}, 10, v{vM15}
    v_lshl_add_u32 v{vA}, v{vG4}, 4, v{vA}    ; (l&15)*1024 + g*16
    v_lshlrev_b32 v{vB}, 4, v{vG4}
    v_add_u32 v{vB}, s{sT1}, v{vB}            ; w*128 + g*16
    v_cmp_eq_u32 vcc, 0, v{vM15}
    v_mov_b32 v{vC}, 0x7ffffff0
    v_cndmask_b32 v{vB}, v{vC}, v{vB}, vcc
    s_waitcnt lgkmcnt(0)
    ''')
    def mk(S, P, nbytes):
        e(f'''
        s_mov_b32 s{S}, s{P}
        s_and_b32 s{S+1}, s{P+1}, 0xffff
        s_mov_b32 s{S+2}, {nbytes}
        s_mov_b32 s{S+3}, 0x00020000
        ''')
    mk(S_X, P_X, 2097152)
    mk(S_GATE, P_GATE, 1024)
    e(f'''
    s_bitcmp1_b32 s{sCB}, 0
    s_cselect_b32 s{S_WKV}, s{P_WV}, s{P_WK}
    s_cselect_b32 s{S_WKV+1}, s{P_WV+1}, s{P_WK+1}
    s_and_b32 s{S_WKV+1}, s{S_WKV+1}, 0xffff
    s_mov_b32 s{S_WKV+2}, 16384
    s_mov_b32 s{S_WKV+3}, 0x00020000
    buffer_load_dwordx4 {v(xf,4)}, v{vA}, {srd(S_X)}, s{sT0} offen
    buffer_load_dwordx4 {v(xf+4,4)}, v{vA}, {srd(S_X)}, s{sT0} offen offset:64
    buffer_load_dwordx4 {v(gf,4)}, v{vB}, {srd(S_GATE)}, 0 offen
    buffer_load_dwordx4 {v(gf+4,4)}, v{vB}, {srd(S_GATE)}, 0 offen offset:64
    s_lshl_b32 s{sT2}, s{sW}, 11
    s_add_u32 s{sT3}, s{sT2}, {R_S}
    s_mov_b32 m0, s{sT3}
    s_lshl_b32 s{sT4}, s{sD0}, 1
    buffer_load_dwordx4 v{vL16}, {srd(S_WKV)}, s{sT2} offen lds
    buffer_load_dwordx4 v{vL16}, {srd(S_WKV)}, s{sT2} offen offset:1024 lds
    s_load_dword s{sLDT}, {sp(P_LDT)}, s{sT4}
    s_load_dword s{sDSK}, {sp(P_DSK)}, s{sT4}
    ''')
    e(f'''
    s_add_u32 s{sT0}, s{sD0}, s{sCT}
    s_lshl_b32 s{sT0}, s{sT0}, 8
    s_and_b32 s{sT1}, s{sW}, 3
    s_lshl_b32 s{sT1}, s{sT1}, 6
    s_add_u32 s{sT0}, s{sT0}, s{sT1}
    v_and_b32 v{vA}, 31, v{vL}
    v_lshlrev_b32 v{vA}, 1, v{vA}
    v_add_u32 v{vA}, s{sT0}, v{vA}
    global_load_ushort v{vLAR}, v{vA}, {sp(P_LAR)}
    global_load_ushort v{vAIM}, v{vA}, {sp(P_AIM)}
    global_load_ushort v{vCR}, v{vA}, {sp(P_CR)}
    global_load_ushort v{vCI}, v{vA}, {sp(P_CI)}
    ''')
    mk(S_WS, P_WS, WS_SIZE)
    vS=72
    e(f'''
    v_mov_b32 v{vS}, -1
    v_mov_b32 v{vS+1}, -1
    v_mov_b32 v{vS+2}, -1
    v_mov_b32 v{vS+3}, -1
    s_lshl_b32 s{sT0}, s{sRB}, 1
    s_add_u32 s{sT0}, s{sT0}, s{sRT}
    s_lshl_b32 s{sT0}, s{sT0}, 5
    s_lshl_b32 s{sT1}, s{sCB}, 2
    s_add_u32 s{sT0}, s{sT0}, s{sT1}
    s_lshr_b32 s{sT1}, s{sW}, 1
    s_add_u32 s{sT0}, s{sT0}, s{sT1}
    s_lshl_b32 s{sT0}, s{sT0}, 10
    s_add_u32 s{sOB}, s{sT0}, {WS_O}
    s_lshl_b32 s{sT0}, s{sD0}, 12
    s_lshl_b32 s{sT1}, s{sW}, 10
    s_add_u32 s{sT0}, s{sT0}, s{sT1}
    s_add_u32 s{sT0}, s{sT0}, {WS_B}
    buffer_store_dwordx4 {v(vS,4)}, v{vL16}, {srd(S_WS)}, s{sOB} offen sc0 sc1
    buffer_store_dwordx4 {v(vS,4)}, v{vL16}, {srd(S_WS)}, s{sT0} offen sc0 sc1
    ''')
    mk(S_WQ, P_WQ, 524288)
    mk(S_WO, P_WO, 524288)
    mk(S_OUT, P_OUT, 2097152)
    mk(S_DBG, P_DBG, 256)
    vWS=50
    e(f'''
    v_lshrrev_b32 v{vA}, 3, v{vL}
    v_lshlrev_b32 v{vA}, 10, v{vA}
    v_and_b32 v{vB}, 7, v{vL}
    v_bfe_u32 v{vC}, v{vL}, 4, 1
    v_lshlrev_b32 v{vC}, 2, v{vC}
    v_xor_b32 v{vB}, v{vB}, v{vC}
    v_lshl_add_u32 v{vA}, v{vB}, 4, v{vA}
    s_lshl_b32 s{sT0}, s{sCB}, 7
    v_add_u32 v{vWS}, s{sT0}, v{vA}
    s_cmp_lt_u32 s{sW}, 4
    s_cbranch_scc1 L_noload
    s_and_b32 s{sT0}, s{sW}, 3
    s_lshl_b32 s{sT1}, s{sT0}, 14
    s_lshl_b32 s{sT2}, s{sRB}, 16
    s_add_u32 s{sT2}, s{sT2}, s{sT1}
    ''')
    for j in range(16):
        e(f'''
        s_mov_b32 m0, s{sT1}
        v_xor_b32 v{vA}, {j*16}, v{vL16}
        buffer_load_dwordx4 v{vA}, {srd(S_X)}, s{sT2} offen lds
        s_add_u32 s{sT1}, s{sT1}, 1024
        s_add_u32 s{sT2}, s{sT2}, 1024
        ''')
    e(f'''
    s_lshl_b32 s{sT1}, s{sT0}, 14
    s_add_u32 s{sT1}, s{sT1}, {R_W}
    s_lshl_b32 s{sT2}, s{sT0}, 17
    ''')
    for j in range(16):
        e(f'''
        s_mov_b32 m0, s{sT1}
        s_add_u32 s{sT1}, s{sT1}, 1024
        buffer_load_dwordx4 v{vWS}, {srd(S_WQ)}, s{sT2} offen lds
        s_add_u32 s{sT2}, s{sT2}, 8192
        ''')
    e('L_noload:')
    t0=76
    e(f'''
    v_and_b32 v{t0}, 255, v0
    v_lshlrev_b32 v{t0}, 3, v{t0}
    v_sub_u32 v{t0}, 2047, v{t0}              ; p for e=0
    s_lshl_b32 s{sT0}, s{sCT}, 14
    s_add_u32 s{sT0}, s{sT0}, {GB}
    v_mov_b32 v{t0+1}, s{sT0}
    ''')
    for k in range(9):
        a=t0+2; b=t0+3; c=t0+4; d=t0+5
        e(f'''
        v_subrev_u32 v{a}, {k}, v{t0}
        v_cvt_f32_i32 v{a}, v{a}
        v_cvt_pk_bf16_f32 v{a}, v{a}, v{a}
        v_lshlrev_b32 v{a}, 16, v{a}
        v_cvt_u32_f32 v{a}, v{a}
        v_lshrrev_b32 v{b}, 9, v{a}
        v_cmp_lt_u32 vcc, 0, v{b}
        v_add_u32 v{b}, 15, v{b}
        v_and_b32 v{c}, 7, v{a}
        v_cndmask_b32 v{b}, 0, v{b}, vcc
        v_bfe_u32 v{d}, v{a}, 8, 1
        v_lshl_add_u32 v{c}, v{d}, 3, v{c}
        v_add_u32 v{b}, v{b}, v{c}
        v_bfe_u32 v{d}, v{a}, 3, 5
        v_lshl_add_u32 v{b}, v{b}, 5, v{d}
        ''')
        if k == 8:
            e(f'''
            v_cmp_gt_u32 vcc, 8, v{t0}
            v_mov_b32 v{c}, 1023
            v_cndmask_b32 v{b}, v{b}, v{c}, vcc
            ''')
        e(f'v_lshl_add_u32 v{vGI+k}, v{b}, 4, v{t0+1}')
    wf=76; dk=84; dg=88; vP=92
    e(f'''
    v_lshlrev_b32 v{vA}, 8, v{vG4}
    v_lshl_add_u32 v{vA}, v{vM15}, 3, v{vA}
    v_add_u32 v{vA}, s{sT3}, v{vA}            ; piece + g*256 + (l&15)*8
    v_add_u32 v{vP}, s{sT3}, v{vL16}
    s_cmp_lt_u32 s{sW}, 4
    s_cbranch_scc1 L_w1a
    s_waitcnt vmcnt(38)
    s_branch L_w1b
    L_w1a:
    s_waitcnt vmcnt(6)
    L_w1b:
    ds_read_b64_tr_b16 {v(wf,2)}, v{vA}
    ds_read_b64_tr_b16 {v(wf+2,2)}, v{vA} offset:128
    ds_read_b64_tr_b16 {v(wf+4,2)}, v{vA} offset:1024
    ds_read_b64_tr_b16 {v(wf+6,2)}, v{vA} offset:1152
    v_mfma_f32_16x16x32_bf16 {v(dg,4)}, {v(gf,4)}, {v(xf,4)}, 0
    v_mfma_f32_16x16x32_bf16 {v(dg,4)}, {v(gf+4,4)}, {v(xf+4,4)}, {v(dg,4)}
    s_waitcnt lgkmcnt(0)
    s_bitcmp1_b32 s{sCB}, 0
    s_cbranch_scc1 L_kv_v
    v_mfma_f32_16x16x32_bf16 {v(dk,4)}, {v(wf,4)}, {v(xf,4)}, 0
    v_mfma_f32_16x16x32_bf16 {v(dk,4)}, {v(wf+4,4)}, {v(xf+4,4)}, {v(dk,4)}
    s_branch L_kv_d
    L_kv_v:
    v_mfma_f32_16x16x32_bf16 {v(dk,4)}, {v(xf,4)}, {v(wf,4)}, 0
    v_mfma_f32_16x16x32_bf16 {v(dk,4)}, {v(xf+4,4)}, {v(wf+4,4)}, {v(dk,4)}
    L_kv_d:
    s_nop 7
    ds_write_b128 v{vP}, {v(dk,4)}
    ds_write_b128 v{vP}, {v(dg,4)} offset:1024
    s_cmp_lt_u32 s{sW}, 4
    s_cbranch_scc1 L_w2a
    s_waitcnt vmcnt(32) lgkmcnt(0)
    s_branch L_w2b
    L_w2a:
    s_waitcnt vmcnt(0) lgkmcnt(0)
    L_w2b:
    s_barrier
    s_cmp_lg_u32 s{sW}, 0
    s_cbranch_scc1 L_kv_done
    ''')
    r0=96
    e(f'v_add_u32 v{vP}, {R_S}, v{vL16}')
    for w in range(8):
        e(f'ds_read_b128 {v(r0+4*w,4)}, v{vP} offset:{w*2048}')
    for w in range(8):
        e(f'ds_read_b32 v{r0+32+w}, v{vP} offset:{w*2048+1024}')
    e(f'''
    s_lshl_b32 s{sT0}, s{sRB}, 2
    s_lshr_b32 s{sT1}, s{sCB}, 1
    s_add_u32 s{sT0}, s{sT0}, s{sT1}          ; kb
    s_lshr_b32 s{sT1}, s{sT0}, 1
    s_lshl_b32 s{sT1}, s{sT1}, 11             ; tile*2048
    s_and_b32 s{sT2}, s{sT0}, 1
    s_lshl_b32 s{sT2}, s{sT2}, 8              ; kk*256
    s_add_u32 s{sT1}, s{sT1}, s{sT2}
    s_and_b32 s{sT2}, s{sCB}, 1
    s_lshl_b32 s{sT2}, s{sT2}, 10             ; +1024 for V
    s_add_u32 s{sT1}, s{sT1}, s{sT2}
    s_lshl_b32 s{sT0}, s{sT0}, 6
    s_add_u32 s{sT0}, s{sT0}, {WS_G}
    v_and_b32 v{vA}, 1, v{vG4}
    v_lshlrev_b32 v{vA}, 9, v{vA}
    v_lshl_add_u32 v{vA}, v{vM15}, 4, v{vA}
    v_lshrrev_b32 v{vB}, 1, v{vG4}
    v_lshl_add_u32 v{vA}, v{vB}, 3, v{vA}     ; (g&1)*512 + (l&15)*16 + (g>>1)*8
    v_lshlrev_b32 v{vB}, 2, v{vL}
    s_waitcnt lgkmcnt(8)
    ''')
    for w in range(1,8):
        for r in range(4):
            e(f'v_add_f32 v{r0+r}, v{r0+r}, v{r0+4*w+r}')
    e(f'''
    v_cvt_pk_bf16_f32 v{r0}, v{r0}, v{r0+1}
    v_cvt_pk_bf16_f32 v{r0+1}, v{r0+2}, v{r0+3}
    buffer_store_dwordx2 {v(r0,2)}, v{vA}, {srd(S_WS)}, s{sT1} offen sc0 sc1
    s_waitcnt lgkmcnt(0)
    ''')
    g0=r0+32
    for w in range(1,8):
        e(f'v_add_f32 v{g0}, v{g0}, v{g0+w}')
    e(f'''
    v_cvt_pk_bf16_f32 v{g0}, v{g0}, v{g0}
    v_lshlrev_b32 v{g0}, 16, v{g0}
    v_mul_f32 v{g0}, {f32(-LOG2E)}, v{g0}
    v_exp_f32 v{g0}, v{g0}
    v_add_f32 v{g0}, 1.0, v{g0}
    v_rcp_f32 v{g0}, v{g0}
    v_cvt_pk_bf16_f32 v{g0}, v{g0}, v{g0}
    v_lshlrev_b32 v{g0}, 16, v{g0}
    s_bitcmp1_b32 s{sCB}, 0
    s_cbranch_scc1 L_nog
    s_mov_b64 exec, 0xffff
    buffer_store_dword v{g0}, v{vB}, {srd(S_WS)}, s{sT0} offen sc0 sc1
    L_nog:
    s_mov_b64 exec, 1
    v_mov_b32 v{vA}, s2
    v_mov_b32 v{vB}, 1
    s_waitcnt vmcnt(0)
    buffer_store_byte v{vB}, v{vA}, {srd(S_DBG)}, 0 offen sc0 sc1
    s_mov_b64 exec, -1
    L_kv_done:
    ''')
    e(f'''
    s_cmp_ge_u32 s{sW}, 4
    s_cbranch_scc1 L_noxc
    v_lshlrev_b32 v{vA}, 13, v0
    s_lshl_b32 s{sT0}, s{sD0}, 1
    s_add_u32 s{sT1}, s{sT0}, 4096
    ''')
    for i in range(8):
        e(f'buffer_load_dword v{vXC+i}, v{vA}, {srd(S_X)}, s{sT0 if i<4 else sT1} offen offset:{(i%4)*1024}')
    e('L_noxc:')
    RA=72; RB=88; s1=104; s2=106; mu=108; pk=110; wa=118; ra=126; FA=132; FB=148
    a=164; b=165; c=166; d=167; al=168; bh=169; bl=170; dt=171; p1=172; p2=173; ee=174
    def exp_acc(dst, x, t, u):
        e(f'''
        v_mul_f32 v{t}, {f32(L2E_HI)}, v{x}
        v_fma_f32 v{u}, v{x}, s{sT4}, -v{t}
        v_fmac_f32 v{u}, {f32(L2E_LO)}, v{x}
        v_exp_f32 v{dst}, v{t}
        v_mul_f32 v{u}, {f32(math.log(2.0))}, v{u}
        v_fma_f32 v{dst}, v{dst}, v{u}, v{dst}
        v_cvt_pk_bf16_f32 v{dst}, v{dst}, v{dst}
        v_lshlrev_b32 v{dst}, 16, v{dst}
        ''')
    def cmul(D, X, Y):
        e(f'''
        v_pk_mul_f32 {v(D,2)}, {v(X,2)}, {v(Y,2)} op_sel:[0,0] op_sel_hi:[0,1]
        v_pk_fma_f32 {v(D,2)}, {v(X,2)}, {v(Y,2)}, {v(D,2)} op_sel:[1,1,0] op_sel_hi:[1,0,1] neg_lo:[1,0,0]
        ''')
    e(f'''
    s_mov_b32 s{sT4}, {f32(L2E_HI)}
    s_mov_b32 s{sT5}, {f32(I2P_HI)}
    s_lshl_b32 s{sT0}, s{sCT}, 4
    s_lshr_b32 s{sT1}, s{sLDT}, s{sT0}
    s_lshl_b32 s{sT1}, s{sT1}, 16
    v_mov_b32 v{a}, s{sT1}
    ''')
    exp_acc(dt, a, b, c)
    e(f'v_lshlrev_b32 v{a}, 16, v{vLAR}')
    exp_acc(al, a, b, c)
    e(f'''
    v_cmp_lt_u32 s[{sM0}:{sM0+1}], 31, v{vL}
    v_mul_f32 v{al}, v{al}, v{dt}
    v_mul_f32 v{al}, {f32(-LOG2E)}, v{al}
    v_lshlrev_b32 v{a}, 16, v{vAIM}
    v_mul_f32 v{a}, v{a}, v{dt}                       ; zi
    v_cndmask_b32 v{a}, v{a}, -v{a}, s[{sM0}:{sM0+1}]
    v_mul_f32 v{bh}, {f32(I2P_HI)}, v{a}
    v_fma_f32 v{bl}, v{a}, s{sT5}, -v{bh}
    v_fmac_f32 v{bl}, {f32(I2P_LO)}, v{a}
    v_mov_b32 v{b}, {f32(8.0)}
    v_cndmask_b32 v{p1}, v{b}, 1.0, s[{sM0}:{sM0+1}]
    v_mov_b32 v{b}, {f32(64.0)}
    v_mov_b32 v{c}, {f32(256.0)}
    v_cndmask_b32 v{p2}, v{b}, v{c}, s[{sM0}:{sM0+1}]
    ''')
    for (S, p) in ((s1,p1),(s2,p2)):
        e(f'''
        v_mul_f32 v{a}, v{al}, v{p}
        v_mul_f32 v{b}, v{bh}, v{p}
        v_exp_f32 v{ee}, v{a}
        v_fract_f32 v{b}, v{b}
        v_fmac_f32 v{b}, v{bl}, v{p}
        v_cos_f32 v{c}, v{b}
        v_sin_f32 v{d}, v{b}
        v_mul_f32 v{S}, v{ee}, v{c}
        v_mul_f32 v{S+1}, v{ee}, v{d}
        ''')
    e(f'''
    v_and_b32 v{a}, 0x7fff, v{vCR}
    v_and_b32 v{b}, 0x7fff, v{vCI}
    v_max_u32 v{a}, v{a}, v{b}
    v_max_u32_dpp v{a}, v{a}, v{a} row_shr:1 row_mask:0xf bank_mask:0xf
    v_max_u32_dpp v{a}, v{a}, v{a} row_shr:2 row_mask:0xf bank_mask:0xf
    v_max_u32_dpp v{a}, v{a}, v{a} row_shr:4 row_mask:0xf bank_mask:0xf
    v_max_u32_dpp v{a}, v{a}, v{a} row_shr:8 row_mask:0xf bank_mask:0xf
    v_readlane_b32 s{sT0}, v{a}, 15
    v_readlane_b32 s{sT1}, v{a}, 31
    s_max_u32 s{sT0}, s{sT0}, s{sT1}
    s_lshr_b32 s{sT0}, s{sT0}, 7
    s_max_u32 s{sT0}, s{sT0}, 1
    s_min_u32 s{sT0}, s{sT0}, 253
    s_lshl_b32 s{sSC}, s{sT0}, 23
    s_sub_u32 s{sT0}, 254, s{sT0}
    s_lshl_b32 s{sSCI}, s{sT0}, 23
    v_lshlrev_b32 v{a}, 16, v{vCR}
    v_lshlrev_b32 v{b}, 16, v{vCI}
    v_mul_f32 v{a}, s{sSCI}, v{a}
    v_mul_f32 v{b}, s{sSCI}, v{b}
    v_cndmask_b32 v{RA}, 1.0, v{a}, s[{sM0}:{sM0+1}]
    v_cndmask_b32 v{RA+1}, 0, -v{b}, s[{sM0}:{sM0+1}]
    ''')
    cmul(mu, s2, s2)
    e(f'''
    v_cndmask_b32 v{mu}, v{s1}, v{mu}, s[{sM0}:{sM0+1}]
    v_cndmask_b32 v{mu+1}, v{s1+1}, v{mu+1}, s[{sM0}:{sM0+1}]
    v_add_f32 v{dt}, v{dt}, v{dt}
    v_mul_f32 v{dt}, s{sSC}, v{dt}                    ; 2*dt*2^e
    s_lshl_b32 s{sT0}, s{sW}, 11
    s_add_u32 s{sT0}, s{sT0}, {KTAB}
    v_lshrrev_b32 v{a}, 5, v{vL}
    v_lshlrev_b32 v{a}, 10, v{a}                      ; part*1024
    v_and_b32 v{b}, 31, v{vL}
    v_lshl_add_u32 v{a}, v{b}, 2, v{a}                ; + n*4
    v_add_u32 v{wa}, s{sT0}, v{a}
    ''')
    for i in range(1,8):
        e(f'v_xor_b32 v{wa+i}, {16*i}, v{wa}')
    e(f'''
    v_and_b32 v{a}, 7, v{vL}
    v_lshrrev_b32 v{b}, 5, v{vL}
    v_xor_b32 v{b}, v{b}, v{a}
    v_lshlrev_b32 v{b}, 4, v{b}
    v_lshl_add_u32 v{a}, v{a}, 7, v{b}
    v_add_u32 v{ra}, s{sT0}, v{a}
    ''')
    for s in range(1,4):
        e(f'v_xor_b32 v{ra+s}, {32*s}, v{ra}')
    def flush(R, rnd):
        for i in range(8):
            e(f'v_cvt_pk_f16_f32 v{pk+i}, v{R+2*i}, v{R+2*i+1}')
        for i in range(8):
            e(f'ds_write_b32 v{wa+i}, v{pk+i} offset:{128*i}')
        m = 0xff << (8*rnd)
        e(f's_mov_b32 exec_lo, {hex(m)}\ns_mov_b32 exec_hi, {hex(m)}')
        for s in range(4):
            e(f'ds_read_b128 {v(FB+4*s,4)}, v{ra+s}')
            e(f'ds_read_b128 {v(FA+4*s,4)}, v{ra+s} offset:1024')
        e('s_mov_b64 exec, -1')
    for i in range(1,8): cmul(RA+2*i, RA+2*(i-1), s1)
    flush(RA, 0)
    for i in range(8): cmul(RB+2*i, RA+2*i, s2)
    flush(RB, 1)
    for (dst, src, rnd) in ((RA, RB, 2), (RB, RA, 3)):
        cmul(dst, src, s2)
        for i in (4,5,6,7): cmul(dst+2*i, src+2*i, s2)
        for i in (1,2,3): cmul(dst+2*i, dst+2*(i-1), mu)
        flush(dst, rnd)
    e('s_waitcnt lgkmcnt(0)')
    for s in range(4):
        e(f'v_mfma_f32_32x32x16_f16 {v(vG,16)}, {v(FA+4*s,4)}, {v(FB+4*s,4)}, {"0" if s==0 else v(vG,16)}')
    xa=72; wadr=80; acc=84; XF=100; WF=132
    e(f'''
    v_and_b32 v{a}, 31, v{vL}
    s_lshl_b32 s{sT0}, s{sRT}, 15
    s_lshl_b32 s{sT1}, s{sKH}, 9
    s_add_u32 s{sT0}, s{sT0}, s{sT1}
    v_lshlrev_b32 v{a}, 10, v{a}
    v_lshrrev_b32 v{b}, 5, v{vL}
    v_xor_b32 v{b}, v{b}, v{vM15}
    v_lshl_add_u32 v{a}, v{b}, 4, v{a}
    v_add_u32 v{xa}, s{sT0}, v{a}
    ''')
    for j in range(1,8):
        e(f'v_xor_b32 v{xa+j}, {32*j}, v{xa}')
    vTR=51
    e(f'''
    v_bfe_u32 v{a}, v{vL}, 2, 2                ; r
    v_lshrrev_b32 v{b}, 1, v{a}
    v_xor_b32 v{b}, s{sCT}, v{b}
    v_lshlrev_b32 v{b}, 6, v{b}
    v_lshl_add_u32 v{a}, v{a}, 7, v{b}
    v_bfe_u32 v{b}, v{vL}, 4, 1
    v_xor_b32 v{b}, s{sKH}, v{b}
    v_lshl_add_u32 v{a}, v{b}, 5, v{a}
    v_and_b32 v{b}, 3, v{vL}
    v_lshl_add_u32 v{vTR}, v{b}, 3, v{a}
    s_lshl_b32 s{sT0}, s{sKH}, 15
    s_add_u32 s{sT0}, s{sT0}, {R_W}
    v_lshrrev_b32 v{b}, 5, v{vL}
    v_lshl_add_u32 v{wadr}, v{b}, 10, v{vTR}
    v_add_u32 v{wadr}, s{sT0}, v{wadr}
    ''')
    for r in range(16):
        e(f'v_mul_f32 v{vG+r}, v{vG+r}, v{dt}')
    e(f'''
    s_cmp_lt_u32 s{sW}, 4
    s_cbranch_scc1 L_w3
    s_waitcnt vmcnt(0)
    L_w3:
    s_barrier
    ''')
    def qreads(ks):
        bi = ks % 8
        e(f'ds_read_b128 {v(XF+4*bi,4)}, v{xa+(ks&7)} offset:{(ks>>3)*256}')
        e(f'ds_read_b64_tr_b16 {v(WF+4*bi,2)}, v{wadr} offset:{ks*2048}')
        e(f'ds_read_b64_tr_b16 {v(WF+4*bi+2,2)}, v{wadr} offset:{ks*2048+512}')
    for ks in range(4): qreads(ks)
    for ks in range(16):
        if ks+4 < 16:
            qreads(ks+4)
            e('s_waitcnt lgkmcnt(12)')
        else:
            e(f's_waitcnt lgkmcnt({3*(15-ks)})')
        bi = ks % 8
        e(f'v_mfma_f32_32x32x16_bf16 {v(acc,16)}, {v(WF+4*bi,4)}, {v(XF+4*bi,4)}, {"0" if ks==0 else v(acc,16)}')
    e('s_barrier')
    e(f'''
    s_lshl_b32 s{sT0}, s{sW}, 11
    v_add_u32 v{a}, s{sT0}, v{vL16}
    s_xor_b32 s{sT0}, s{sT0}, 4096
    v_add_u32 v{b}, s{sT0}, v{vL16}
    s_lshl_b32 s{sT0}, s{sCT}, 14
    s_and_b32 s{sT1}, s{sW}, 3
    s_lshl_b32 s{sT1}, s{sT1}, 2
    s_add_u32 s{sT0}, s{sT0}, s{sT1}
    s_add_u32 s{sT0}, s{sT0}, {GB}
    v_and_b32 v{c}, 31, v{vL}
    v_lshlrev_b32 v{c}, 4, v{c}
    v_lshrrev_b32 v{d}, 5, v{vL}
    v_lshl_add_u32 v{c}, v{d}, 11, v{c}        ; h*4*32*16 + j*16
    v_add_u32 v{c}, s{sT0}, v{c}
    v_mov_b32 v{vG+15}, 0
    ''')
    for r in (0,1,2,3,4,6,8,9,10,11,12,13,14,15):
        t = (r>>2)*8 + (r&3)
        e(f'ds_write_b32 v{c}, v{vG+r} offset:{t*512}')
    e(f'''
    ds_write_b128 v{a}, {v(acc+8,4)}
    ds_write_b128 v{a}, {v(acc+12,4)} offset:1024
    s_cmp_ge_u32 s{sW}, 4
    s_cbranch_scc1 L_pads
    s_waitcnt vmcnt(0)
    s_mov_b32 s{sT0}, 0x05040100
    s_mov_b32 s{sT1}, 0x07060302
    ''')
    for i in range(4):
        e(f'v_perm_b32 v{XF+i}, v{vXC+2*i+1}, v{vXC+2*i}, s{sT0}')
        e(f'v_perm_b32 v{XF+4+i}, v{vXC+2*i+1}, v{vXC+2*i}, s{sT1}')
    e(f'''
    v_lshlrev_b32 v{c}, 4, v0
    v_add_u32 v{c}, {XC+512}, v{c}
    ds_write_b128 v{c}, {v(XF,4)}
    ds_write_b128 v{c}, {v(XF+4,4)} offset:{XC_CH}
    s_branch L_pads_done
    L_pads:
    v_mov_b32 v{XF}, 0
    v_mov_b32 v{XF+1}, 0
    v_lshlrev_b32 v{c}, 3, v{vL}
    v_add_u32 v{d}, {XC}, v{c}
    ds_write_b64 v{d}, {v(XF,2)}
    ds_write_b64 v{d}, {v(XF,2)} offset:{XC_CH}
    s_mov_b64 exec, 0xff
    v_add_u32 v{d}, {KREV+4096}, v{c}
    ds_write_b64 v{d}, {v(XF,2)}
    ds_write_b64 v{d}, {v(XF,2)} offset:{KREV_O}
    ds_write_b64 v{d}, {v(XF,2)} offset:{KREV_CH}
    ds_write_b64 v{d}, {v(XF,2)} offset:{KREV_CH+KREV_O}
    s_mov_b64 exec, -1
    L_pads_done:
    s_waitcnt lgkmcnt(0)
    s_barrier
    ''')
    GA=100
    e(f'''
    ds_read_b128 {v(acc+8,4)}, v{b}
    ds_read_b128 {v(acc+12,4)}, v{b} offset:1024
    ''')
    for k in range(9):
        e(f'ds_read_b128 {v(GA+4*k,4)}, v{vGI+k}')
    e(f'''
    s_mov_b32 s{sT0}, {f32(0.25*LOG2E)}
    v_and_b32 v{c}, 255, v0
    v_lshlrev_b32 v{c}, 4, v{c}
    s_mul_i32 s{sT1}, s{sCT}, {KREV_CH}
    s_add_u32 s{sT1}, s{sT1}, {KREV}
    v_add_u32 v{c}, s{sT1}, v{c}
    s_waitcnt lgkmcnt(9)
    ''')
    for r in range(8):
        e(f'v_add_f32 v{acc+r}, v{acc+r}, v{acc+8+r}')
        e(f'v_mul_f32 v{acc+r}, s{sT0}, v{acc+r}')
    for r in range(4):
        e(f'v_cvt_pk_bf16_f32 v{vQ+r}, v{acc+2*r}, v{acc+2*r+1}')
    for k in range(9):
        e(f's_waitcnt lgkmcnt({8-k})')
        g=GA+4*k
        e(f'v_add_f32 v{g}, v{g}, v{g+1}\nv_add_f32 v{g+2}, v{g+2}, v{g+3}\nv_add_f32 v{g}, v{g}, v{g+2}')
    for i in range(4):
        e(f'v_cvt_pk_bf16_f32 v{acc+i}, v{GA+8*i}, v{GA+8*i+4}')
        e(f'v_cvt_pk_bf16_f32 v{acc+4+i}, v{GA+8*i+4}, v{GA+8*i+8}')
    e(f'''
    ds_write_b128 v{c}, {v(acc,4)}
    ds_write_b128 v{c}, {v(acc+4,4)} offset:{KREV_O}
    s_waitcnt lgkmcnt(0)
    s_barrier
    s_cmp_lt_u32 s{sW}, 4
    s_cbranch_scc1 L_conv
    ''')
    e(f'''
    v_lshlrev_b32 v{a}, 2, v{vL}
    s_mov_b32 s{sCNT}, 0
    s_mov_b32 s{sT0}, 0x01010101
    L_poll:
    buffer_load_dword v{b}, v{a}, {srd(S_DBG)}, 0 offen sc0 sc1
    s_waitcnt vmcnt(0)
    v_cmp_ne_u32 vcc, s{sT0}, v{b}
    s_cbranch_vccz L_polled
    s_sleep 2
    s_add_u32 s{sCNT}, s{sCNT}, 1
    s_cmp_lt_u32 s{sCNT}, 100000
    s_cbranch_scc1 L_poll
    L_polled:
    s_and_b32 s{sT0}, s{sW}, 3
    s_lshl_b32 s{sT0}, s{sT0}, 10
    s_mov_b32 s{sCNT}, 0
    L_kvdma:
    s_mov_b32 m0, s{sT0}
    s_add_u32 s{sCNT}, s{sCNT}, 1
    buffer_load_dwordx4 v{vL16}, {srd(S_WS)}, s{sT0} offen sc0 sc1 lds
    s_add_u32 s{sT0}, s{sT0}, 4096
    s_cmp_lt_u32 s{sCNT}, 32
    s_cbranch_scc1 L_kvdma
    s_barrier
    s_barrier
    s_waitcnt vmcnt(0)
    s_branch L_att
    ''')
    aA=52; aB=60; CA=64; CB=96; CACC=192
    e(f'''
    L_conv:
    s_lshr_b32 s{sT4}, s{sW}, 1                ; ch
    s_and_b32 s{sT5}, s{sW}, 1                 ; half
    v_lshrrev_b32 v{a}, 1, v{vG4}
    v_lshlrev_b32 v{a}, 4, v{a}
    v_add_u32 v{a}, v{a}, v{vM15}
    v_and_b32 v{b}, 1, v{vG4}
    v_lshlrev_b32 v{c}, 3, v{b}
    v_sub_u32 v{a}, v{a}, v{c}                 ; 16*(g>>1) - 8*(g&1) + j
    v_sub_u32 v{a}, 2047, v{a}                 ; r00
    v_and_b32 v{c}, 1, v{a}
    v_sub_u32 v{a}, v{a}, v{c}
    v_lshlrev_b32 v{a}, 1, v{a}
    v_mul_u32_u24 v{c}, {KREV_O}, v{c}
    v_add_u32 v{a}, v{a}, v{c}
    s_mul_i32 s{sT0}, s{sT4}, {KREV_CH}
    s_add_u32 s{sT0}, s{sT0}, {KREV - 192}
    s_lshl_b32 s{sT1}, s{sT5}, 8               ; 4*half*64
    s_sub_u32 s{sT0}, s{sT0}, s{sT1}
    v_add_u32 v{aA}, s{sT0}, v{a}
    ''')
    for u in range(1,8):
        e(f'v_subrev_u32 v{aA+u}, {512*u}, v{aA}')
    e(f'''
    v_lshrrev_b32 v{a}, 1, v{vG4}
    v_sub_u32 v{a}, v{vM15}, v{a}
    v_lshlrev_b32 v{a}, 5, v{a}
    v_lshl_add_u32 v{a}, v{b}, 4, v{a}         ; (n-(g>>1))*32 + (g&1)*16
    s_mul_i32 s{sT0}, s{sT4}, {XC_CH}
    s_add_u32 s{sT0}, s{sT0}, {XC + 512 - 192}
    s_sub_u32 s{sT0}, s{sT0}, s{sT1}
    v_add_u32 v{aB}, s{sT0}, v{a}
    ''')
    def creads(wq, part):
        st = (wq & 1) * 64
        o = 16*(3-wq)
        for u in part:
            e(f'ds_read2_b32 {v(CA+st+4*u,2)}, v{aA+u} offset0:{o} offset1:{o+1}')
            e(f'ds_read2_b32 {v(CA+st+4*u+2,2)}, v{aA+u} offset0:{o+2} offset1:{o+3}')
            e(f'ds_read_b128 {v(CB+st+4*u,4)}, v{aB} offset:{u*512+(3-wq)*64}')
    creads(0, range(8))
    for wq in range(4):
        st = (wq & 1) * 64
        e('s_waitcnt lgkmcnt(0)')
        lst = [(u, nt) for dd in range(8) for u in range(8) for nt in range(8) if nt - u == dd]
        for idx, (u, nt) in enumerate(lst):
            first = (wq == 0 and u == nt)
            e(f'v_mfma_f32_16x16x32_bf16 {v(CACC+4*nt,4)}, {v(CA+st+4*u,4)}, {v(CB+st+4*(nt-u),4)}, {"0" if first else v(CACC+4*nt,4)}')
            if wq < 3 and idx in (1, 5, 9, 13, 17, 21, 25, 29):
                creads(wq+1, [(idx-1)//4])
    e(f'''
    s_barrier
    s_cmp_eq_u32 s{sT5}, 0
    s_cbranch_scc1 L_noswap
    s_nop 7
    ''')
    for i in range(16): e(f'v_swap_b32 v{CACC+i}, v{CACC+16+i}')
    e(f'''
    L_noswap:
    s_mul_i32 s{sT0}, s{sT4}, {KREV_CH}
    s_add_u32 s{sT0}, s{sT0}, {KREV}
    s_lshl_b32 s{sT1}, s{sT5}, 12
    s_add_u32 s{sT2}, s{sT0}, s{sT1}
    s_xor_b32 s{sT1}, s{sT1}, 4096
    s_add_u32 s{sT0}, s{sT0}, s{sT1}
    v_add_u32 v{a}, s{sT2}, v{vL16}
    v_add_u32 v{b}, s{sT0}, v{vL16}
    ''')
    for q in range(4):
        e(f'ds_write_b128 v{a}, {v(CACC+16+4*q,4)} offset:{q*1024}')
    e(f'''
    v_lshlrev_b32 v{c}, 5, v{vM15}
    v_lshl_add_u32 v{c}, v{vG4}, 3, v{c}       ; (16n+4g)*2
    s_lshl_b32 s{sT1}, s{sT5}, 11              ; half*4*512
    v_add_u32 v{c}, s{sT1}, v{c}
    s_mul_i32 s{sT0}, s{sT4}, {XC_CH}
    s_add_u32 s{sT0}, s{sT0}, {XC+512}
    v_add_u32 v{d}, s{sT0}, v{c}
    s_add_u32 s{sT0}, s{sD0}, s{sT4}
    s_lshl_b32 s{sT0}, s{sT0}, 12
    s_add_u32 s{sT0}, s{sT0}, {WS_B}
    s_lshl_b32 s{sT1}, s{sT4}, 4
    s_lshr_b32 s{sT1}, s{sDSK}, s{sT1}
    s_lshl_b32 s{sT1}, s{sT1}, 16
    s_mov_b32 s{sT2}, 0xfffefffe
    s_waitcnt lgkmcnt(0)
    s_barrier
    ''')
    XV=64; T=80
    for q in range(4):
        e(f'ds_read_b128 {v(CACC+16+4*q,4)}, v{b} offset:{q*1024}')
        e(f'ds_read_b64 {v(XV+2*q,2)}, v{d} offset:{q*512}')
    for q in range(4):
        y=CACC+4*q
        e(f's_waitcnt lgkmcnt({6-2*q})')
        for r in range(4): e(f'v_add_f32 v{y+r}, v{y+r}, v{y+16+r}')
        for hh in range(2):
            x=XV+2*q+hh
            e(f'''
            v_cvt_pk_bf16_f32 v{T}, v{y+2*hh}, v{y+2*hh+1}
            v_lshlrev_b32 v{T+1}, 16, v{x}
            v_and_b32 v{T+2}, 0xffff0000, v{x}
            v_mul_f32 v{T+1}, s{sT1}, v{T+1}
            v_mul_f32 v{T+2}, s{sT1}, v{T+2}
            v_cvt_pk_bf16_f32 v{T+1}, v{T+1}, v{T+2}
            v_lshlrev_b32 v{T+2}, 16, v{T}
            v_and_b32 v{T}, 0xffff0000, v{T}
            v_lshlrev_b32 v{T+3}, 16, v{T+1}
            v_and_b32 v{T+1}, 0xffff0000, v{T+1}
            v_add_f32 v{T+2}, v{T+2}, v{T+3}
            v_add_f32 v{T}, v{T}, v{T+1}
            v_cvt_pk_bf16_f32 v{x}, v{T+2}, v{T}
            v_pk_min_u16 v{x}, v{x}, s{sT2}
            ''')
        e(f'buffer_store_dwordx2 {v(XV+2*q,2)}, v{c}, {srd(S_WS)}, s{sT0} offen offset:{q*512} sc0 sc1')
    NM=8; S0=24; S1=52; P=68; O=76; KF=92; VF=100; ad=42; WOR=128; BV=160; GV=168; mx=43
    e(f'''
    L_att:
    s_barrier
    s_mov_b32 s{sFB}, 0
    s_mov_b32 s{sM0}, 0xffff
    s_mov_b32 s{sM0+1}, 0xffff
    ds_read_b128 {v(KF,4)}, v{vL16}
    v_and_b32 v{S1}, 27, v{vL}
    v_cmp_eq_u32 vcc, 16, v{S1}
    v_mov_b32 v{S1+1}, 0x3f803f80
    v_cndmask_b32 v{VF}, 0, v{S1+1}, vcc
    ''')
    for i in range(1,16): e(f'v_mov_b32 v{VF+i}, v{VF}')
    e(f'''
    s_waitcnt lgkmcnt(0)
    v_mfma_f32_32x32x16_bf16 {v(S0,16)}, {v(KF,4)}, {v(vQ,4)}, 0
    v_max3_f32 v{mx}, v{S0}, v{S0+1}, v{S0+2}
    ''')
    for i in range(3,15,2): e(f'v_max3_f32 v{mx}, v{mx}, v{S0+i}, v{S0+i+1}')
    e(f'''
    v_max_f32 v{mx}, v{mx}, v{S0+15}
    L_setm:
    v_mov_b32 v{S1}, v{mx}
    v_permlane32_swap_b32 v{S1}, v{mx}
    v_max_f32 v{mx}, v{mx}, v{S1}
    ''')
    for i in range(16): e(f'v_sub_f32 v{NM+i}, 0, v{mx}')
    for i in range(16): e(f'v_mov_b32 v{O+i}, 0')
    for i in range(4): e(f'v_mov_b32 v{P+4+i}, 0')
    e(f'''
    v_mov_b32 v{ad}, v{vL16}
    ds_read_b128 {v(KF,4)}, v{ad}
    ds_read_b128 {v(KF+4,4)}, v{ad} offset:2048
    s_mov_b64 exec, s[{sM0}:{sM0+1}]
    ds_read_b128 {v(VF,4)}, v{ad} offset:1024
    ds_read_b128 {v(VF+4,4)}, v{ad} offset:1280
    ds_read_b128 {v(VF+12,4)}, v{ad} offset:1280
    s_mov_b64 exec, -1
    s_mov_b32 s{sCNT}, 0
    s_waitcnt lgkmcnt(4)
    v_mfma_f32_32x32x16_bf16 {v(S0,16)}, {v(KF,4)}, {v(vQ,4)}, {v(NM,16)}
    s_waitcnt lgkmcnt(0)
    s_nop 7
    .p2align 6
    L_loop:
    ''')
    def step(tt):
        par = tt & 1
        Sc = S0 if par == 0 else S1
        Sn = S1 if par == 0 else S0
        Vc = VF + 8*par; Vn = VF + 8*(1-par)
        ex = lambda i: e(f'v_exp_f32 v{Sc+i}, v{Sc+i}')
        cv = lambda i: e(f'v_cvt_pk_bf16_f32 v{P+i}, v{Sc+2*i}, v{Sc+2*i+1}')
        e(f's_waitcnt lgkmcnt(2)')
        e(f'v_mfma_f32_32x32x16_bf16 {v(Sn,16)}, {v(KF+4*(1-par),4)}, {v(vQ,4)}, {v(NM,16)}')
        e(f'ds_read_b128 {v(KF+4*par,4)}, v{ad} offset:{(tt+2)*2048}')
        ex(0); ex(1); ex(2); ex(3)
        e(f'v_mfma_f32_32x32x16_bf16 {v(O,16)}, {v(Vn+4,4)}, {v(P+4,4)}, {v(O,16)}')
        e(f's_mov_b64 exec, s[{sM0}:{sM0+1}]')
        e(f'ds_read_b128 {v(Vn,4)}, v{ad} offset:{(tt+1)*2048+1024}')
        e(f'ds_read_b128 {v(Vn+4,4)}, v{ad} offset:{(tt+1)*2048+1280}')
        e(f's_mov_b64 exec, -1')
        cv(0); ex(4); ex(5); cv(1); ex(6); ex(7); cv(2); ex(8); cv(3); ex(9); ex(10)
        e(f's_waitcnt lgkmcnt(3)')
        e(f'v_mfma_f32_32x32x16_bf16 {v(O,16)}, {v(Vc,4)}, {v(P,4)}, {v(O,16)}')
        ex(11); cv(4); ex(12); ex(13); cv(5); ex(14); ex(15); cv(6)
        if tt == 3:
            e(f'v_add_u32 v{ad}, 8192, v{ad}')
            e(f's_add_u32 s{sCNT}, s{sCNT}, 1')
        else:
            e('s_nop 0')
        cv(7)
    for tt in range(4): step(tt)
    e(f'''
    s_cmp_eq_u32 s{sCNT}, 8
    s_cbranch_scc1 L_mid
    L_mid_ret:
    s_cmp_lt_u32 s{sCNT}, 16
    s_cbranch_scc1 L_loop
    v_mfma_f32_32x32x16_bf16 {v(O,16)}, {v(VF+12,4)}, {v(P+4,4)}, {v(O,16)}
    s_mov_b32 s{sT0}, {f32(2.0**40)}
    s_waitcnt lgkmcnt(0)
    s_nop 9
    v_rcp_f32 v{S0}, v{O+8}
    v_cmp_nlt_f32 vcc, v{O+8}, s{sT0}
    ''')
    for i in range(8): e(f'v_mul_f32 v{O+i}, v{O+i}, v{S0}')
    e(f'''
    v_max3_f32 v{S0+1}, |v{O}|, |v{O+1}|, |v{O+2}|
    v_add_f32 v{S0+2}, v{O+3}, v{O+4}
    v_add_f32 v{S0+3}, v{O+5}, v{O+6}
    v_add_f32 v{S0+2}, v{S0+2}, v{O+7}
    v_add_f32 v{S0+3}, v{S0+3}, v{O}
    v_add_f32 v{S0+2}, v{S0+2}, v{O+1}
    v_add_f32 v{S0+3}, v{S0+3}, v{O+2}
    v_add_f32 v{S0+2}, v{S0+2}, v{S0+3}
    v_mov_b32 v{S0+4}, 0x207
    v_cmp_class_f32 s[{sM1}:{sM1+1}], v{S0+2}, v{S0+4}
    s_or_b64 vcc, vcc, s[{sM1}:{sM1+1}]
    s_cbranch_vccz L_att_ok
    s_cmp_lg_u32 s{sFB}, 0
    s_cbranch_scc1 L_att_ok
    s_mov_b32 s{sFB}, 1
    v_mov_b32 v{ad}, v{vL16}
    v_mov_b32 v{mx}, 0xff7fffff
    s_mov_b32 s{sCNT}, 0
    L_maxloop:
    ds_read_b128 {v(KF,4)}, v{ad}
    v_add_u32 v{ad}, 2048, v{ad}
    s_waitcnt lgkmcnt(0)
    v_mfma_f32_32x32x16_bf16 {v(S0,16)}, {v(KF,4)}, {v(vQ,4)}, 0
    ''')
    for i in range(0,16,2): e(f'v_max3_f32 v{mx}, v{mx}, v{S0+i}, v{S0+i+1}')
    e(f'''
    s_add_u32 s{sCNT}, s{sCNT}, 1
    s_cmp_lt_u32 s{sCNT}, 64
    s_cbranch_scc1 L_maxloop
    s_branch L_setm
    ''')
    bA=44; gA=45
    e(f'''
    L_mid:
    s_cmp_lg_u32 s{sFB}, 0
    s_cbranch_scc1 L_mid_ret
    s_lshl_b32 s{sT0}, s{sW}, 16
    ''')
    for j in range(8):
        e(f'buffer_load_dwordx4 {v(WOR+4*j,4)}, v{vWS}, {srd(S_WO)}, s{sT0} offen')
        if j < 7: e(f's_add_u32 s{sT0}, s{sT0}, 8192')
    e(f'''
    s_lshl_b32 s{sT0}, s{sRB}, 6
    s_lshl_b32 s{sT1}, s{sRT}, 5
    s_add_u32 s{sT0}, s{sT0}, s{sT1}
    v_and_b32 v{gA}, 31, v{vL}
    v_add_u32 v{gA}, s{sT0}, v{gA}             ; row
    s_lshl_b32 s{sT0}, s{sCB}, 6
    s_lshl_b32 s{sT1}, s{sCT}, 5
    s_add_u32 s{sT0}, s{sT0}, s{sT1}
    s_lshl_b32 s{sT1}, s{sKH}, 4
    s_add_u32 s{sT0}, s{sT0}, s{sT1}
    v_lshrrev_b32 v{bA}, 5, v{vL}
    v_lshlrev_b32 v{bA}, 2, v{bA}
    v_add_u32 v{bA}, s{sT0}, v{bA}
    v_lshlrev_b32 v{GV+1}, 10, v{gA}
    v_lshl_add_u32 v{GV+1}, v{bA}, 1, v{GV+1}
    v_lshlrev_b32 v{bA}, 12, v{bA}
    v_lshl_add_u32 v{bA}, v{gA}, 1, v{bA}
    v_add_u32 v{bA}, {WS_B}, v{bA}
    v_lshlrev_b32 v{gA}, 2, v{gA}
    s_mov_b32 s{sT0}, {WS_G}
    buffer_load_dword v{GV}, v{gA}, {srd(S_WS)}, s{sT0} offen sc0 sc1
    s_branch L_mid_ret
    ''')
    e(f'''
    L_att_ok:
    s_mov_b32 s{sT0}, 0xfffffffe
    ''')
    for i in range(4):
        e(f'v_cvt_pk_bf16_f32 v{P+i}, v{O+2*i}, v{O+2*i+1}')
        e(f'v_min_u32 v{P+i}, s{sT0}, v{P+i}')
    e(f'''
    buffer_store_dwordx4 {v(P,4)}, v{vL16}, {srd(S_WS)}, s{sOB} offen sc0 sc1
    s_mov_b32 s{sCNT}, 0
    L_bpoll:
    ''')
    for i in range(8):
        col = (i>>2)*8 + (i&3)
        e(f's_mov_b32 s{sT0}, {col*4096}')
        e(f'buffer_load_ushort v{BV+i}, v{bA}, {srd(S_WS)}, s{sT0} offen sc0 sc1')
    e(f'''
    s_waitcnt vmcnt(0)
    v_max3_u32 v{S0}, v{BV}, v{BV+1}, v{BV+2}
    v_max3_u32 v{S0}, v{S0}, v{BV+3}, v{BV+4}
    v_max3_u32 v{S0}, v{S0}, v{BV+5}, v{BV+6}
    v_max_u32 v{S0}, v{S0}, v{BV+7}
    v_cmp_eq_u32 vcc, 0xffff, v{S0}
    s_cbranch_vccz L_bok
    s_sleep 2
    s_add_u32 s{sCNT}, s{sCNT}, 1
    s_cmp_lt_u32 s{sCNT}, 100000
    s_cbranch_scc1 L_bpoll
    L_bok:
    s_barrier
    s_lshl_b32 s{sT0}, s{sW}, 13
    v_add_u32 v{S0}, s{sT0}, v{vL16}
    ''')
    for j in range(8):
        e(f'ds_write_b128 v{S0}, {v(WOR+4*j,4)} offset:{j*1024}')
    e(f'''
    v_sub_f32 v{S0+1}, 1.0, v{GV}
    v_cvt_pk_bf16_f32 v{S0+1}, v{S0+1}, v{S0+1}
    v_lshlrev_b32 v{S0+1}, 16, v{S0+1}
    ''')
    for i in range(8):
        e(f'v_lshlrev_b32 v{BV+i}, 16, v{BV+i}')
        e(f'v_mul_f32 v{BV+i}, v{BV+i}, v{S0+1}')
    for i in range(4):
        e(f'v_cvt_pk_bf16_f32 v{S0+2}, v{BV+2*i}, v{BV+2*i+1}')
        e(f'v_lshlrev_b32 v{BV+2*i}, 16, v{S0+2}')
        e(f'v_and_b32 v{BV+2*i+1}, 0xffff0000, v{S0+2}')
    OF=172; WF2=52; acc2=8
    e(f'''
    s_lshl_b32 s{sT0}, s{sRB}, 1
    s_add_u32 s{sT0}, s{sT0}, s{sRT}
    s_lshl_b32 s{sT0}, s{sT0}, 15
    s_lshl_b32 s{sT1}, s{sKH}, 14
    s_add_u32 s{sT0}, s{sT0}, s{sT1}
    s_add_u32 s{sT2}, s{sT0}, {WS_O}
    s_lshl_b32 s{sT0}, s{sKH}, 15
    v_lshrrev_b32 v{S0+2}, 5, v{vL}
    v_lshl_add_u32 v{ad}, v{S0+2}, 9, v{vTR}
    v_add_u32 v{ad}, s{sT0}, v{ad}
    s_mov_b32 s{sCNT}, 0
    s_waitcnt lgkmcnt(0)
    s_barrier
    ''')
    for ks in range(16):
        e(f'ds_read_b64_tr_b16 {v(WF2+4*ks,2)}, v{ad} offset:{ks*2048}')
        e(f'ds_read_b64_tr_b16 {v(WF2+4*ks+2,2)}, v{ad} offset:{ks*2048+1024}')
    e('L_opoll:')
    e(f's_mov_b32 s{sT0}, s{sT2}')
    for ks in range(16):
        e(f'buffer_load_dwordx4 {v(OF+4*ks,4)}, v{vL16}, {srd(S_WS)}, s{sT0} offen offset:{(ks%4)*1024} sc0 sc1')
        if ks % 4 == 3 and ks < 15: e(f's_add_u32 s{sT0}, s{sT0}, 4096')
    e(f's_waitcnt vmcnt(0)')
    e(f'v_max3_u32 v{S0}, v{OF}, v{OF+1}, v{OF+2}')
    for i in range(3, 63, 2): e(f'v_max3_u32 v{S0}, v{S0}, v{OF+i}, v{OF+i+1}')
    e(f'''
    v_max_u32 v{S0}, v{S0}, v{OF+63}
    v_cmp_eq_u32 vcc, -1, v{S0}
    s_cbranch_vccz L_ook
    s_sleep 1
    s_add_u32 s{sCNT}, s{sCNT}, 1
    s_cmp_lt_u32 s{sCNT}, 100000
    s_cbranch_scc1 L_opoll
    L_ook:
    s_waitcnt lgkmcnt(0)
    ''')
    for ks in range(16):
        e(f'v_mfma_f32_32x32x16_bf16 {v(acc2,16)}, {v(WF2+4*ks,4)}, {v(OF+4*ks,4)}, {"0" if ks==0 else v(acc2,16)}')
    e(f'''
    s_lshl_b32 s{sT0}, s{sW}, 11
    s_add_u32 s{sT0}, s{sT0}, {R_W}
    v_add_u32 v{S0}, s{sT0}, v{vL16}
    s_xor_b32 s{sT0}, s{sT0}, 4096
    v_add_u32 v{S0+1}, s{sT0}, v{vL16}
    ds_write_b128 v{S0}, {v(acc2+8,4)}
    ds_write_b128 v{S0}, {v(acc2+12,4)} offset:1024
    s_waitcnt lgkmcnt(0)
    s_barrier
    ds_read_b128 {v(acc2+8,4)}, v{S0+1}
    ds_read_b128 {v(acc2+12,4)}, v{S0+1} offset:1024
    s_waitcnt lgkmcnt(0)
    ''')
    T=S0+2
    for i in range(4):
        x=acc2+2*i
        e(f'''
        v_add_f32 v{x}, v{x}, v{x+8}
        v_add_f32 v{x+1}, v{x+1}, v{x+9}
        v_cvt_pk_bf16_f32 v{T}, v{x}, v{x+1}
        v_lshlrev_b32 v{x}, 16, v{T}
        v_and_b32 v{x+1}, 0xffff0000, v{T}
        v_mul_f32 v{x}, v{x}, v{GV}
        v_mul_f32 v{x+1}, v{x+1}, v{GV}
        v_cvt_pk_bf16_f32 v{T}, v{x}, v{x+1}
        v_lshlrev_b32 v{x}, 16, v{T}
        v_and_b32 v{x+1}, 0xffff0000, v{T}
        v_add_f32 v{x}, v{x}, v{BV+2*i}
        v_add_f32 v{x+1}, v{x+1}, v{BV+2*i+1}
        v_cvt_pk_bf16_f32 v{T+2+i}, v{x}, v{x+1}
        ''')
    e(f'''
    buffer_store_dwordx2 {v(T+2,2)}, v{GV+1}, {srd(S_OUT)}, 0 offen
    buffer_store_dwordx2 {v(T+4,2)}, v{GV+1}, {srd(S_OUT)}, 0 offen offset:16
    L_end:
    s_endpgm
    ''')
    return e.text()

HEAD = open('cdna_kernels/%s.s.ref' % NAME).read().split('; Override launch geometry')[0]
def full():
    body = gen()
    s = HEAD
    s += f'; @launch grid=(256,1,1) block=(512,1,1) lds={LDS_BYTES}\n'
    s += f'''.amdgcn_target "amdgcn-amd-amdhsa--gfx950"
.text
.globl {NAME}_kernel
.p2align 8
.type {NAME}_kernel,@function
{NAME}_kernel:
{body}
.section .rodata,"a"
.p2align 6
.amdhsa_kernel {NAME}_kernel
  .amdhsa_next_free_vgpr 256
  .amdhsa_next_free_sgpr 102
  .amdhsa_accum_offset 256
  .amdhsa_group_segment_fixed_size 0
  .amdhsa_kernarg_size 128
  .amdhsa_user_sgpr_count 2
  .amdhsa_user_sgpr_kernarg_segment_ptr 1
  .amdhsa_system_sgpr_workgroup_id_x 1
.end_amdhsa_kernel
'''
    return s
if __name__ == '__main__':
    out = sys.argv[1] if len(sys.argv) > 1 else f'cdna_kernels/{NAME}.s'
    open(out, 'w').write(full())
```

```python
import re

TRANS = ('v_exp_f32','v_log_f32','v_rcp_f32','v_rsq_f32','v_sqrt_f32','v_sin_f32','v_cos_f32','v_exp_f16','v_rcp_iflag_f32')

def parse_regs(tok):
    tok = tok.strip()
    tok = re.sub(r'^-', '', tok)
    m = re.match(r'^abs\((.*)\)$', tok)
    if m: tok = m.group(1)
    m = re.match(r'^\|(.*)\|$', tok)
    if m: tok = m.group(1)
    m = re.match(r'^([vsa])(\d+)$', tok)
    if m: return {(m.group(1), int(m.group(2)))}
    m = re.match(r'^([vsa])\[(\d+):(\d+)\]$', tok)
    if m: return {(m.group(1), i) for i in range(int(m.group(2)), int(m.group(3))+1)}
    if tok in ('vcc','vcc_lo','vcc_hi'): return {('vcc',0)}
    if tok in ('exec','exec_lo','exec_hi'): return {('exec',0)}
    if tok == 'm0': return {('m0',0)}
    return set()

class Ins:
    def __init__(self, text):
        self.text = text
        t = text.split(';')[0].strip()
        self.is_label = t.endswith(':')
        self.is_dir = t.startswith('.')
        self.op = ''
        self.w = set(); self.r = set()
        self.kind = 'other'
        self.srcA=set(); self.srcB=set(); self.srcC=set()
        if self.is_label or self.is_dir or not t:
            return
        parts = t.split(None, 1)
        op = parts[0]; self.op = op
        rest = parts[1] if len(parts) > 1 else ''
        ops = []; depth = 0; cur = ''
        for ch in rest:
            if ch in '[(': depth += 1
            if ch in '])': depth -= 1
            if ch == ',' and depth == 0:
                ops.append(cur); cur = ''
            else: cur += ch
        ops.append(cur)
        ops = [o.strip() for o in ops]
        mods = ''
        if ops:
            sp = ops[-1].split(None, 1)
            if len(sp) > 1:
                ops[-1] = sp[0]; mods = sp[1]
        self.mods = mods
        R = [parse_regs(o) for o in ops]
        self.ops = ops
        base = re.sub(r'_(e32|e64|dpp|sdwa)$', '', op)
        self.base = base
        self.dpp = op.endswith('_dpp')
        if op.startswith('v_mfma') or op.startswith('v_smfmac'):
            self.kind = 'mfma'
            self.w = R[0]; self.srcA = R[1]; self.srcB = R[2]; self.srcC = R[3]
            self.r = R[1] | R[2] | R[3]
            self.passes = 8 if '32x32' in op else 4
        elif op.startswith('v_cmp'):
            self.kind = 'valu'; self.w = set(R[0]); self.r = set().union(*R[1:])
            if op.startswith('v_cmpx'): self.w |= {('exec',0)}
        elif base in ('v_readfirstlane_b32','v_readlane_b32'):
            self.kind = 'valu'; self.w = R[0]; self.r = set().union(*R[1:])
        elif base in ('v_permlane32_swap_b32','v_permlane16_swap_b32','v_swap_b32'):
            self.kind = 'valu'; self.w = R[0] | R[1]; self.r = R[0] | R[1]
        elif base in ('v_add_co_u32','v_sub_co_u32','v_addc_co_u32','v_subb_co_u32'):
            self.kind = 'valu'; self.w = R[0] | R[1]; self.r = set().union(*R[2:])
        elif op.startswith('v_'):
            self.kind = 'valu'; self.w = R[0]; self.r = set().union(*R[1:]) if len(R) > 1 else set()
            if base in ('v_fmac_f32','v_dot2c_f32_bf16','v_writelane_b32') or 'UNUSED_PRESERVE' in mods or self.dpp:
                self.r |= R[0]
        elif op.startswith('ds_'):
            self.kind = 'ds'
            if op.startswith('ds_read') or op.startswith('ds_bpermute') or op.startswith('ds_swizzle') or '_rtn' in op:
                self.w = R[0]; self.r = set().union(*R[1:])
                if 'd16' in op: self.r |= R[0]
            else:
                self.r = set().union(*R)
        elif op.startswith('buffer_') or op.startswith('global_'):
            self.kind = 'vmem'
            self.lds = bool(re.search(r'\blds\b', mods)) or 'load_lds' in op
            if 'load' in op and not self.lds:
                self.w = R[0]; self.r = set().union(*R[1:])
                if 'd16' in op: self.r |= R[0]
            else:
                self.r = set().union(*R) if R else set()
            if self.lds: self.r |= {('m0',0)}
            self.wide_store = set()
            if 'store' in op and ('x4' in op or 'x3' in op):
                self.wide_store = R[0] if op.startswith('buffer_') else R[1]
        elif op.startswith('s_'):
            self.kind = 'salu'
            if op in ('s_nop','s_waitcnt','s_barrier','s_endpgm','s_sleep','s_setprio') or op.startswith('s_cbranch') or op == 's_branch' or op.startswith('s_cmp'):
                self.r = set().union(*R) if R else set()
            else:
                self.w = R[0]; self.r = set().union(*R[1:]) if len(R) > 1 else set()
                if 'saveexec' in op: self.w = self.w | {('exec',0)}
    def states(self):
        if self.is_label or self.is_dir or not self.op: return 0
        if self.op == 's_nop': return int(self.ops[0], 0) + 1
        return 1

def need(prod, cons):
    n = 0
    isv = lambda s: {x for x in s if x[0] in 'va' and len(x[0]) == 1}
    iss = lambda s: {x for x in s if x[0] in ('s','vcc')}
    if prod.kind == 'valu':
        pw = isv(prod.w)
        if cons.kind == 'mfma' and pw & cons.r: n = max(n, 2)
        if cons.kind == 'valu':
            if prod.base in TRANS and cons.base not in TRANS and pw & (cons.r): n = max(n, 1)
            if cons.base in ('v_readfirstlane_b32','v_readlane_b32') and pw & cons.r: n = max(n, 1)
            if cons.base.startswith('v_permlane') and pw & cons.r: n = max(n, 2)
            if cons.dpp and pw & cons.r: n = max(n, 2)
            if ('sdwa' in prod.op or 'op_sel' in getattr(prod,'mods','')) and not prod.base.startswith('v_pk_') and pw & (cons.r | cons.w): n = max(n, 1)
        if prod.base in TRANS and cons.kind in ('ds','vmem') and pw & cons.r: n = max(n, 1)
        sw = iss(prod.w)
        if sw:
            if cons.kind == 'valu' and sw & cons.r:
                n = max(n, 4 if cons.base in ('v_readlane_b32','v_writelane_b32') else 2)
            if cons.kind == 'valu' and cons.base in ('v_cndmask_b32','v_addc_co_u32') and ('vcc',0) in sw and ('vcc',0) in cons.r: n = max(n, 2)
            if cons.kind == 'vmem' and sw & cons.r: n = max(n, 5)
            if cons.kind == 'salu' and sw & cons.r: n = max(n, 1)
            if cons.op in ('s_cbranch_vccz','s_cbranch_vccnz') and ('vcc',0) in sw: n = max(n, 1)
        if ('exec',0) in prod.w:
            if cons.kind == 'mfma': n = max(n, 4)
            if cons.kind == 'valu' and (cons.dpp): n = max(n, 5)
            if cons.kind == 'valu' and (cons.base.startswith('v_permlane') or cons.base.startswith('v_read')): n = max(n, 4)
    if prod.kind == 'mfma':
        p = prod.passes
        if cons.kind == 'mfma':
            if prod.w & (cons.srcA | cons.srcB): n = max(n, 8 if p == 4 else 12)
            if prod.w & cons.srcC:
                if not (prod.w == cons.srcC and p == cons.passes): n = max(n, 6 if p == 4 else 10)
            elif prod.w & cons.w: n = max(n, 6 if p == 4 else 10)
        elif cons.kind in ('valu','ds','vmem'):
            if prod.w & (cons.r | cons.w): n = max(n, 8 if p == 4 else 12)
            if cons.kind == 'valu' and prod.srcC & cons.w: n = max(n, 3 if p == 4 else 7)
            if cons.kind in ('ds','vmem') and prod.srcC & cons.w: n = max(n, 3 if p == 4 else 7)
    if prod.kind == 'salu':
        if ('m0',0) in prod.w and cons.kind == 'vmem' and getattr(cons,'lds',False): n = max(n, 1)
    if prod.kind == 'vmem' and getattr(prod,'wide_store',None):
        if prod.wide_store & cons.w: n = max(n, 2 if cons.kind in ('valu','mfma') else 1)
    return n

class Asm:
    def __init__(self, diag=False):
        self.ins = []
        self.diag = diag
        self.stamps = []
    def __call__(self, text):
        for line in text.split('\n'):
            line = line.strip()
            if line.startswith('@stamp'):
                if self.diag:
                    i = len(self.stamps); self.stamps.append(line.split()[1])
                    for t in ('s_memtime s[94:95]', 's_waitcnt lgkmcnt(0)', f'v_writelane_b32 v255, s94, {i}'):
                        self.ins.append(Ins(t))
                continue
            if line: self.ins.append(Ins(line))
    def label(self, name): self(f'{name}:')
    def finalize(self, window=24):
        out = []
        nins = 0
        for I in self.ins:
            if I.op:
                dist = 0; req = 0
                for P in reversed(out[-window*2:]):
                    if P.op:
                        k = need(P, I)
                        if k - dist > req: req = k - dist
                        dist += P.states()
                        if P.op in ('s_branch','s_endpgm','s_setpc_b64'): break
                        if dist > 20: break
                while req > 0:
                    k = min(req, 16)
                    out.append(Ins(f's_nop {k-1}')); req -= k; nins += 1
            out.append(I)
        self.out = out
        return out
    def text(self):
        s = ''
        for I in self.finalize():
            s += (I.text if (I.is_label or I.is_dir) else '    ' + I.text) + '\n'
        return s
```

```python
import sys, struct, math
from asmlib import Asm

NAME = 'gated_mix__grouped_kv_mqa__ssm_conv_s4d__prompt'
def f32(x): return '0x%08x' % struct.unpack('<I', struct.pack('<f', x))[0]
def f32v(x): return struct.unpack('<f', struct.pack('<f', x))[0]

WS_KV = 0x0
WS_G  = 0x20000
WS_O  = 0x100000
WS_B  = 0x400000
WS_SIZE = 0x700000
R_X = 0; R_W = 65536; R_S = 131072
KTAB = R_S + 16384
KREV = R_S; KREV_CH = 8320; KREV_O = 4160
XC = R_S + 16640; XC_CH = 4608
GB = R_W
LDS_BYTES = 163840

P_X=4; P_WQ=6; P_WK=8; P_WV=10; P_WO=12; P_LAR=16; P_AIM=18; P_CR=20; P_CI=22; P_LDT=24; P_DSK=26; P_GATE=28; P_OUT=30; P_DBG=32; P_WS=34
S_X=36; S_WQ=40; S_WKV=44; S_WS=48; S_OUT=52; S_GATE=56; S_DBG=60; S_WO=64
sW=68; sRB=69; sCB=70; sD0=71; sLDT=72; sDSK=73; sT0=74; sT1=75; sT2=76; sT3=77; sRT=78; sCT=79; sKH=80; sCNT=81; sFB=82
sM0=84
sM1=86
sOB=88; sT4=89; sT5=90; sSC=91; sSCI=92

def srd(n): return f's[{n}:{n+3}]'
def sp(n): return f's[{n}:{n+1}]'
def v(n, k=1): return f'v{n}' if k == 1 else f'v[{n}:{n+k-1}]'

LOG2E = 1.4426950408889634
L2E_HI = f32v(LOG2E); L2E_LO = LOG2E - L2E_HI
INV2PI = 1.0/(2*math.pi); I2P_HI = f32v(INV2PI); I2P_LO = INV2PI - I2P_HI

DIAG = False
def gen(stop_after=None):
    e = Asm(DIAG)
    gen.e = e
    vT=0; vL=1; vL16=2
    vQ=4; vXC=8; vGI=16; vG=26
    e(f'''
    s_cmp_ge_u32 s2, 256
    s_cbranch_scc1 L_end
    @stamp start
    s_load_dwordx16 s[4:19], s[0:1], 0
    s_load_dwordx16 s[20:35], s[0:1], 64
    v_and_b32 v{vL}, 63, v0
    v_lshrrev_b32 v3, 6, v0
    v_lshlrev_b32 v{vL16}, 4, v{vL}
    v_readfirstlane_b32 s{sW}, v3
    s_and_b32 s{sT0}, s2, 7
    s_lshr_b32 s{sT1}, s2, 3
    s_lshr_b32 s{sT2}, s{sT1}, 3
    s_lshl_b32 s{sRB}, s{sT0}, 2
    s_add_u32 s{sRB}, s{sRB}, s{sT2}
    s_and_b32 s{sCB}, s{sT1}, 7
    s_lshl_b32 s{sD0}, s{sT0}, 6
    s_lshl_b32 s{sT1}, s{sT1}, 1
    s_add_u32 s{sD0}, s{sD0}, s{sT1}
    s_and_b32 s{sRT}, s{sW}, 1
    s_lshr_b32 s{sCT}, s{sW}, 2
    s_lshr_b32 s{sKH}, s{sW}, 1
    s_and_b32 s{sKH}, s{sKH}, 1
    ''')
    vM15=44; vG4=45; vA=46; vB=47; vC=48
    xf=52; gf=60; vLAR=68; vAIM=69; vCR=70; vCI=71
    e(f'''
    v_and_b32 v{vM15}, 15, v{vL}
    v_lshrrev_b32 v{vG4}, 4, v{vL}
    s_lshl_b32 s{sT0}, s{sRB}, 6
    s_lshr_b32 s{sT1}, s{sCB}, 1
    s_lshl_b32 s{sT1}, s{sT1}, 4
    s_add_u32 s{sT0}, s{sT0}, s{sT1}
    s_lshl_b32 s{sT0}, s{sT0}, 10
    s_lshl_b32 s{sT1}, s{sW}, 7
    s_add_u32 s{sT0}, s{sT0}, s{sT1}          ; row0*1024 + w*128
    v_lshlrev_b32 v{vA}, 10, v{vM15}
    v_lshl_add_u32 v{vA}, v{vG4}, 4, v{vA}    ; (l&15)*1024 + g*16
    v_lshlrev_b32 v{vB}, 4, v{vG4}
    v_add_u32 v{vB}, s{sT1}, v{vB}            ; w*128 + g*16
    v_cmp_eq_u32 vcc, 0, v{vM15}
    v_mov_b32 v{vC}, 0x7ffffff0
    v_cndmask_b32 v{vB}, v{vC}, v{vB}, vcc
    s_waitcnt lgkmcnt(0)
    ''')
    def mk(S, P, nbytes):
        e(f'''
        s_mov_b32 s{S}, s{P}
        s_and_b32 s{S+1}, s{P+1}, 0xffff
        s_mov_b32 s{S+2}, {nbytes}
        s_mov_b32 s{S+3}, 0x00020000
        ''')
    mk(S_X, P_X, 2097152)
    mk(S_GATE, P_GATE, 1024)
    e(f'''
    s_bitcmp1_b32 s{sCB}, 0
    s_cselect_b32 s{S_WKV}, s{P_WV}, s{P_WK}
    s_cselect_b32 s{S_WKV+1}, s{P_WV+1}, s{P_WK+1}
    s_and_b32 s{S_WKV+1}, s{S_WKV+1}, 0xffff
    s_mov_b32 s{S_WKV+2}, 16384
    s_mov_b32 s{S_WKV+3}, 0x00020000
    buffer_load_dwordx4 {v(xf,4)}, v{vA}, {srd(S_X)}, s{sT0} offen
    buffer_load_dwordx4 {v(xf+4,4)}, v{vA}, {srd(S_X)}, s{sT0} offen offset:64
    buffer_load_dwordx4 {v(gf,4)}, v{vB}, {srd(S_GATE)}, 0 offen
    buffer_load_dwordx4 {v(gf+4,4)}, v{vB}, {srd(S_GATE)}, 0 offen offset:64
    s_lshl_b32 s{sT2}, s{sW}, 11
    s_add_u32 s{sT3}, s{sT2}, {R_S}
    s_mov_b32 m0, s{sT3}
    s_lshl_b32 s{sT4}, s{sD0}, 1
    buffer_load_dwordx4 v{vL16}, {srd(S_WKV)}, s{sT2} offen lds
    buffer_load_dwordx4 v{vL16}, {srd(S_WKV)}, s{sT2} offen offset:1024 lds
    s_load_dword s{sLDT}, {sp(P_LDT)}, s{sT4}
    s_load_dword s{sDSK}, {sp(P_DSK)}, s{sT4}
    ''')
    e(f'''
    s_add_u32 s{sT0}, s{sD0}, s{sCT}
    s_lshl_b32 s{sT0}, s{sT0}, 8
    s_and_b32 s{sT1}, s{sW}, 3
    s_lshl_b32 s{sT1}, s{sT1}, 6
    s_add_u32 s{sT0}, s{sT0}, s{sT1}
    v_and_b32 v{vA}, 31, v{vL}
    v_lshlrev_b32 v{vA}, 1, v{vA}
    v_add_u32 v{vA}, s{sT0}, v{vA}
    global_load_ushort v{vLAR}, v{vA}, {sp(P_LAR)}
    global_load_ushort v{vAIM}, v{vA}, {sp(P_AIM)}
    global_load_ushort v{vCR}, v{vA}, {sp(P_CR)}
    global_load_ushort v{vCI}, v{vA}, {sp(P_CI)}
    ''')
    mk(S_WS, P_WS, WS_SIZE)
    vS=72
    e(f'''
    v_mov_b32 v{vS}, -1
    v_mov_b32 v{vS+1}, -1
    v_mov_b32 v{vS+2}, -1
    v_mov_b32 v{vS+3}, -1
    s_lshl_b32 s{sT0}, s{sRB}, 1
    s_add_u32 s{sT0}, s{sT0}, s{sRT}
    s_lshl_b32 s{sT0}, s{sT0}, 5
    s_lshl_b32 s{sT1}, s{sCB}, 2
    s_add_u32 s{sT0}, s{sT0}, s{sT1}
    s_lshr_b32 s{sT1}, s{sW}, 1
    s_add_u32 s{sT0}, s{sT0}, s{sT1}
    s_lshl_b32 s{sT0}, s{sT0}, 10
    s_add_u32 s{sOB}, s{sT0}, {WS_O}
    s_lshl_b32 s{sT0}, s{sD0}, 12
    s_lshl_b32 s{sT1}, s{sW}, 10
    s_add_u32 s{sT0}, s{sT0}, s{sT1}
    s_add_u32 s{sT0}, s{sT0}, {WS_B}
    buffer_store_dwordx4 {v(vS,4)}, v{vL16}, {srd(S_WS)}, s{sOB} offen sc0 sc1
    buffer_store_dwordx4 {v(vS,4)}, v{vL16}, {srd(S_WS)}, s{sT0} offen sc0 sc1
    ''')
    mk(S_WQ, P_WQ, 524288)
    mk(S_WO, P_WO, 524288)
    mk(S_OUT, P_OUT, 2097152)
    mk(S_DBG, P_DBG, 256)
    vWS=50
    e(f'''
    v_lshrrev_b32 v{vA}, 3, v{vL}
    v_lshlrev_b32 v{vA}, 10, v{vA}
    v_and_b32 v{vB}, 7, v{vL}
    v_bfe_u32 v{vC}, v{vL}, 4, 1
    v_lshlrev_b32 v{vC}, 2, v{vC}
    v_xor_b32 v{vB}, v{vB}, v{vC}
    v_lshl_add_u32 v{vA}, v{vB}, 4, v{vA}
    s_lshl_b32 s{sT0}, s{sCB}, 7
    v_add_u32 v{vWS}, s{sT0}, v{vA}
    s_cmp_lt_u32 s{sW}, 4
    s_cbranch_scc1 L_noload
    s_and_b32 s{sT0}, s{sW}, 3
    s_lshl_b32 s{sT1}, s{sT0}, 14
    s_lshl_b32 s{sT2}, s{sRB}, 16
    s_add_u32 s{sT2}, s{sT2}, s{sT1}
    ''')
    for j in range(16):
        e(f'''
        s_mov_b32 m0, s{sT1}
        v_xor_b32 v{vA}, {j*16}, v{vL16}
        buffer_load_dwordx4 v{vA}, {srd(S_X)}, s{sT2} offen lds
        s_add_u32 s{sT1}, s{sT1}, 1024
        s_add_u32 s{sT2}, s{sT2}, 1024
        ''')
    e(f'''
    s_lshl_b32 s{sT1}, s{sT0}, 14
    s_add_u32 s{sT1}, s{sT1}, {R_W}
    s_lshl_b32 s{sT2}, s{sT0}, 17
    ''')
    for j in range(16):
        e(f'''
        s_mov_b32 m0, s{sT1}
        s_add_u32 s{sT1}, s{sT1}, 1024
        buffer_load_dwordx4 v{vWS}, {srd(S_WQ)}, s{sT2} offen lds
        s_add_u32 s{sT2}, s{sT2}, 8192
        ''')
    e('L_noload:')
    e('@stamp issued')
    t0=76
    e(f'''
    v_and_b32 v{t0}, 255, v0
    v_lshlrev_b32 v{t0}, 3, v{t0}
    v_sub_u32 v{t0}, 2047, v{t0}              ; p for e=0
    s_lshl_b32 s{sT0}, s{sCT}, 14
    s_add_u32 s{sT0}, s{sT0}, {GB}
    v_mov_b32 v{t0+1}, s{sT0}
    ''')
    for k in range(9):
        a=t0+2; b=t0+3; c=t0+4; d=t0+5
        e(f'''
        v_subrev_u32 v{a}, {k}, v{t0}
        v_cvt_f32_i32 v{a}, v{a}
        v_cvt_pk_bf16_f32 v{a}, v{a}, v{a}
        v_lshlrev_b32 v{a}, 16, v{a}
        v_cvt_u32_f32 v{a}, v{a}
        v_lshrrev_b32 v{b}, 9, v{a}
        v_cmp_lt_u32 vcc, 0, v{b}
        v_add_u32 v{b}, 15, v{b}
        v_and_b32 v{c}, 7, v{a}
        v_cndmask_b32 v{b}, 0, v{b}, vcc
        v_bfe_u32 v{d}, v{a}, 8, 1
        v_lshl_add_u32 v{c}, v{d}, 3, v{c}
        v_add_u32 v{b}, v{b}, v{c}
        v_bfe_u32 v{d}, v{a}, 3, 5
        v_lshl_add_u32 v{b}, v{b}, 5, v{d}
        ''')
        if k == 8:
            e(f'''
            v_cmp_gt_u32 vcc, 8, v{t0}
            v_mov_b32 v{c}, 1023
            v_cndmask_b32 v{b}, v{b}, v{c}, vcc
            ''')
        e(f'v_lshl_add_u32 v{vGI+k}, v{b}, 4, v{t0+1}')
    wf=76; dk=84; dg=88; vP=92
    e(f'''
    v_lshlrev_b32 v{vA}, 8, v{vG4}
    v_lshl_add_u32 v{vA}, v{vM15}, 3, v{vA}
    v_add_u32 v{vA}, s{sT3}, v{vA}            ; piece + g*256 + (l&15)*8
    v_add_u32 v{vP}, s{sT3}, v{vL16}
    s_cmp_lt_u32 s{sW}, 4
    s_cbranch_scc1 L_w1a
    s_waitcnt vmcnt(38)
    s_branch L_w1b
    L_w1a:
    s_waitcnt vmcnt(6)
    L_w1b:
    @stamp kvdata
    ds_read_b64_tr_b16 {v(wf,2)}, v{vA}
    ds_read_b64_tr_b16 {v(wf+2,2)}, v{vA} offset:128
    ds_read_b64_tr_b16 {v(wf+4,2)}, v{vA} offset:1024
    ds_read_b64_tr_b16 {v(wf+6,2)}, v{vA} offset:1152
    v_mfma_f32_16x16x32_bf16 {v(dg,4)}, {v(gf,4)}, {v(xf,4)}, 0
    v_mfma_f32_16x16x32_bf16 {v(dg,4)}, {v(gf+4,4)}, {v(xf+4,4)}, {v(dg,4)}
    s_waitcnt lgkmcnt(0)
    s_bitcmp1_b32 s{sCB}, 0
    s_cbranch_scc1 L_kv_v
    v_mfma_f32_16x16x32_bf16 {v(dk,4)}, {v(wf,4)}, {v(xf,4)}, 0
    v_mfma_f32_16x16x32_bf16 {v(dk,4)}, {v(wf+4,4)}, {v(xf+4,4)}, {v(dk,4)}
    s_branch L_kv_d
    L_kv_v:
    v_mfma_f32_16x16x32_bf16 {v(dk,4)}, {v(xf,4)}, {v(wf,4)}, 0
    v_mfma_f32_16x16x32_bf16 {v(dk,4)}, {v(xf+4,4)}, {v(wf+4,4)}, {v(dk,4)}
    L_kv_d:
    s_nop 7
    ds_write_b128 v{vP}, {v(dk,4)}
    ds_write_b128 v{vP}, {v(dg,4)} offset:1024
    s_cmp_lt_u32 s{sW}, 4
    s_cbranch_scc1 L_w2a
    s_waitcnt vmcnt(32) lgkmcnt(0)
    s_branch L_w2b
    L_w2a:
    s_waitcnt vmcnt(0) lgkmcnt(0)
    L_w2b:
    s_barrier
    s_cmp_lg_u32 s{sW}, 0
    s_cbranch_scc1 L_kv_done
    ''')
    r0=96
    e(f'v_add_u32 v{vP}, {R_S}, v{vL16}')
    for w in range(8):
        e(f'ds_read_b128 {v(r0+4*w,4)}, v{vP} offset:{w*2048}')
    for w in range(8):
        e(f'ds_read_b32 v{r0+32+w}, v{vP} offset:{w*2048+1024}')
    e(f'''
    s_lshl_b32 s{sT0}, s{sRB}, 2
    s_lshr_b32 s{sT1}, s{sCB}, 1
    s_add_u32 s{sT0}, s{sT0}, s{sT1}          ; kb
    s_lshr_b32 s{sT1}, s{sT0}, 1
    s_lshl_b32 s{sT1}, s{sT1}, 11             ; tile*2048
    s_and_b32 s{sT2}, s{sT0}, 1
    s_lshl_b32 s{sT2}, s{sT2}, 8              ; kk*256
    s_add_u32 s{sT1}, s{sT1}, s{sT2}
    s_and_b32 s{sT2}, s{sCB}, 1
    s_lshl_b32 s{sT2}, s{sT2}, 10             ; +1024 for V
    s_add_u32 s{sT1}, s{sT1}, s{sT2}
    s_lshl_b32 s{sT0}, s{sT0}, 6
    s_add_u32 s{sT0}, s{sT0}, {WS_G}
    v_and_b32 v{vA}, 1, v{vG4}
    v_lshlrev_b32 v{vA}, 9, v{vA}
    v_lshl_add_u32 v{vA}, v{vM15}, 4, v{vA}
    v_lshrrev_b32 v{vB}, 1, v{vG4}
    v_lshl_add_u32 v{vA}, v{vB}, 3, v{vA}     ; (g&1)*512 + (l&15)*16 + (g>>1)*8
    v_lshlrev_b32 v{vB}, 2, v{vL}
    s_waitcnt lgkmcnt(8)
    ''')
    for w in range(1,8):
        for r in range(4):
            e(f'v_add_f32 v{r0+r}, v{r0+r}, v{r0+4*w+r}')
    e(f'''
    v_cvt_pk_bf16_f32 v{r0}, v{r0}, v{r0+1}
    v_cvt_pk_bf16_f32 v{r0+1}, v{r0+2}, v{r0+3}
    buffer_store_dwordx2 {v(r0,2)}, v{vA}, {srd(S_WS)}, s{sT1} offen sc0 sc1
    s_waitcnt lgkmcnt(0)
    ''')
    g0=r0+32
    for w in range(1,8):
        e(f'v_add_f32 v{g0}, v{g0}, v{g0+w}')
    e(f'''
    v_cvt_pk_bf16_f32 v{g0}, v{g0}, v{g0}
    v_lshlrev_b32 v{g0}, 16, v{g0}
    v_mul_f32 v{g0}, {f32(-LOG2E)}, v{g0}
    v_exp_f32 v{g0}, v{g0}
    v_add_f32 v{g0}, 1.0, v{g0}
    v_rcp_f32 v{g0}, v{g0}
    v_cvt_pk_bf16_f32 v{g0}, v{g0}, v{g0}
    v_lshlrev_b32 v{g0}, 16, v{g0}
    s_bitcmp1_b32 s{sCB}, 0
    s_cbranch_scc1 L_nog
    s_mov_b64 exec, 0xffff
    buffer_store_dword v{g0}, v{vB}, {srd(S_WS)}, s{sT0} offen sc0 sc1
    L_nog:
    s_mov_b64 exec, 1
    v_mov_b32 v{vA}, s2
    v_mov_b32 v{vB}, 1
    s_waitcnt vmcnt(0)
    buffer_store_byte v{vB}, v{vA}, {srd(S_DBG)}, 0 offen sc0 sc1
    s_mov_b64 exec, -1
    L_kv_done:
    @stamp kvdone
    ''')
    e(f'''
    s_cmp_ge_u32 s{sW}, 4
    s_cbranch_scc1 L_noxc
    v_lshlrev_b32 v{vA}, 13, v0
    s_lshl_b32 s{sT0}, s{sD0}, 1
    s_add_u32 s{sT1}, s{sT0}, 4096
    ''')
    for i in range(8):
        e(f'buffer_load_dword v{vXC+i}, v{vA}, {srd(S_X)}, s{sT0 if i<4 else sT1} offen offset:{(i%4)*1024}')
    e('L_noxc:')
    RA=72; RB=88; s1=104; s2=106; mu=108; pk=110; wa=118; ra=126; FA=132; FB=148
    a=164; b=165; c=166; d=167; al=168; bh=169; bl=170; dt=171; p1=172; p2=173; ee=174
    def exp_acc(dst, x, t, u):
        e(f'''
        v_mul_f32 v{t}, {f32(L2E_HI)}, v{x}
        v_fma_f32 v{u}, v{x}, s{sT4}, -v{t}
        v_fmac_f32 v{u}, {f32(L2E_LO)}, v{x}
        v_exp_f32 v{dst}, v{t}
        v_mul_f32 v{u}, {f32(math.log(2.0))}, v{u}
        v_fma_f32 v{dst}, v{dst}, v{u}, v{dst}
        v_cvt_pk_bf16_f32 v{dst}, v{dst}, v{dst}
        v_lshlrev_b32 v{dst}, 16, v{dst}
        ''')
    def cmul(D, X, Y):
        e(f'''
        v_pk_mul_f32 {v(D,2)}, {v(X,2)}, {v(Y,2)} op_sel:[0,0] op_sel_hi:[0,1]
        v_pk_fma_f32 {v(D,2)}, {v(X,2)}, {v(Y,2)}, {v(D,2)} op_sel:[1,1,0] op_sel_hi:[1,0,1] neg_lo:[1,0,0]
        ''')
    e(f'''
    s_mov_b32 s{sT4}, {f32(L2E_HI)}
    s_mov_b32 s{sT5}, {f32(I2P_HI)}
    s_lshl_b32 s{sT0}, s{sCT}, 4
    s_lshr_b32 s{sT1}, s{sLDT}, s{sT0}
    s_lshl_b32 s{sT1}, s{sT1}, 16
    v_mov_b32 v{a}, s{sT1}
    ''')
    exp_acc(dt, a, b, c)
    e(f'v_lshlrev_b32 v{a}, 16, v{vLAR}')
    exp_acc(al, a, b, c)
    e(f'''
    v_cmp_lt_u32 s[{sM0}:{sM0+1}], 31, v{vL}
    v_mul_f32 v{al}, v{al}, v{dt}
    v_mul_f32 v{al}, {f32(-LOG2E)}, v{al}
    v_lshlrev_b32 v{a}, 16, v{vAIM}
    v_mul_f32 v{a}, v{a}, v{dt}                       ; zi
    v_cndmask_b32 v{a}, v{a}, -v{a}, s[{sM0}:{sM0+1}]
    v_mul_f32 v{bh}, {f32(I2P_HI)}, v{a}
    v_fma_f32 v{bl}, v{a}, s{sT5}, -v{bh}
    v_fmac_f32 v{bl}, {f32(I2P_LO)}, v{a}
    v_mov_b32 v{b}, {f32(8.0)}
    v_cndmask_b32 v{p1}, v{b}, 1.0, s[{sM0}:{sM0+1}]
    v_mov_b32 v{b}, {f32(64.0)}
    v_mov_b32 v{c}, {f32(256.0)}
    v_cndmask_b32 v{p2}, v{b}, v{c}, s[{sM0}:{sM0+1}]
    ''')
    for (S, p) in ((s1,p1),(s2,p2)):
        e(f'''
        v_mul_f32 v{a}, v{al}, v{p}
        v_mul_f32 v{b}, v{bh}, v{p}
        v_exp_f32 v{ee}, v{a}
        v_fract_f32 v{b}, v{b}
        v_fmac_f32 v{b}, v{bl}, v{p}
        v_cos_f32 v{c}, v{b}
        v_sin_f32 v{d}, v{b}
        v_mul_f32 v{S}, v{ee}, v{c}
        v_mul_f32 v{S+1}, v{ee}, v{d}
        ''')
    e(f'''
    v_and_b32 v{a}, 0x7fff, v{vCR}
    v_and_b32 v{b}, 0x7fff, v{vCI}
    v_max_u32 v{a}, v{a}, v{b}
    v_max_u32_dpp v{a}, v{a}, v{a} row_shr:1 row_mask:0xf bank_mask:0xf
    v_max_u32_dpp v{a}, v{a}, v{a} row_shr:2 row_mask:0xf bank_mask:0xf
    v_max_u32_dpp v{a}, v{a}, v{a} row_shr:4 row_mask:0xf bank_mask:0xf
    v_max_u32_dpp v{a}, v{a}, v{a} row_shr:8 row_mask:0xf bank_mask:0xf
    v_readlane_b32 s{sT0}, v{a}, 15
    v_readlane_b32 s{sT1}, v{a}, 31
    s_max_u32 s{sT0}, s{sT0}, s{sT1}
    s_lshr_b32 s{sT0}, s{sT0}, 7
    s_max_u32 s{sT0}, s{sT0}, 1
    s_min_u32 s{sT0}, s{sT0}, 253
    s_lshl_b32 s{sSC}, s{sT0}, 23
    s_sub_u32 s{sT0}, 254, s{sT0}
    s_lshl_b32 s{sSCI}, s{sT0}, 23
    v_lshlrev_b32 v{a}, 16, v{vCR}
    v_lshlrev_b32 v{b}, 16, v{vCI}
    v_mul_f32 v{a}, s{sSCI}, v{a}
    v_mul_f32 v{b}, s{sSCI}, v{b}
    v_cndmask_b32 v{RA}, 1.0, v{a}, s[{sM0}:{sM0+1}]
    v_cndmask_b32 v{RA+1}, 0, -v{b}, s[{sM0}:{sM0+1}]
    ''')
    cmul(mu, s2, s2)
    e(f'''
    v_cndmask_b32 v{mu}, v{s1}, v{mu}, s[{sM0}:{sM0+1}]
    v_cndmask_b32 v{mu+1}, v{s1+1}, v{mu+1}, s[{sM0}:{sM0+1}]
    v_add_f32 v{dt}, v{dt}, v{dt}
    v_mul_f32 v{dt}, s{sSC}, v{dt}                    ; 2*dt*2^e
    s_lshl_b32 s{sT0}, s{sW}, 11
    s_add_u32 s{sT0}, s{sT0}, {KTAB}
    v_lshrrev_b32 v{a}, 5, v{vL}
    v_lshlrev_b32 v{a}, 10, v{a}                      ; part*1024
    v_and_b32 v{b}, 31, v{vL}
    v_lshl_add_u32 v{a}, v{b}, 2, v{a}                ; + n*4
    v_add_u32 v{wa}, s{sT0}, v{a}
    ''')
    for i in range(1,8):
        e(f'v_xor_b32 v{wa+i}, {16*i}, v{wa}')
    e(f'''
    v_and_b32 v{a}, 7, v{vL}
    v_lshrrev_b32 v{b}, 5, v{vL}
    v_xor_b32 v{b}, v{b}, v{a}
    v_lshlrev_b32 v{b}, 4, v{b}
    v_lshl_add_u32 v{a}, v{a}, 7, v{b}
    v_add_u32 v{ra}, s{sT0}, v{a}
    ''')
    for s in range(1,4):
        e(f'v_xor_b32 v{ra+s}, {32*s}, v{ra}')
    def flush(R, rnd):
        for i in range(8):
            e(f'v_cvt_pk_f16_f32 v{pk+i}, v{R+2*i}, v{R+2*i+1}')
        for i in range(8):
            e(f'ds_write_b32 v{wa+i}, v{pk+i} offset:{128*i}')
        m = 0xff << (8*rnd)
        e(f's_mov_b32 exec_lo, {hex(m)}\ns_mov_b32 exec_hi, {hex(m)}')
        for s in range(4):
            e(f'ds_read_b128 {v(FB+4*s,4)}, v{ra+s}')
            e(f'ds_read_b128 {v(FA+4*s,4)}, v{ra+s} offset:1024')
        e('s_mov_b64 exec, -1')
    for i in range(1,8): cmul(RA+2*i, RA+2*(i-1), s1)
    flush(RA, 0)
    for i in range(8): cmul(RB+2*i, RA+2*i, s2)
    flush(RB, 1)
    for (dst, src, rnd) in ((RA, RB, 2), (RB, RA, 3)):
        cmul(dst, src, s2)
        for i in (4,5,6,7): cmul(dst+2*i, src+2*i, s2)
        for i in (1,2,3): cmul(dst+2*i, dst+2*(i-1), mu)
        flush(dst, rnd)
    e('s_waitcnt lgkmcnt(0)')
    for s in range(4):
        e(f'v_mfma_f32_32x32x16_f16 {v(vG,16)}, {v(FA+4*s,4)}, {v(FB+4*s,4)}, {"0" if s==0 else v(vG,16)}')
    e('@stamp kgen')
    xa=72; wadr=80; acc=84; XF=100; WF=132
    e(f'''
    v_and_b32 v{a}, 31, v{vL}
    s_lshl_b32 s{sT0}, s{sRT}, 15
    s_lshl_b32 s{sT1}, s{sKH}, 9
    s_add_u32 s{sT0}, s{sT0}, s{sT1}
    v_lshlrev_b32 v{a}, 10, v{a}
    v_lshrrev_b32 v{b}, 5, v{vL}
    v_xor_b32 v{b}, v{b}, v{vM15}
    v_lshl_add_u32 v{a}, v{b}, 4, v{a}
    v_add_u32 v{xa}, s{sT0}, v{a}
    ''')
    for j in range(1,8):
        e(f'v_xor_b32 v{xa+j}, {32*j}, v{xa}')
    vTR=51
    e(f'''
    v_bfe_u32 v{a}, v{vL}, 2, 2                ; r
    v_lshrrev_b32 v{b}, 1, v{a}
    v_xor_b32 v{b}, s{sCT}, v{b}
    v_lshlrev_b32 v{b}, 6, v{b}
    v_lshl_add_u32 v{a}, v{a}, 7, v{b}
    v_bfe_u32 v{b}, v{vL}, 4, 1
    v_xor_b32 v{b}, s{sKH}, v{b}
    v_lshl_add_u32 v{a}, v{b}, 5, v{a}
    v_and_b32 v{b}, 3, v{vL}
    v_lshl_add_u32 v{vTR}, v{b}, 3, v{a}
    s_lshl_b32 s{sT0}, s{sKH}, 15
    s_add_u32 s{sT0}, s{sT0}, {R_W}
    v_lshrrev_b32 v{b}, 5, v{vL}
    v_lshl_add_u32 v{wadr}, v{b}, 10, v{vTR}
    v_add_u32 v{wadr}, s{sT0}, v{wadr}
    ''')
    for r in range(16):
        e(f'v_mul_f32 v{vG+r}, v{vG+r}, v{dt}')
    e(f'''
    s_cmp_lt_u32 s{sW}, 4
    s_cbranch_scc1 L_w3
    s_waitcnt vmcnt(0)
    L_w3:
    s_barrier
    @stamp B1
    ''')
    def qreads(ks):
        bi = ks % 8
        e(f'ds_read_b128 {v(XF+4*bi,4)}, v{xa+(ks&7)} offset:{(ks>>3)*256}')
        e(f'ds_read_b64_tr_b16 {v(WF+4*bi,2)}, v{wadr} offset:{ks*2048}')
        e(f'ds_read_b64_tr_b16 {v(WF+4*bi+2,2)}, v{wadr} offset:{ks*2048+512}')
    for ks in range(4): qreads(ks)
    for ks in range(16):
        if ks+4 < 16:
            qreads(ks+4)
            e('s_waitcnt lgkmcnt(12)')
        else:
            e(f's_waitcnt lgkmcnt({3*(15-ks)})')
        bi = ks % 8
        e(f'v_mfma_f32_32x32x16_bf16 {v(acc,16)}, {v(WF+4*bi,4)}, {v(XF+4*bi,4)}, {"0" if ks==0 else v(acc,16)}')
    e('s_barrier')
    e('@stamp B2')
    e(f'''
    s_lshl_b32 s{sT0}, s{sW}, 11
    v_add_u32 v{a}, s{sT0}, v{vL16}
    s_xor_b32 s{sT0}, s{sT0}, 4096
    v_add_u32 v{b}, s{sT0}, v{vL16}
    s_lshl_b32 s{sT0}, s{sCT}, 14
    s_and_b32 s{sT1}, s{sW}, 3
    s_lshl_b32 s{sT1}, s{sT1}, 2
    s_add_u32 s{sT0}, s{sT0}, s{sT1}
    s_add_u32 s{sT0}, s{sT0}, {GB}
    v_and_b32 v{c}, 31, v{vL}
    v_lshlrev_b32 v{c}, 4, v{c}
    v_lshrrev_b32 v{d}, 5, v{vL}
    v_lshl_add_u32 v{c}, v{d}, 11, v{c}        ; h*4*32*16 + j*16
    v_add_u32 v{c}, s{sT0}, v{c}
    v_mov_b32 v{vG+15}, 0
    ''')
    for r in (0,1,2,3,4,6,8,9,10,11,12,13,14,15):
        t = (r>>2)*8 + (r&3)
        e(f'ds_write_b32 v{c}, v{vG+r} offset:{t*512}')
    e(f'''
    ds_write_b128 v{a}, {v(acc+8,4)}
    ds_write_b128 v{a}, {v(acc+12,4)} offset:1024
    s_cmp_ge_u32 s{sW}, 4
    s_cbranch_scc1 L_pads
    s_waitcnt vmcnt(0)
    s_mov_b32 s{sT0}, 0x05040100
    s_mov_b32 s{sT1}, 0x07060302
    ''')
    for i in range(4):
        e(f'v_perm_b32 v{XF+i}, v{vXC+2*i+1}, v{vXC+2*i}, s{sT0}')
        e(f'v_perm_b32 v{XF+4+i}, v{vXC+2*i+1}, v{vXC+2*i}, s{sT1}')
    e(f'''
    v_lshlrev_b32 v{c}, 4, v0
    v_add_u32 v{c}, {XC+512}, v{c}
    ds_write_b128 v{c}, {v(XF,4)}
    ds_write_b128 v{c}, {v(XF+4,4)} offset:{XC_CH}
    s_branch L_pads_done
    L_pads:
    v_mov_b32 v{XF}, 0
    v_mov_b32 v{XF+1}, 0
    v_lshlrev_b32 v{c}, 3, v{vL}
    v_add_u32 v{d}, {XC}, v{c}
    ds_write_b64 v{d}, {v(XF,2)}
    ds_write_b64 v{d}, {v(XF,2)} offset:{XC_CH}
    s_mov_b64 exec, 0xff
    v_add_u32 v{d}, {KREV+4096}, v{c}
    ds_write_b64 v{d}, {v(XF,2)}
    ds_write_b64 v{d}, {v(XF,2)} offset:{KREV_O}
    ds_write_b64 v{d}, {v(XF,2)} offset:{KREV_CH}
    ds_write_b64 v{d}, {v(XF,2)} offset:{KREV_CH+KREV_O}
    s_mov_b64 exec, -1
    L_pads_done:
    s_waitcnt lgkmcnt(0)
    s_barrier
    @stamp B3
    ''')
    GA=100
    e(f'''
    ds_read_b128 {v(acc+8,4)}, v{b}
    ds_read_b128 {v(acc+12,4)}, v{b} offset:1024
    ''')
    for k in range(9):
        e(f'ds_read_b128 {v(GA+4*k,4)}, v{vGI+k}')
    e(f'''
    s_mov_b32 s{sT0}, {f32(0.25*LOG2E)}
    v_and_b32 v{c}, 255, v0
    v_lshlrev_b32 v{c}, 4, v{c}
    s_mul_i32 s{sT1}, s{sCT}, {KREV_CH}
    s_add_u32 s{sT1}, s{sT1}, {KREV}
    v_add_u32 v{c}, s{sT1}, v{c}
    s_waitcnt lgkmcnt(9)
    ''')
    for r in range(8):
        e(f'v_add_f32 v{acc+r}, v{acc+r}, v{acc+8+r}')
        e(f'v_mul_f32 v{acc+r}, s{sT0}, v{acc+r}')
    for r in range(4):
        e(f'v_cvt_pk_bf16_f32 v{vQ+r}, v{acc+2*r}, v{acc+2*r+1}')
    for k in range(9):
        e(f's_waitcnt lgkmcnt({8-k})')
        g=GA+4*k
        e(f'v_add_f32 v{g}, v{g}, v{g+1}\nv_add_f32 v{g+2}, v{g+2}, v{g+3}\nv_add_f32 v{g}, v{g}, v{g+2}')
    for i in range(4):
        e(f'v_cvt_pk_bf16_f32 v{acc+i}, v{GA+8*i}, v{GA+8*i+4}')
        e(f'v_cvt_pk_bf16_f32 v{acc+4+i}, v{GA+8*i+4}, v{GA+8*i+8}')
    e(f'''
    ds_write_b128 v{c}, {v(acc,4)}
    ds_write_b128 v{c}, {v(acc+4,4)} offset:{KREV_O}
    s_waitcnt lgkmcnt(0)
    s_barrier
    @stamp B4
    s_cmp_lt_u32 s{sW}, 4
    s_cbranch_scc1 L_conv
    ''')
    e(f'''
    v_lshlrev_b32 v{a}, 2, v{vL}
    s_mov_b32 s{sCNT}, 0
    s_mov_b32 s{sT0}, 0x01010101
    L_poll:
    buffer_load_dword v{b}, v{a}, {srd(S_DBG)}, 0 offen sc0 sc1
    s_waitcnt vmcnt(0)
    v_cmp_ne_u32 vcc, s{sT0}, v{b}
    s_cbranch_vccz L_polled
    s_sleep 2
    s_add_u32 s{sCNT}, s{sCNT}, 1
    s_cmp_lt_u32 s{sCNT}, 100000
    s_cbranch_scc1 L_poll
    L_polled:
    @stamp polled
    s_and_b32 s{sT0}, s{sW}, 3
    s_lshl_b32 s{sT0}, s{sT0}, 10
    s_mov_b32 s{sCNT}, 0
    L_kvdma:
    s_mov_b32 m0, s{sT0}
    s_add_u32 s{sCNT}, s{sCNT}, 1
    buffer_load_dwordx4 v{vL16}, {srd(S_WS)}, s{sT0} offen sc0 sc1 lds
    s_add_u32 s{sT0}, s{sT0}, 4096
    s_cmp_lt_u32 s{sCNT}, 32
    s_cbranch_scc1 L_kvdma
    @stamp dmaissued
    s_barrier
    s_barrier
    s_waitcnt vmcnt(0)
    s_branch L_att
    ''')
    aA=52; aB=60; CA=64; CB=96; CACC=192
    e(f'''
    L_conv:
    s_lshr_b32 s{sT4}, s{sW}, 1                ; ch
    s_and_b32 s{sT5}, s{sW}, 1                 ; half
    v_lshrrev_b32 v{a}, 1, v{vG4}
    v_lshlrev_b32 v{a}, 4, v{a}
    v_add_u32 v{a}, v{a}, v{vM15}
    v_and_b32 v{b}, 1, v{vG4}
    v_lshlrev_b32 v{c}, 3, v{b}
    v_sub_u32 v{a}, v{a}, v{c}                 ; 16*(g>>1) - 8*(g&1) + j
    v_sub_u32 v{a}, 2047, v{a}                 ; r00
    v_and_b32 v{c}, 1, v{a}
    v_sub_u32 v{a}, v{a}, v{c}
    v_lshlrev_b32 v{a}, 1, v{a}
    v_mul_u32_u24 v{c}, {KREV_O}, v{c}
    v_add_u32 v{a}, v{a}, v{c}
    s_mul_i32 s{sT0}, s{sT4}, {KREV_CH}
    s_add_u32 s{sT0}, s{sT0}, {KREV - 192}
    s_lshl_b32 s{sT1}, s{sT5}, 8               ; 4*half*64
    s_sub_u32 s{sT0}, s{sT0}, s{sT1}
    v_add_u32 v{aA}, s{sT0}, v{a}
    ''')
    for u in range(1,8):
        e(f'v_subrev_u32 v{aA+u}, {512*u}, v{aA}')
    e(f'''
    v_lshrrev_b32 v{a}, 1, v{vG4}
    v_sub_u32 v{a}, v{vM15}, v{a}
    v_lshlrev_b32 v{a}, 5, v{a}
    v_lshl_add_u32 v{a}, v{b}, 4, v{a}         ; (n-(g>>1))*32 + (g&1)*16
    s_mul_i32 s{sT0}, s{sT4}, {XC_CH}
    s_add_u32 s{sT0}, s{sT0}, {XC + 512 - 192}
    s_sub_u32 s{sT0}, s{sT0}, s{sT1}
    v_add_u32 v{aB}, s{sT0}, v{a}
    ''')
    def creads(wq, part):
        st = (wq & 1) * 64
        o = 16*(3-wq)
        for u in part:
            e(f'ds_read2_b32 {v(CA+st+4*u,2)}, v{aA+u} offset0:{o} offset1:{o+1}')
            e(f'ds_read2_b32 {v(CA+st+4*u+2,2)}, v{aA+u} offset0:{o+2} offset1:{o+3}')
            e(f'ds_read_b128 {v(CB+st+4*u,4)}, v{aB} offset:{u*512+(3-wq)*64}')
    creads(0, range(8))
    for wq in range(4):
        st = (wq & 1) * 64
        e('s_waitcnt lgkmcnt(0)')
        lst = [(u, nt) for dd in range(8) for u in range(8) for nt in range(8) if nt - u == dd]
        for idx, (u, nt) in enumerate(lst):
            first = (wq == 0 and u == nt)
            e(f'v_mfma_f32_16x16x32_bf16 {v(CACC+4*nt,4)}, {v(CA+st+4*u,4)}, {v(CB+st+4*(nt-u),4)}, {"0" if first else v(CACC+4*nt,4)}')
            if wq < 3 and idx in (1, 5, 9, 13, 17, 21, 25, 29):
                creads(wq+1, [(idx-1)//4])
    e('@stamp convmfma')
    e(f'''
    s_barrier
    s_cmp_eq_u32 s{sT5}, 0
    s_cbranch_scc1 L_noswap
    s_nop 7
    ''')
    for i in range(16): e(f'v_swap_b32 v{CACC+i}, v{CACC+16+i}')
    e(f'''
    L_noswap:
    s_mul_i32 s{sT0}, s{sT4}, {KREV_CH}
    s_add_u32 s{sT0}, s{sT0}, {KREV}
    s_lshl_b32 s{sT1}, s{sT5}, 12
    s_add_u32 s{sT2}, s{sT0}, s{sT1}
    s_xor_b32 s{sT1}, s{sT1}, 4096
    s_add_u32 s{sT0}, s{sT0}, s{sT1}
    v_add_u32 v{a}, s{sT2}, v{vL16}
    v_add_u32 v{b}, s{sT0}, v{vL16}
    ''')
    for q in range(4):
        e(f'ds_write_b128 v{a}, {v(CACC+16+4*q,4)} offset:{q*1024}')
    e(f'''
    v_lshlrev_b32 v{c}, 5, v{vM15}
    v_lshl_add_u32 v{c}, v{vG4}, 3, v{c}       ; (16n+4g)*2
    s_lshl_b32 s{sT1}, s{sT5}, 11              ; half*4*512
    v_add_u32 v{c}, s{sT1}, v{c}
    s_mul_i32 s{sT0}, s{sT4}, {XC_CH}
    s_add_u32 s{sT0}, s{sT0}, {XC+512}
    v_add_u32 v{d}, s{sT0}, v{c}
    s_add_u32 s{sT0}, s{sD0}, s{sT4}
    s_lshl_b32 s{sT0}, s{sT0}, 12
    s_add_u32 s{sT0}, s{sT0}, {WS_B}
    s_lshl_b32 s{sT1}, s{sT4}, 4
    s_lshr_b32 s{sT1}, s{sDSK}, s{sT1}
    s_lshl_b32 s{sT1}, s{sT1}, 16
    s_mov_b32 s{sT2}, 0xfffefffe
    s_waitcnt lgkmcnt(0)
    s_barrier
    ''')
    XV=64; T=80
    for q in range(4):
        e(f'ds_read_b128 {v(CACC+16+4*q,4)}, v{b} offset:{q*1024}')
        e(f'ds_read_b64 {v(XV+2*q,2)}, v{d} offset:{q*512}')
    for q in range(4):
        y=CACC+4*q
        e(f's_waitcnt lgkmcnt({6-2*q})')
        for r in range(4): e(f'v_add_f32 v{y+r}, v{y+r}, v{y+16+r}')
        for hh in range(2):
            x=XV+2*q+hh
            e(f'''
            v_cvt_pk_bf16_f32 v{T}, v{y+2*hh}, v{y+2*hh+1}
            v_lshlrev_b32 v{T+1}, 16, v{x}
            v_and_b32 v{T+2}, 0xffff0000, v{x}
            v_mul_f32 v{T+1}, s{sT1}, v{T+1}
            v_mul_f32 v{T+2}, s{sT1}, v{T+2}
            v_cvt_pk_bf16_f32 v{T+1}, v{T+1}, v{T+2}
            v_lshlrev_b32 v{T+2}, 16, v{T}
            v_and_b32 v{T}, 0xffff0000, v{T}
            v_lshlrev_b32 v{T+3}, 16, v{T+1}
            v_and_b32 v{T+1}, 0xffff0000, v{T+1}
            v_add_f32 v{T+2}, v{T+2}, v{T+3}
            v_add_f32 v{T}, v{T}, v{T+1}
            v_cvt_pk_bf16_f32 v{x}, v{T+2}, v{T}
            v_pk_min_u16 v{x}, v{x}, s{sT2}
            ''')
        e(f'buffer_store_dwordx2 {v(XV+2*q,2)}, v{c}, {srd(S_WS)}, s{sT0} offen offset:{q*512} sc0 sc1')
    NM=8; S0=24; S1=52; P=68; O=76; KF=92; VF=100; ad=42; WOR=128; BV=160; GV=168; mx=43
    e(f'''
    L_att:
    @stamp preatt
    s_barrier
    @stamp att0
    s_mov_b32 s{sFB}, 0
    s_mov_b32 s{sM0}, 0xffff
    s_mov_b32 s{sM0+1}, 0xffff
    ds_read_b128 {v(KF,4)}, v{vL16}
    v_and_b32 v{S1}, 27, v{vL}
    v_cmp_eq_u32 vcc, 16, v{S1}
    v_mov_b32 v{S1+1}, 0x3f803f80
    v_cndmask_b32 v{VF}, 0, v{S1+1}, vcc
    ''')
    for i in range(1,16): e(f'v_mov_b32 v{VF+i}, v{VF}')
    e(f'''
    s_waitcnt lgkmcnt(0)
    v_mfma_f32_32x32x16_bf16 {v(S0,16)}, {v(KF,4)}, {v(vQ,4)}, 0
    v_max3_f32 v{mx}, v{S0}, v{S0+1}, v{S0+2}
    ''')
    for i in range(3,15,2): e(f'v_max3_f32 v{mx}, v{mx}, v{S0+i}, v{S0+i+1}')
    e(f'''
    v_max_f32 v{mx}, v{mx}, v{S0+15}
    L_setm:
    v_mov_b32 v{S1}, v{mx}
    v_permlane32_swap_b32 v{S1}, v{mx}
    v_max_f32 v{mx}, v{mx}, v{S1}
    ''')
    for i in range(16): e(f'v_sub_f32 v{NM+i}, 0, v{mx}')
    for i in range(16): e(f'v_mov_b32 v{O+i}, 0')
    for i in range(4): e(f'v_mov_b32 v{P+4+i}, 0')
    e(f'''
    v_mov_b32 v{ad}, v{vL16}
    ds_read_b128 {v(KF,4)}, v{ad}
    ds_read_b128 {v(KF+4,4)}, v{ad} offset:2048
    s_mov_b64 exec, s[{sM0}:{sM0+1}]
    ds_read_b128 {v(VF,4)}, v{ad} offset:1024
    ds_read_b128 {v(VF+4,4)}, v{ad} offset:1280
    ds_read_b128 {v(VF+12,4)}, v{ad} offset:1280
    s_mov_b64 exec, -1
    s_mov_b32 s{sCNT}, 0
    s_waitcnt lgkmcnt(4)
    v_mfma_f32_32x32x16_bf16 {v(S0,16)}, {v(KF,4)}, {v(vQ,4)}, {v(NM,16)}
    s_waitcnt lgkmcnt(0)
    s_nop 7
    .p2align 6
    L_loop:
    ''')
    def step(tt):
        par = tt & 1
        Sc = S0 if par == 0 else S1
        Sn = S1 if par == 0 else S0
        Vc = VF + 8*par; Vn = VF + 8*(1-par)
        ex = lambda i: e(f'v_exp_f32 v{Sc+i}, v{Sc+i}')
        cv = lambda i: e(f'v_cvt_pk_bf16_f32 v{P+i}, v{Sc+2*i}, v{Sc+2*i+1}')
        e(f's_waitcnt lgkmcnt(2)')
        e(f'v_mfma_f32_32x32x16_bf16 {v(Sn,16)}, {v(KF+4*(1-par),4)}, {v(vQ,4)}, {v(NM,16)}')
        e(f'ds_read_b128 {v(KF+4*par,4)}, v{ad} offset:{(tt+2)*2048}')
        ex(0); ex(1); ex(2); ex(3)
        e(f'v_mfma_f32_32x32x16_bf16 {v(O,16)}, {v(Vn+4,4)}, {v(P+4,4)}, {v(O,16)}')
        e(f's_mov_b64 exec, s[{sM0}:{sM0+1}]')
        e(f'ds_read_b128 {v(Vn,4)}, v{ad} offset:{(tt+1)*2048+1024}')
        e(f'ds_read_b128 {v(Vn+4,4)}, v{ad} offset:{(tt+1)*2048+1280}')
        e(f's_mov_b64 exec, -1')
        cv(0); ex(4); ex(5); cv(1); ex(6); ex(7); cv(2); ex(8); cv(3); ex(9); ex(10)
        e(f's_waitcnt lgkmcnt(3)')
        e(f'v_mfma_f32_32x32x16_bf16 {v(O,16)}, {v(Vc,4)}, {v(P,4)}, {v(O,16)}')
        ex(11); cv(4); ex(12); ex(13); cv(5); ex(14); ex(15); cv(6)
        if tt == 3:
            e(f'v_add_u32 v{ad}, 8192, v{ad}')
            e(f's_add_u32 s{sCNT}, s{sCNT}, 1')
        else:
            e('s_nop 0')
        cv(7)
    for tt in range(4): step(tt)
    e(f'''
    s_cmp_eq_u32 s{sCNT}, 8
    s_cbranch_scc1 L_mid
    L_mid_ret:
    s_cmp_lt_u32 s{sCNT}, 16
    s_cbranch_scc1 L_loop
    v_mfma_f32_32x32x16_bf16 {v(O,16)}, {v(VF+12,4)}, {v(P+4,4)}, {v(O,16)}
    s_mov_b32 s{sT0}, {f32(2.0**40)}
    s_waitcnt lgkmcnt(0)
    s_nop 9
    v_rcp_f32 v{S0}, v{O+8}
    v_cmp_nlt_f32 vcc, v{O+8}, s{sT0}
    ''')
    for i in range(8): e(f'v_mul_f32 v{O+i}, v{O+i}, v{S0}')
    e(f'''
    v_max3_f32 v{S0+1}, |v{O}|, |v{O+1}|, |v{O+2}|
    v_add_f32 v{S0+2}, v{O+3}, v{O+4}
    v_add_f32 v{S0+3}, v{O+5}, v{O+6}
    v_add_f32 v{S0+2}, v{S0+2}, v{O+7}
    v_add_f32 v{S0+3}, v{S0+3}, v{O}
    v_add_f32 v{S0+2}, v{S0+2}, v{O+1}
    v_add_f32 v{S0+3}, v{S0+3}, v{O+2}
    v_add_f32 v{S0+2}, v{S0+2}, v{S0+3}
    v_mov_b32 v{S0+4}, 0x207
    v_cmp_class_f32 s[{sM1}:{sM1+1}], v{S0+2}, v{S0+4}
    s_or_b64 vcc, vcc, s[{sM1}:{sM1+1}]
    s_cbranch_vccz L_att_ok
    s_cmp_lg_u32 s{sFB}, 0
    s_cbranch_scc1 L_att_ok
    s_mov_b32 s{sFB}, 1
    v_mov_b32 v{ad}, v{vL16}
    v_mov_b32 v{mx}, 0xff7fffff
    s_mov_b32 s{sCNT}, 0
    L_maxloop:
    ds_read_b128 {v(KF,4)}, v{ad}
    v_add_u32 v{ad}, 2048, v{ad}
    s_waitcnt lgkmcnt(0)
    v_mfma_f32_32x32x16_bf16 {v(S0,16)}, {v(KF,4)}, {v(vQ,4)}, 0
    ''')
    for i in range(0,16,2): e(f'v_max3_f32 v{mx}, v{mx}, v{S0+i}, v{S0+i+1}')
    e(f'''
    s_add_u32 s{sCNT}, s{sCNT}, 1
    s_cmp_lt_u32 s{sCNT}, 64
    s_cbranch_scc1 L_maxloop
    s_branch L_setm
    ''')
    bA=44; gA=45
    e(f'''
    L_mid:
    s_cmp_lg_u32 s{sFB}, 0
    s_cbranch_scc1 L_mid_ret
    s_lshl_b32 s{sT0}, s{sW}, 16
    ''')
    for j in range(8):
        e(f'buffer_load_dwordx4 {v(WOR+4*j,4)}, v{vWS}, {srd(S_WO)}, s{sT0} offen')
        if j < 7: e(f's_add_u32 s{sT0}, s{sT0}, 8192')
    e(f'''
    s_lshl_b32 s{sT0}, s{sRB}, 6
    s_lshl_b32 s{sT1}, s{sRT}, 5
    s_add_u32 s{sT0}, s{sT0}, s{sT1}
    v_and_b32 v{gA}, 31, v{vL}
    v_add_u32 v{gA}, s{sT0}, v{gA}             ; row
    s_lshl_b32 s{sT0}, s{sCB}, 6
    s_lshl_b32 s{sT1}, s{sCT}, 5
    s_add_u32 s{sT0}, s{sT0}, s{sT1}
    s_lshl_b32 s{sT1}, s{sKH}, 4
    s_add_u32 s{sT0}, s{sT0}, s{sT1}
    v_lshrrev_b32 v{bA}, 5, v{vL}
    v_lshlrev_b32 v{bA}, 2, v{bA}
    v_add_u32 v{bA}, s{sT0}, v{bA}
    v_lshlrev_b32 v{GV+1}, 10, v{gA}
    v_lshl_add_u32 v{GV+1}, v{bA}, 1, v{GV+1}
    v_lshlrev_b32 v{bA}, 12, v{bA}
    v_lshl_add_u32 v{bA}, v{gA}, 1, v{bA}
    v_add_u32 v{bA}, {WS_B}, v{bA}
    v_lshlrev_b32 v{gA}, 2, v{gA}
    s_mov_b32 s{sT0}, {WS_G}
    buffer_load_dword v{GV}, v{gA}, {srd(S_WS)}, s{sT0} offen sc0 sc1
    s_branch L_mid_ret
    ''')
    e(f'''
    L_att_ok:
    @stamp att1
    s_mov_b32 s{sT0}, 0xfffffffe
    ''')
    for i in range(4):
        e(f'v_cvt_pk_bf16_f32 v{P+i}, v{O+2*i}, v{O+2*i+1}')
        e(f'v_min_u32 v{P+i}, s{sT0}, v{P+i}')
    e(f'''
    buffer_store_dwordx4 {v(P,4)}, v{vL16}, {srd(S_WS)}, s{sOB} offen sc0 sc1
    s_mov_b32 s{sCNT}, 0
    L_bpoll:
    ''')
    for i in range(8):
        col = (i>>2)*8 + (i&3)
        e(f's_mov_b32 s{sT0}, {col*4096}')
        e(f'buffer_load_ushort v{BV+i}, v{bA}, {srd(S_WS)}, s{sT0} offen sc0 sc1')
    e(f'''
    s_waitcnt vmcnt(0)
    v_max3_u32 v{S0}, v{BV}, v{BV+1}, v{BV+2}
    v_max3_u32 v{S0}, v{S0}, v{BV+3}, v{BV+4}
    v_max3_u32 v{S0}, v{S0}, v{BV+5}, v{BV+6}
    v_max_u32 v{S0}, v{S0}, v{BV+7}
    v_cmp_eq_u32 vcc, 0xffff, v{S0}
    s_cbranch_vccz L_bok
    s_sleep 2
    s_add_u32 s{sCNT}, s{sCNT}, 1
    s_cmp_lt_u32 s{sCNT}, 100000
    s_cbranch_scc1 L_bpoll
    L_bok:
    @stamp bok
    s_barrier
    s_lshl_b32 s{sT0}, s{sW}, 13
    v_add_u32 v{S0}, s{sT0}, v{vL16}
    ''')
    for j in range(8):
        e(f'ds_write_b128 v{S0}, {v(WOR+4*j,4)} offset:{j*1024}')
    e(f'''
    v_sub_f32 v{S0+1}, 1.0, v{GV}
    v_cvt_pk_bf16_f32 v{S0+1}, v{S0+1}, v{S0+1}
    v_lshlrev_b32 v{S0+1}, 16, v{S0+1}
    ''')
    for i in range(8):
        e(f'v_lshlrev_b32 v{BV+i}, 16, v{BV+i}')
        e(f'v_mul_f32 v{BV+i}, v{BV+i}, v{S0+1}')
    for i in range(4):
        e(f'v_cvt_pk_bf16_f32 v{S0+2}, v{BV+2*i}, v{BV+2*i+1}')
        e(f'v_lshlrev_b32 v{BV+2*i}, 16, v{S0+2}')
        e(f'v_and_b32 v{BV+2*i+1}, 0xffff0000, v{S0+2}')
    OF=172; WF2=52; acc2=8
    e(f'''
    s_lshl_b32 s{sT0}, s{sRB}, 1
    s_add_u32 s{sT0}, s{sT0}, s{sRT}
    s_lshl_b32 s{sT0}, s{sT0}, 15
    s_lshl_b32 s{sT1}, s{sKH}, 14
    s_add_u32 s{sT0}, s{sT0}, s{sT1}
    s_add_u32 s{sT2}, s{sT0}, {WS_O}
    s_lshl_b32 s{sT0}, s{sKH}, 15
    v_lshrrev_b32 v{S0+2}, 5, v{vL}
    v_lshl_add_u32 v{ad}, v{S0+2}, 9, v{vTR}
    v_add_u32 v{ad}, s{sT0}, v{ad}
    s_mov_b32 s{sCNT}, 0
    s_waitcnt lgkmcnt(0)
    s_barrier
    ''')
    for ks in range(16):
        e(f'ds_read_b64_tr_b16 {v(WF2+4*ks,2)}, v{ad} offset:{ks*2048}')
        e(f'ds_read_b64_tr_b16 {v(WF2+4*ks+2,2)}, v{ad} offset:{ks*2048+1024}')
    e('L_opoll:')
    e(f's_mov_b32 s{sT0}, s{sT2}')
    for ks in range(16):
        e(f'buffer_load_dwordx4 {v(OF+4*ks,4)}, v{vL16}, {srd(S_WS)}, s{sT0} offen offset:{(ks%4)*1024} sc0 sc1')
        if ks % 4 == 3 and ks < 15: e(f's_add_u32 s{sT0}, s{sT0}, 4096')
    e(f's_waitcnt vmcnt(0)')
    e(f'v_max3_u32 v{S0}, v{OF}, v{OF+1}, v{OF+2}')
    for i in range(3, 63, 2): e(f'v_max3_u32 v{S0}, v{S0}, v{OF+i}, v{OF+i+1}')
    e(f'''
    v_max_u32 v{S0}, v{S0}, v{OF+63}
    v_cmp_eq_u32 vcc, -1, v{S0}
    s_cbranch_vccz L_ook
    s_sleep 1
    s_add_u32 s{sCNT}, s{sCNT}, 1
    s_cmp_lt_u32 s{sCNT}, 100000
    s_cbranch_scc1 L_opoll
    L_ook:
    @stamp ook
    s_waitcnt lgkmcnt(0)
    ''')
    for ks in range(16):
        e(f'v_mfma_f32_32x32x16_bf16 {v(acc2,16)}, {v(WF2+4*ks,4)}, {v(OF+4*ks,4)}, {"0" if ks==0 else v(acc2,16)}')
    e(f'''
    s_lshl_b32 s{sT0}, s{sW}, 11
    s_add_u32 s{sT0}, s{sT0}, {R_W}
    v_add_u32 v{S0}, s{sT0}, v{vL16}
    s_xor_b32 s{sT0}, s{sT0}, 4096
    v_add_u32 v{S0+1}, s{sT0}, v{vL16}
    ds_write_b128 v{S0}, {v(acc2+8,4)}
    ds_write_b128 v{S0}, {v(acc2+12,4)} offset:1024
    s_waitcnt lgkmcnt(0)
    s_barrier
    ds_read_b128 {v(acc2+8,4)}, v{S0+1}
    ds_read_b128 {v(acc2+12,4)}, v{S0+1} offset:1024
    s_waitcnt lgkmcnt(0)
    ''')
    T=S0+2
    for i in range(4):
        x=acc2+2*i
        e(f'''
        v_add_f32 v{x}, v{x}, v{x+8}
        v_add_f32 v{x+1}, v{x+1}, v{x+9}
        v_cvt_pk_bf16_f32 v{T}, v{x}, v{x+1}
        v_lshlrev_b32 v{x}, 16, v{T}
        v_and_b32 v{x+1}, 0xffff0000, v{T}
        v_mul_f32 v{x}, v{x}, v{GV}
        v_mul_f32 v{x+1}, v{x+1}, v{GV}
        v_cvt_pk_bf16_f32 v{T}, v{x}, v{x+1}
        v_lshlrev_b32 v{x}, 16, v{T}
        v_and_b32 v{x+1}, 0xffff0000, v{T}
        v_add_f32 v{x}, v{x}, v{BV+2*i}
        v_add_f32 v{x+1}, v{x+1}, v{BV+2*i+1}
        v_cvt_pk_bf16_f32 v{T+2+i}, v{x}, v{x+1}
        ''')
    e(f'''
    buffer_store_dwordx2 {v(T+2,2)}, v{GV+1}, {srd(S_OUT)}, 0 offen
    buffer_store_dwordx2 {v(T+4,2)}, v{GV+1}, {srd(S_OUT)}, 0 offen offset:16
    @stamp end
    ''')
    if DIAG == 2:
        e(f'''
        s_cmp_lg_u32 s2, 37
        s_cbranch_scc1 L_end
        s_and_b32 s{sT0}, s{sW}, 3
        s_cmp_lg_u32 s{sT0}, 0
        s_cbranch_scc1 L_end
        v_readlane_b32 s94, v255, 0
        s_lshr_b32 s{sT0}, s{sW}, 1
        v_subrev_u32 v255, s94, v255
        v_lshrrev_b32 v255, 2, v255
        v_lshlrev_b32 v254, 2, v{vL}
        v_subrev_u32 v254, 8, v254
        v_add_u32 v254, s{sT0}, v254
        s_mov_b64 exec, 0x3fffc
        buffer_store_short v255, v254, {srd(S_DBG)}, 0 offen sc0 sc1
        ''')
    elif DIAG:
        e(f'''
        s_memrealtime s[94:95]
        s_waitcnt lgkmcnt(0)
        v_writelane_b32 v255, s94, 63
        s_getreg_b32 s94, hwreg(HW_REG_XCC_ID)
        v_writelane_b32 v255, s94, 62
        v_writelane_b32 v255, s{sCNT}, 61
        s_lshl_b32 s{sT0}, s2, 11
        s_lshl_b32 s{sT1}, s{sW}, 8
        s_add_u32 s{sT0}, s{sT0}, s{sT1}
        s_add_u32 s{sT0}, s{sT0}, 0x600000
        v_lshlrev_b32 v254, 2, v{vL}
        buffer_store_dword v255, v254, {srd(S_WS)}, s{sT0} offen
        ''')
    e('''
    L_end:
    s_endpgm
    ''')
    return e.text()

HEAD = open('cdna_kernels/%s.s.ref' % NAME).read().split('; Override launch geometry')[0]
def full():
    body = gen()
    s = HEAD
    s += f'; @launch grid=(256,1,1) block=(512,1,1) lds={LDS_BYTES}\n'
    s += f'''.amdgcn_target "amdgcn-amd-amdhsa--gfx950"
.text
.globl {NAME}_kernel
.p2align 8
.type {NAME}_kernel,@function
{NAME}_kernel:
{body}
.section .rodata,"a"
.p2align 6
.amdhsa_kernel {NAME}_kernel
  .amdhsa_next_free_vgpr 256
  .amdhsa_next_free_sgpr 102
  .amdhsa_accum_offset 256
  .amdhsa_group_segment_fixed_size 0
  .amdhsa_kernarg_size 128
  .amdhsa_user_sgpr_count 2
  .amdhsa_user_sgpr_kernarg_segment_ptr 1
  .amdhsa_system_sgpr_workgroup_id_x 1
.end_amdhsa_kernel
'''
    return s
if __name__ == '__main__':
    if len(sys.argv) > 1 and sys.argv[1].startswith('diag'):
        DIAG = 2 if sys.argv[1] == 'diag2' else 1
        open('dev/%s.s' % sys.argv[1], 'w').write(full())
        import json; json.dump(gen.e.stamps, open('diag.json','w'))
    else:
        out = sys.argv[1] if len(sys.argv) > 1 else f'cdna_kernels/{NAME}.s'
        open(out, 'w').write(full())
```

```python
import re

TRANS = ('v_exp_f32','v_log_f32','v_rcp_f32','v_rsq_f32','v_sqrt_f32','v_sin_f32','v_cos_f32','v_exp_f16','v_rcp_iflag_f32')

def parse_regs(tok):
    tok = tok.strip()
    tok = re.sub(r'^-', '', tok)
    m = re.match(r'^abs\((.*)\)$', tok)
    if m: tok = m.group(1)
    m = re.match(r'^\|(.*)\|$', tok)
    if m: tok = m.group(1)
    m = re.match(r'^([vsa])(\d+)$', tok)
    if m: return {(m.group(1), int(m.group(2)))}
    m = re.match(r'^([vsa])\[(\d+):(\d+)\]$', tok)
    if m: return {(m.group(1), i) for i in range(int(m.group(2)), int(m.group(3))+1)}
    if tok in ('vcc','vcc_lo','vcc_hi'): return {('vcc',0)}
    if tok in ('exec','exec_lo','exec_hi'): return {('exec',0)}
    if tok == 'm0': return {('m0',0)}
    return set()

class Ins:
    def __init__(self, text):
        self.text = text
        t = text.split(';')[0].strip()
        self.is_label = t.endswith(':')
        self.is_dir = t.startswith('.')
        self.op = ''
        self.w = set(); self.r = set()
        self.kind = 'other'
        self.srcA=set(); self.srcB=set(); self.srcC=set()
        if self.is_label or self.is_dir or not t:
            return
        parts = t.split(None, 1)
        op = parts[0]; self.op = op
        rest = parts[1] if len(parts) > 1 else ''
        ops = []; depth = 0; cur = ''
        for ch in rest:
            if ch in '[(': depth += 1
            if ch in '])': depth -= 1
            if ch == ',' and depth == 0:
                ops.append(cur); cur = ''
            else: cur += ch
        ops.append(cur)
        ops = [o.strip() for o in ops]
        mods = ''
        if ops:
            sp = ops[-1].split(None, 1)
            if len(sp) > 1:
                ops[-1] = sp[0]; mods = sp[1]
        self.mods = mods
        R = [parse_regs(o) for o in ops]
        self.ops = ops
        base = re.sub(r'_(e32|e64|dpp|sdwa)$', '', op)
        self.base = base
        self.dpp = op.endswith('_dpp')
        if op.startswith('v_mfma') or op.startswith('v_smfmac'):
            self.kind = 'mfma'
            self.w = R[0]; self.srcA = R[1]; self.srcB = R[2]; self.srcC = R[3]
            self.r = R[1] | R[2] | R[3]
            self.passes = 8 if '32x32' in op else 4
        elif op.startswith('v_cmp'):
            self.kind = 'valu'; self.w = set(R[0]); self.r = set().union(*R[1:])
            if op.startswith('v_cmpx'): self.w |= {('exec',0)}
        elif base in ('v_readfirstlane_b32','v_readlane_b32'):
            self.kind = 'valu'; self.w = R[0]; self.r = set().union(*R[1:])
        elif base in ('v_permlane32_swap_b32','v_permlane16_swap_b32','v_swap_b32'):
            self.kind = 'valu'; self.w = R[0] | R[1]; self.r = R[0] | R[1]
        elif base in ('v_add_co_u32','v_sub_co_u32','v_addc_co_u32','v_subb_co_u32'):
            self.kind = 'valu'; self.w = R[0] | R[1]; self.r = set().union(*R[2:])
        elif op.startswith('v_'):
            self.kind = 'valu'; self.w = R[0]; self.r = set().union(*R[1:]) if len(R) > 1 else set()
            if base in ('v_fmac_f32','v_dot2c_f32_bf16','v_writelane_b32') or 'UNUSED_PRESERVE' in mods or self.dpp:
                self.r |= R[0]
        elif op.startswith('ds_'):
            self.kind = 'ds'
            if op.startswith('ds_read') or op.startswith('ds_bpermute') or op.startswith('ds_swizzle') or '_rtn' in op:
                self.w = R[0]; self.r = set().union(*R[1:])
                if 'd16' in op: self.r |= R[0]
            else:
                self.r = set().union(*R)
        elif op.startswith('buffer_') or op.startswith('global_'):
            self.kind = 'vmem'
            self.lds = bool(re.search(r'\blds\b', mods)) or 'load_lds' in op
            if 'load' in op and not self.lds:
                self.w = R[0]; self.r = set().union(*R[1:])
                if 'd16' in op: self.r |= R[0]
            else:
                self.r = set().union(*R) if R else set()
            if self.lds: self.r |= {('m0',0)}
            self.wide_store = set()
            if 'store' in op and ('x4' in op or 'x3' in op):
                self.wide_store = R[0] if op.startswith('buffer_') else R[1]
        elif op.startswith('s_'):
            self.kind = 'salu'
            if op in ('s_nop','s_waitcnt','s_barrier','s_endpgm','s_sleep','s_setprio') or op.startswith('s_cbranch') or op == 's_branch' or op.startswith('s_cmp'):
                self.r = set().union(*R) if R else set()
            else:
                self.w = R[0]; self.r = set().union(*R[1:]) if len(R) > 1 else set()
                if 'saveexec' in op: self.w = self.w | {('exec',0)}
    def states(self):
        if self.is_label or self.is_dir or not self.op: return 0
        if self.op == 's_nop': return int(self.ops[0], 0) + 1
        return 1

def need(prod, cons):
    n = 0
    isv = lambda s: {x for x in s if x[0] in 'va' and len(x[0]) == 1}
    iss = lambda s: {x for x in s if x[0] in ('s','vcc')}
    if prod.kind == 'valu':
        pw = isv(prod.w)
        if cons.kind == 'mfma' and pw & cons.r: n = max(n, 2)
        if cons.kind == 'valu':
            if prod.base in TRANS and cons.base not in TRANS and pw & (cons.r): n = max(n, 1)
            if cons.base in ('v_readfirstlane_b32','v_readlane_b32') and pw & cons.r: n = max(n, 1)
            if cons.base.startswith('v_permlane') and pw & cons.r: n = max(n, 2)
            if cons.dpp and pw & cons.r: n = max(n, 2)
            if ('sdwa' in prod.op or 'op_sel' in getattr(prod,'mods','')) and not prod.base.startswith('v_pk_') and pw & (cons.r | cons.w): n = max(n, 1)
        if prod.base in TRANS and cons.kind in ('ds','vmem') and pw & cons.r: n = max(n, 1)
        sw = iss(prod.w)
        if sw:
            if cons.kind == 'valu' and sw & cons.r:
                n = max(n, 4 if cons.base in ('v_readlane_b32','v_writelane_b32') else 2)
            if cons.kind == 'valu' and cons.base in ('v_cndmask_b32','v_addc_co_u32') and ('vcc',0) in sw and ('vcc',0) in cons.r: n = max(n, 2)
            if cons.kind == 'vmem' and sw & cons.r: n = max(n, 5)
            if cons.kind == 'salu' and sw & cons.r: n = max(n, 1)
            if cons.op in ('s_cbranch_vccz','s_cbranch_vccnz') and ('vcc',0) in sw: n = max(n, 1)
        if ('exec',0) in prod.w:
            if cons.kind == 'mfma': n = max(n, 4)
            if cons.kind == 'valu' and (cons.dpp): n = max(n, 5)
            if cons.kind == 'valu' and (cons.base.startswith('v_permlane') or cons.base.startswith('v_read')): n = max(n, 4)
    if prod.kind == 'mfma':
        p = prod.passes
        if cons.kind == 'mfma':
            if prod.w & (cons.srcA | cons.srcB): n = max(n, 8 if p == 4 else 12)
            if prod.w & cons.srcC:
                if not (prod.w == cons.srcC and p == cons.passes): n = max(n, 6 if p == 4 else 10)
            elif prod.w & cons.w: n = max(n, 6 if p == 4 else 10)
        elif cons.kind in ('valu','ds','vmem'):
            if prod.w & (cons.r | cons.w): n = max(n, 8 if p == 4 else 12)
            if cons.kind == 'valu' and prod.srcC & cons.w: n = max(n, 3 if p == 4 else 7)
            if cons.kind in ('ds','vmem') and prod.srcC & cons.w: n = max(n, 3 if p == 4 else 7)
    if prod.kind == 'salu':
        if ('m0',0) in prod.w and cons.kind == 'vmem' and getattr(cons,'lds',False): n = max(n, 1)
    if prod.kind == 'vmem' and getattr(prod,'wide_store',None):
        if prod.wide_store & cons.w: n = max(n, 2 if cons.kind in ('valu','mfma') else 1)
    return n

class Asm:
    def __init__(self, diag=False):
        self.ins = []
        self.diag = diag
        self.stamps = []
    def __call__(self, text):
        for line in text.split('\n'):
            line = line.strip()
            if line.startswith('@rt'):
                if self.diag:
                    for t in ('s_memrealtime s[94:95]', 's_waitcnt lgkmcnt(0)', f'v_writelane_b32 v167, s94, {line.split()[1]}'):
                        self.ins.append(Ins(t))
                continue
            if line.startswith('@stamp'):
                if self.diag:
                    nm = line.split()[1]
                    if nm not in self.stamps: self.stamps.append(nm)
                    i = self.stamps.index(nm)
                    for t in ('s_memtime s[94:95]', 's_waitcnt lgkmcnt(0)', f'v_writelane_b32 v167, s94, {i}'):
                        self.ins.append(Ins(t))
                continue
            if line: self.ins.append(Ins(line))
    def label(self, name): self(f'{name}:')
    def finalize(self, window=24):
        out = []
        nins = 0
        for I in self.ins:
            if I.op:
                dist = 0; req = 0
                for P in reversed(out[-window*2:]):
                    if P.op:
                        k = need(P, I)
                        if k - dist > req: req = k - dist
                        dist += P.states()
                        if P.op in ('s_branch','s_endpgm','s_setpc_b64'): break
                        if dist > 20: break
                while req > 0:
                    k = min(req, 16)
                    out.append(Ins(f's_nop {k-1}')); req -= k; nins += 1
            out.append(I)
        self.out = out
        return out
    def text(self):
        s = ''
        for I in self.finalize():
            s += (I.text if (I.is_label or I.is_dir) else '    ' + I.text) + '\n'
        return s
```

```python
import sys, struct, math
from asmlib import Asm

NAME = 'gated_mix__grouped_kv_mqa__ssm_conv_s4d__prompt'
def f32(x): return '0x%08x' % struct.unpack('<I', struct.pack('<f', x))[0]
def f32v(x): return struct.unpack('<f', struct.pack('<f', x))[0]

WS_KV = 0x0
WS_G  = 0x20000
WS_F1 = 0x30000
WS_F2 = 0x30400
WS_GEN = 0x30800
WS_O  = 0x100000
WS_B  = 0x400000
WS_XT = 0x600000
WS_DIAG = 0x800000
WS_SIZE = 0x900000
POOL = 131072
PA = POOL; KREV = PA; KREV_CH = 8320; KREV_O = 4160
PB = POOL + 16640; GW = 3712
XC = PB; XC_CH = 4608
PC = POOL + 31488
PG = PC + 256
LDS_BYTES = 163840
C_ISS,C_T0,C_T1,C_Q0,C_Q1,C_G,C_KVW,C_KREV,C_ST,C_KVOK,C_KISS = range(11)
C_XT=11; C_CR=13; C_CW=15; C_CONV=17; C_ATT=18; C_KV=24; C_O=32

P_X=4; P_WQ=6; P_WK=8; P_WV=10; P_WO=12; P_LAR=16; P_AIM=18; P_CR=20; P_CI=22; P_LDT=24; P_DSK=26; P_GATE=28; P_OUT=30; P_DBG=32; P_WS=34
S_X=36; S_WQ=40; S_WKV=44; S_WS=48; S_OUT=52; S_GATE=56; S_DBG=60; S_WO=64
sW=68; sRB=69; sCB=70; sD0=71; sLDT=72; sDSK=73; sT0=74; sT1=75; sT2=76; sT3=77; sRT=78; sHD=79; sM=80; sCNT=81; sFB=82; sTO=83
sM0=84; sM1=86
sOB=88; sT4=89; sT5=90; sSC=91; sSCI=92; sWT=93
sCH=96; sHF=97; sKAP=98; sNON=99; sPOS=100; sXCD=101

def srd(n): return f's[{n}:{n+3}]'
def sp(n): return f's[{n}:{n+1}]'
def v(n, k=1): return f'v{n}' if k == 1 else f'v[{n}:{n+k-1}]'

LOG2E = 1.4426950408889634
L2E_HI = f32v(LOG2E); L2E_LO = LOG2E - L2E_HI
INV2PI = 1.0/(2*math.pi); I2P_HI = f32v(INV2PI); I2P_LO = INV2PI - I2P_HI

DIAG = False
def gen():
    e = Asm(DIAG)
    gen.e = e
    vL=1; vL16=2; vC=3; vOne=166; vWT=165
    uid = [0]
    def wait(c, target, addr=vC, sleep=1):
        uid[0] += 1; u = uid[0]
        e(f'''
        L_wt{u}:
        ds_read_b32 v{vWT}, v{addr} offset:{4*c}
        s_waitcnt lgkmcnt(0)
        v_readfirstlane_b32 s{sWT}, v{vWT}
        s_cmp_ge_u32 s{sWT}, {target}
        s_cbranch_scc1 L_wd{u}
        s_sleep {sleep}
        s_sub_u32 s{sTO}, s{sTO}, 1
        s_cbranch_scc0 L_wt{u}
        s_mov_b32 s{sTO}, 0
        L_wd{u}:
        ''')
    def signal(c, addr=vC):
        e(f'''
        s_mov_b64 exec, 1
        ds_add_u32 v{addr}, v{vOne} offset:{4*c}
        s_mov_b64 exec, -1
        ''')
    def mk(S, P, nbytes):
        e(f'''
        s_mov_b32 s{S}, s{P}
        s_and_b32 s{S+1}, s{P+1}, 0xffff
        s_mov_b32 s{S+2}, {nbytes}
        s_mov_b32 s{S+3}, 0x00020000
        ''')
    def finish():
        if DIAG == 1:
            e(f'''
            @rt 63
            s_getreg_b32 s94, hwreg(HW_REG_XCC_ID)
            v_writelane_b32 v167, s94, 62
            v_writelane_b32 v167, s{sTO}, 61
            s_mul_i32 s{sT0}, s2, 3072
            s_lshl_b32 s{sT1}, s{sW}, 8
            s_add_u32 s{sT0}, s{sT0}, s{sT1}
            s_add_u32 s{sT0}, s{sT0}, {WS_DIAG}
            v_lshlrev_b32 v{vWT}, 2, v{vL}
            buffer_store_dword v167, v{vWT}, {srd(S_WS)}, s{sT0} offen
            ''')
        e('s_endpgm')
    vM15=4; vG4=5; a=6; b=7; c=8; d=9
    e(f'''
    s_cmp_ge_u32 s2, 256
    s_cbranch_scc1 L_end
    s_load_dwordx16 s[4:19], s[0:1], 0
    s_load_dwordx16 s[20:35], s[0:1], 64
    @stamp start
    @rt 60
    v_and_b32 v{vL}, 63, v0
    v_lshrrev_b32 v{a}, 6, v0
    v_lshlrev_b32 v{vL16}, 4, v{vL}
    v_readfirstlane_b32 s{sW}, v{a}
    v_mov_b32 v{vC}, {PC}
    v_lshl_add_u32 v{a}, v{vL}, 2, v{vC}
    v_mov_b32 v{b}, 0
    ds_write_b32 v{a}, v{b}
    v_mov_b32 v{vOne}, 1
    s_mov_b32 s{sTO}, 0x100000
    s_and_b32 s{sT0}, s2, 7
    s_lshr_b32 s{sT1}, s2, 3
    s_lshr_b32 s{sT2}, s{sT1}, 3
    s_lshl_b32 s{sRB}, s{sT0}, 2
    s_add_u32 s{sRB}, s{sRB}, s{sT2}
    s_and_b32 s{sCB}, s{sT1}, 7
    s_lshl_b32 s{sD0}, s{sT0}, 6
    s_lshl_b32 s{sT1}, s{sT1}, 1
    s_add_u32 s{sD0}, s{sD0}, s{sT1}
    s_lshr_b32 s{sKAP}, s{sCB}, 2
    s_mov_b32 s{sXCD}, s{sT0}
    v_and_b32 v{vM15}, 15, v{vL}
    v_lshrrev_b32 v{vG4}, 4, v{vL}
    s_waitcnt lgkmcnt(0)
    s_barrier
    ''')
    mk(S_X, P_X, 2097152)
    mk(S_WS, P_WS, WS_SIZE)
    mk(S_WQ, P_WQ, 524288)
    mk(S_GATE, P_GATE, 1024)
    e(f'''
    s_bitcmp1_b32 s{sCB}, 0
    s_cselect_b32 s{S_WKV}, s{P_WV}, s{P_WK}
    s_cselect_b32 s{S_WKV+1}, s{P_WV+1}, s{P_WK+1}
    s_and_b32 s{S_WKV+1}, s{S_WKV+1}, 0xffff
    s_mov_b32 s{S_WKV+2}, 16384
    s_mov_b32 s{S_WKV+3}, 0x00020000
    s_lshl_b32 s{sT4}, s{sD0}, 1
    s_load_dword s{sLDT}, {sp(P_LDT)}, s{sT4}
    s_load_dword s{sDSK}, {sp(P_DSK)}, s{sT4}
    s_cmp_ge_u32 s{sW}, 4
    s_cbranch_scc1 L_main
    s_setprio 3
    v_mov_b32 v11, {WS_GEN}
    buffer_load_dword v164, v11, {srd(S_WS)}, 0 offen sc1
    s_cmp_eq_u32 s{sW}, 1
    s_cbranch_scc1 L_h1
    s_cmp_ge_u32 s{sW}, 2
    s_cbranch_scc1 L_h23
    ''')
    XF=16; WF=80; GF=96; dk=112; dg=116
    e(f'''
    s_lshl_b32 s{sT0}, s{sRB}, 6
    s_lshr_b32 s{sT1}, s{sCB}, 1
    s_lshl_b32 s{sT1}, s{sT1}, 4
    s_add_u32 s{sT0}, s{sT0}, s{sT1}
    s_lshl_b32 s{sT0}, s{sT0}, 10             ; row0*1024
    v_lshlrev_b32 v{a}, 10, v{vM15}
    v_lshl_add_u32 v{a}, v{vG4}, 4, v{a}      ; (l&15)*1024 + g*16
    s_mov_b32 m0, {PG}
    s_mov_b32 s{sT1}, 0
    buffer_load_dwordx4 v{vL16}, {srd(S_GATE)}, 0 offen lds
    ''')
    for s in range(16):
        e(f'''
        s_mov_b32 m0, {PA + (s//4)*4096}
        buffer_load_dwordx4 {v(XF+4*s,4)}, v{a}, {srd(S_X)}, s{sT0} offen offset:{64*s}
        buffer_load_dwordx4 v{vL16}, {srd(S_WKV)}, s{sT1} offen offset:{(s%4)*1024} lds
        ''')
        if s % 4 == 3: e(f's_add_u32 s{sT1}, s{sT1}, 4096')
    e(f'''
    @stamp h_issued
    v_lshlrev_b32 v{a}, 8, v{vG4}
    v_lshl_add_u32 v{a}, v{vM15}, 3, v{a}
    v_add_u32 v{a}, {PA}, v{a}                ; PA + g*256 + (l&15)*8
    v_lshlrev_b32 v{b}, 4, v{vG4}
    v_add_u32 v{b}, {PG}, v{b}
    s_lshl_b32 s{sT0}, s{sRB}, 2
    s_lshr_b32 s{sT1}, s{sCB}, 1
    s_add_u32 s{sT0}, s{sT0}, s{sT1}          ; kb
    s_lshr_b32 s{sT1}, s{sT0}, 1
    s_lshl_b32 s{sT1}, s{sT1}, 11
    s_and_b32 s{sT2}, s{sT0}, 1
    s_lshl_b32 s{sT2}, s{sT2}, 8
    s_add_u32 s{sT1}, s{sT1}, s{sT2}
    s_and_b32 s{sT2}, s{sCB}, 1
    s_lshl_b32 s{sT2}, s{sT2}, 10
    s_add_u32 s{sT1}, s{sT1}, s{sT2}
    s_lshl_b32 s{sT0}, s{sT0}, 6
    s_add_u32 s{sT0}, s{sT0}, {WS_G}
    v_and_b32 v{c}, 1, v{vG4}
    v_lshrrev_b32 v{d}, 1, v{vG4}
    s_waitcnt lgkmcnt(0)
    s_bitcmp1_b32 s{sCB}, 0
    s_cbranch_scc1 L_kv_v
    ''')
    def kvloop(isv):
        for s in range(16):
            bi = s % 4
            e(f's_waitcnt vmcnt({2*(15-s)})')
            e(f'ds_read_b64_tr_b16 {v(WF+4*bi,2)}, v{a} offset:{s*1024}')
            e(f'ds_read_b64_tr_b16 {v(WF+4*bi+2,2)}, v{a} offset:{s*1024+128}')
            if not isv: e(f'ds_read_b128 {v(GF+4*bi,4)}, v{b} offset:{s*64}')
            if s >= 1:
                p = s-1; pb = p % 4
                e(f's_waitcnt lgkmcnt({2 if isv else 3})')
                mm(p, pb, isv)
        e('s_waitcnt lgkmcnt(0)')
        mm(15, 3, isv)
    def mm(p, pb, isv):
        cc = '0' if p == 0 else v(dk,4)
        if isv:
            e(f'v_mfma_f32_16x16x32_bf16 {v(dk,4)}, {v(XF+4*p,4)}, {v(WF+4*pb,4)}, {cc}')
        else:
            e(f'v_mfma_f32_16x16x32_bf16 {v(dk,4)}, {v(WF+4*pb,4)}, {v(XF+4*p,4)}, {cc}')
            e(f'v_mfma_f32_16x16x32_bf16 {v(dg,4)}, {v(GF+4*pb,4)}, {v(XF+4*p,4)}, {"0" if p==0 else v(dg,4)}')
    kvloop(False)
    e(f'''
    v_lshlrev_b32 v{a}, 9, v{d}
    v_lshl_add_u32 v{a}, v{c}, 3, v{a}        ; K: (g>>1)*512 + (g&1)*8
    v_lshl_add_u32 v{a}, v{vM15}, 4, v{a}
    v_lshlrev_b32 v{b}, 2, v{vL}
    v_cvt_pk_bf16_f32 v{dk}, v{dk}, v{dk+1}
    v_cvt_pk_bf16_f32 v{dk+1}, v{dk+2}, v{dk+3}
    buffer_store_dwordx2 {v(dk,2)}, v{a}, {srd(S_WS)}, s{sT1} offen sc1
    v_cvt_pk_bf16_f32 v{dg}, v{dg}, v{dg}
    v_lshlrev_b32 v{dg}, 16, v{dg}
    v_mul_f32 v{dg}, {f32(-LOG2E)}, v{dg}
    v_exp_f32 v{dg}, v{dg}
    v_add_f32 v{dg}, 1.0, v{dg}
    v_rcp_f32 v{dg}, v{dg}
    v_cvt_pk_bf16_f32 v{dg}, v{dg}, v{dg}
    v_lshlrev_b32 v{dg}, 16, v{dg}
    s_mov_b64 exec, 0xffff
    buffer_store_dword v{dg}, v{b}, {srd(S_WS)}, s{sT0} offen sc1
    s_mov_b64 exec, -1
    s_branch L_kv_d
    L_kv_v:
    ''')
    kvloop(True)
    e(f'''
    v_lshlrev_b32 v{a}, 9, v{c}
    v_lshl_add_u32 v{a}, v{d}, 3, v{a}        ; V: (g&1)*512 + (g>>1)*8
    v_lshl_add_u32 v{a}, v{vM15}, 4, v{a}
    v_cvt_pk_bf16_f32 v{dk}, v{dk}, v{dk+1}
    v_cvt_pk_bf16_f32 v{dk+1}, v{dk+2}, v{dk+3}
    buffer_store_dwordx2 {v(dk,2)}, v{a}, {srd(S_WS)}, s{sT1} offen sc1
    L_kv_d:
    @stamp h_a
    ''')
    signal(C_KVW)
    def nonce():
        e(f'''
        v_readfirstlane_b32 s{sNON}, v164
        s_mul_i32 s{sNON}, s{sNON}, 0x9e3779b1
        s_add_u32 s{sNON}, s{sNON}, 0x7f4a7c15
        ''')
    nonce()
    e(f'''
    s_lshl_b32 s{sT0}, s{sXCD}, 7
    s_lshr_b32 s{sT1}, s2, 3
    s_lshl_b32 s{sT1}, s{sT1}, 2
    s_add_u32 s{sT0}, s{sT0}, s{sT1}
    s_add_u32 s{sT0}, s{sT0}, {WS_F1}
    v_mov_b32 v11, s{sT0}
    v_mov_b32 v{a}, s{sNON}
    s_mov_b64 exec, 1
    s_waitcnt vmcnt(0)
    buffer_store_dword v{a}, v11, {srd(S_WS)}, 0 offen sc1
    s_mov_b64 exec, -1
    @stamp h_b
    ''')
    def gpoll(lbl, sbase, sleep):
        e(f'''
        v_and_b32 v{a}, 31, v{vL}
        v_lshlrev_b32 v{a}, 2, v{a}
        L_poll{lbl}:
        buffer_load_dword v{b}, v{a}, {srd(S_WS)}, s{sbase} offen sc1
        s_waitcnt vmcnt(0)
        v_cmp_ne_u32 vcc, s{sNON}, v{b}
        s_cbranch_vccz L_polled{lbl}
        s_sleep {sleep}
        s_sub_u32 s{sTO}, s{sTO}, 16
        s_cbranch_scc0 L_poll{lbl}
        s_mov_b32 s{sTO}, 0
        L_polled{lbl}:
        ''')
    e('s_branch L_hkv')
    def xpart(rho):
        e(f'''
        v_lshrrev_b32 v{a}, 5, v{vL}
        v_and_b32 v{b}, 31, v{vL}
        v_xor_b32 v{b}, v{b}, v{a}
        v_lshlrev_b32 v{b}, 4, v{b}
        v_lshl_add_u32 v{c}, v{a}, 10, v{b}
        s_xor_b32 s{sT0}, s{sKAP}, {rho}
        s_lshl_b32 s{sT0}, s{sT0}, 9
        s_lshl_b32 s{sT1}, s{sRB}, 16
        s_add_u32 s{sT0}, s{sT0}, s{sT1}
        s_mov_b32 s{sT1}, {rho*65536}
        s_mov_b32 s{sCNT}, 0
        L_xp{rho}:
        ''')
        for j in range(8):
            e(f'''
            s_mov_b32 m0, s{sT1}
            v_xor_b32 v{a}, {32*j}, v{c}
            buffer_load_dwordx4 v{a}, {srd(S_X)}, s{sT0} offen lds
            s_add_u32 s{sT1}, s{sT1}, 1024
            s_add_u32 s{sT0}, s{sT0}, 2048
            ''')
        e(f'''
        s_add_u32 s{sCNT}, s{sCNT}, 1
        s_cmp_lt_u32 s{sCNT}, 4
        s_cbranch_scc1 L_xp{rho}
        ''')
    def wpart(rho):
        e(f'''
        v_lshrrev_b32 v{a}, 3, v{vL}
        v_lshlrev_b32 v{a}, 10, v{a}
        v_and_b32 v{b}, 7, v{vL}
        v_bfe_u32 v{c}, v{vL}, 4, 1
        v_lshlrev_b32 v{c}, 1, v{c}
        v_xor_b32 v{b}, v{b}, v{c}
        v_lshl_add_u32 v{c}, v{b}, 4, v{a}
        v_xor_b32 v{d}, 64, v{c}
        s_xor_b32 s{sT0}, s{sKAP}, {rho}
        s_lshl_b32 s{sT0}, s{sT0}, 18
        s_lshl_b32 s{sT1}, s{sCB}, 7
        s_add_u32 s{sT0}, s{sT0}, s{sT1}
        s_mov_b32 s{sT1}, {rho*65536+32768}
        s_mov_b32 s{sCNT}, 0
        L_wp{rho}:
        ''')
        for j in range(4):
            e(f'''
            s_mov_b32 m0, s{sT1}
            s_add_u32 s{sT1}, s{sT1}, 1024
            buffer_load_dwordx4 v{d if j&1 else c}, {srd(S_WQ)}, s{sT0} offen lds
            s_add_u32 s{sT0}, s{sT0}, 8192
            ''')
        e(f'''
        s_add_u32 s{sCNT}, s{sCNT}, 1
        s_cmp_lt_u32 s{sCNT}, 8
        s_cbranch_scc1 L_wp{rho}
        ''')
    e('L_h1:')
    xpart(0)
    signal(C_ISS)
    e('@stamp h_issued')
    TR=16
    e(f'''
    v_bfe_u32 v{a}, v{vL}, 2, 2               ; r
    v_lshl_add_u32 v{b}, v{vG4}, 3, v{a}
    v_and_b32 v{c}, 15, v{b}                  ; row&15
    s_and_b32 s{sT4}, s{sCB}, 3
    s_lshl_b32 s{sT4}, s{sT4}, 3
    v_bfe_u32 v{d}, v{vL}, 1, 1
    v_or_b32 v{d}, s{sT4}, v{d}               ; c16 (q>>1 = 0)
    v_xor_b32 v{d}, v{d}, v{c}
    v_lshlrev_b32 v{d}, 4, v{d}
    v_lshl_add_u32 v{d}, v{b}, 9, v{d}
    v_and_b32 v{a}, 1, v{vL}
    v_lshl_add_u32 v{d}, v{a}, 3, v{d}
    s_waitcnt vmcnt(0) lgkmcnt(0)
    @stamp h_a
    ''')
    signal(C_T0)
    T2=24
    for q in range(8):
        e(f'v_xor_b32 v{a}, {32*(q>>1)}, v{d}')
        e(f'v_xor_b32 v{b}, {32*(q>>1) ^ 64}, v{d}')
        e(f'ds_read_b64_tr_b16 {v(T2+4*q,2)}, v{a} offset:{(q&1)*16384}')
        e(f'ds_read_b64_tr_b16 {v(T2+4*q+2,2)}, v{b} offset:{(q&1)*16384+2048}')
    signal(C_Q0)
    e('s_branch L_hkv')
    e(f'''
    L_h23:
    s_cmp_eq_u32 s{sW}, 3
    s_cbranch_scc1 L_h3
    ''')
    wait(C_ISS, 1, sleep=0)
    wpart(0)
    signal(C_ISS)
    e('@stamp h_issued')
    e('s_waitcnt vmcnt(0)')
    signal(C_T0)
    e('@stamp h_a')
    wait(C_ISS, 3, sleep=0)
    wpart(1)
    e('@stamp h_b')
    e('s_waitcnt vmcnt(0)')
    signal(C_T1)
    e('@stamp h_c')
    e('s_branch L_hkv')
    e('L_h3:')
    wait(C_ISS, 2, sleep=0)
    xpart(1)
    signal(C_ISS)
    e('@stamp h_issued')
    e('s_waitcnt vmcnt(0)')
    signal(C_T1)
    e('@stamp h_a')
    e('L_hkv:')
    mk(S_WO, P_WO, 524288)
    mk(S_OUT, P_OUT, 2097152)
    e(f'''
    s_lshr_b32 s{sCH}, s{sW}, 1
    s_and_b32 s{sHF}, s{sW}, 1
    s_sub_u32 s{sPOS}, 4, s{sW}
    s_and_b32 s{sPOS}, s{sPOS}, 3
    s_lshl_b32 s{sT0}, s{sPOS}, 2
    v_add_u32 v{d}, s{sT0}, v{vC}
    s_lshl_b32 s{sT0}, s{sCH}, 2
    v_add_u32 v10, s{sT0}, v{vC}
    ''')
    nonce()
    def kvgroup(lbl):
        wait(C_KISS, f's{sPOS}', sleep=1)
        e(f'''
        s_add_u32 s{sT1}, s{sXCD}, s{sPOS}
        s_and_b32 s{sT1}, s{sT1}, 7
        s_lshl_b32 s{sT2}, s{sT1}, 7
        s_add_u32 s{sT2}, s{sT2}, {WS_F1}
        ''')
        gpoll(lbl, sT2, 4)
        e(f'''
        s_lshl_b32 s{sT0}, s{sPOS}, 14
        s_lshl_b32 s{sT1}, s{sT1}, 14
        ''')
        for j in range(4):
            e(f's_mov_b32 m0, s{sT0}')
            for i in range(4):
                e(f'buffer_load_dwordx4 v{vL16}, {srd(S_WS)}, s{sT1} offen offset:{i*1024} sc1 lds')
            e(f's_add_u32 s{sT0}, s{sT0}, 4096')
            e(f's_add_u32 s{sT1}, s{sT1}, 4096')
        signal(C_KISS)
    wait(C_Q0, 9, sleep=1)
    e('@stamp h_kvok')
    kvgroup(1)
    e(f'''
    s_cmp_lg_u32 s{sW}, 1
    s_cbranch_scc1 L_nost
    v_mov_b32 v{TR}, -1
    v_mov_b32 v{TR+1}, -1
    v_mov_b32 v{TR+2}, -1
    v_mov_b32 v{TR+3}, -1
    s_lshl_b32 s{sT0}, s{sRB}, 16
    s_lshl_b32 s{sT1}, s{sCB}, 12
    s_add_u32 s{sT0}, s{sT0}, s{sT1}
    s_add_u32 s{sT0}, s{sT0}, {WS_O}
    s_add_u32 s{sT1}, s{sT0}, 32768
    s_lshl_b32 s{sT2}, s{sD0}, 12
    s_add_u32 s{sT2}, s{sT2}, {WS_B}
    s_add_u32 s{sT3}, s{sT2}, 4096
    v_lshlrev_b32 v{c}, 12, v{vM15}
    v_lshl_add_u32 v{c}, v{vG4}, 4, v{c}
    s_lshl_b32 s{sT4}, s{sCB}, 18
    s_lshl_b32 s{sT5}, s{sRB}, 7
    s_add_u32 s{sT4}, s{sT4}, s{sT5}
    s_add_u32 s{sT4}, s{sT4}, {WS_XT}
    ''')
    for q in range(8):
        e(f'buffer_store_dwordx4 {v(T2+4*q,4)}, v{c}, {srd(S_WS)}, s{sT4} offen offset:{(q&1)*64} sc1')
        if q & 1: e(f's_add_u32 s{sT4}, s{sT4}, 65536')
    for sr in (sT0, sT1, sT2, sT3):
        for j in range(4):
            e(f'buffer_store_dwordx4 {v(TR,4)}, v{vL16}, {srd(S_WS)}, s{sr} offen offset:{j*1024} sc1')
    e('s_waitcnt vmcnt(24)')
    signal(C_KV, addr=d)
    wait(C_T1, 2, sleep=1)
    e(f'''
    s_lshl_b32 s{sT0}, s{sCB}, 7
    s_lshl_b32 s{sT1}, s{sRB}, 2
    s_add_u32 s{sT0}, s{sT0}, s{sT1}
    s_add_u32 s{sT0}, s{sT0}, {WS_F2}
    v_mov_b32 v11, s{sT0}
    v_mov_b32 v{a}, s{sNON}
    s_mov_b64 exec, 1
    s_waitcnt vmcnt(0)
    buffer_store_dword v{a}, v11, {srd(S_WS)}, 0 offen sc1
    s_mov_b64 exec, -1
    ''')
    signal(C_ST)
    e('s_branch L_st_d')
    e('L_nost:')
    e('s_waitcnt vmcnt(0)')
    signal(C_KV, addr=d)
    e('L_st_d:')
    e('@stamp h_kv0')
    wait(C_Q1, 8, sleep=1)
    e(f's_add_u32 s{sPOS}, s{sPOS}, 4')
    kvgroup(2)
    e('s_waitcnt vmcnt(0)')
    signal(C_KV+4, addr=d)
    e(f'''
    s_lshl_b32 s{sT2}, s{sXCD}, 7
    s_add_u32 s{sT2}, s{sT2}, {WS_F2}
    ''')
    gpoll(3, sT2, 8)
    e('@stamp h_f2')
    wait(C_KREV, 4)
    e(f'''
    s_mul_i32 s{sT1}, s{sCH}, {XC_CH}
    s_add_u32 s{sT1}, s{sT1}, {XC}
    s_cmp_eq_u32 s{sHF}, 1
    s_cbranch_scc1 L_xpad
    s_add_u32 s{sT1}, s{sT1}, 512
    s_mov_b32 m0, s{sT1}
    s_add_u32 s{sT0}, s{sD0}, s{sCH}
    s_lshl_b32 s{sT0}, s{sT0}, 12
    s_add_u32 s{sT0}, s{sT0}, {WS_XT}
    ''')
    for i in range(4):
        e(f'buffer_load_dwordx4 v{vL16}, {srd(S_WS)}, s{sT0} offen offset:{i*1024} sc1 lds')
    e(f'''
    s_branch L_xpad_d
    L_xpad:
    v_mov_b32 v{a}, 0
    v_mov_b32 v{b}, 0
    v_lshlrev_b32 v{c}, 3, v{vL}
    v_add_u32 v{c}, s{sT1}, v{c}
    ds_write_b64 v{c}, {v(a,2)}
    L_xpad_d:
    s_waitcnt vmcnt(0)
    ''')
    signal(C_XT, addr=10)
    e('@stamp h_kv1')
    aA=12; aB=20; CA=24; CB=56; CACC=120
    e(f'''
    v_lshrrev_b32 v{a}, 1, v{vG4}
    v_lshlrev_b32 v{a}, 4, v{a}
    v_add_u32 v{a}, v{a}, v{vM15}
    v_and_b32 v{b}, 1, v{vG4}
    v_lshlrev_b32 v{c}, 3, v{b}
    v_sub_u32 v{a}, v{a}, v{c}
    v_sub_u32 v{a}, 2047, v{a}                 ; r00
    v_and_b32 v{c}, 1, v{a}
    v_sub_u32 v{a}, v{a}, v{c}
    v_lshlrev_b32 v{a}, 1, v{a}
    v_mul_u32_u24 v{c}, {KREV_O}, v{c}
    v_add_u32 v{a}, v{a}, v{c}
    s_mul_i32 s{sT0}, s{sCH}, {KREV_CH}
    s_add_u32 s{sT0}, s{sT0}, {KREV - 192}
    s_lshl_b32 s{sT1}, s{sHF}, 8
    s_sub_u32 s{sT0}, s{sT0}, s{sT1}
    v_add_u32 v{aA}, s{sT0}, v{a}
    ''')
    for u in range(1,8):
        e(f'v_subrev_u32 v{aA+u}, {512*u}, v{aA}')
    e(f'''
    v_lshrrev_b32 v{a}, 1, v{vG4}
    v_sub_u32 v{a}, v{vM15}, v{a}
    v_lshlrev_b32 v{a}, 5, v{a}
    v_lshl_add_u32 v{a}, v{b}, 4, v{a}
    s_mul_i32 s{sT0}, s{sCH}, {XC_CH}
    s_add_u32 s{sT0}, s{sT0}, {XC + 512 - 192}
    s_sub_u32 s{sT0}, s{sT0}, s{sT1}
    v_add_u32 v{aB}, s{sT0}, v{a}
    ''')
    def rdA(wq, u):
        o = 16*(3-wq)
        e(f'ds_read2_b32 {v(CA+4*u,2)}, v{aA+u} offset0:{o} offset1:{o+1}')
        e(f'ds_read2_b32 {v(CA+4*u+2,2)}, v{aA+u} offset0:{o+2} offset1:{o+3}')
    def rdB(wq, s):
        e(f'ds_read_b128 {v(CB+32*(wq&1)+4*s,4)}, v{aB} offset:{s*512+(3-wq)*64}')
    for u in range(8): rdA(0, u)
    wait(C_XT, 2, addr=10)
    e('s_setprio 2')
    for s in range(8): rdB(0, s)
    for i in range(32): e(f'v_mov_b32 v{CACC+i}, 0')
    for wq in range(4):
        e('s_waitcnt lgkmcnt(0)')
        B = CB + 32*(wq&1)
        for u in range(7,-1,-1):
            for nt in range(u, 8):
                e(f'v_mfma_f32_16x16x32_bf16 {v(CACC+4*nt,4)}, {v(CA+4*u,4)}, {v(B+4*(nt-u),4)}, {v(CACC+4*nt,4)}')
            if wq < 3:
                rdA(wq+1, u)
                rdB(wq+1, u)
    e('s_setprio 3')
    signal(C_CR, addr=10)
    e(f'''
    @stamp h_conv
    s_cmp_eq_u32 s{sHF}, 0
    s_cbranch_scc1 L_noswap
    s_nop 7
    ''')
    for i in range(16): e(f'v_swap_b32 v{CACC+i}, v{CACC+16+i}')
    e(f'''
    L_noswap:
    s_mul_i32 s{sT0}, s{sCH}, {KREV_CH}
    s_add_u32 s{sT0}, s{sT0}, {KREV}
    s_lshl_b32 s{sT1}, s{sHF}, 12
    s_add_u32 s{sT2}, s{sT0}, s{sT1}
    s_xor_b32 s{sT1}, s{sT1}, 4096
    s_add_u32 s{sT0}, s{sT0}, s{sT1}
    v_add_u32 v{a}, s{sT2}, v{vL16}
    v_add_u32 v{b}, s{sT0}, v{vL16}
    ''')
    wait(C_CR, 2, addr=10, sleep=0)
    for q in range(4):
        e(f'ds_write_b128 v{a}, {v(CACC+16+4*q,4)} offset:{q*1024}')
    signal(C_CW, addr=10)
    e(f'''
    v_lshlrev_b32 v{c}, 5, v{vM15}
    v_lshl_add_u32 v{c}, v{vG4}, 3, v{c}
    s_lshl_b32 s{sT1}, s{sHF}, 11
    v_add_u32 v{c}, s{sT1}, v{c}
    s_mul_i32 s{sT0}, s{sCH}, {XC_CH}
    s_add_u32 s{sT0}, s{sT0}, {XC+512}
    v_add_u32 v{d}, s{sT0}, v{c}
    s_add_u32 s{sT0}, s{sD0}, s{sCH}
    s_lshl_b32 s{sT0}, s{sT0}, 12
    s_add_u32 s{sT0}, s{sT0}, {WS_B}
    s_lshl_b32 s{sT1}, s{sCH}, 4
    s_lshr_b32 s{sT1}, s{sDSK}, s{sT1}
    s_lshl_b32 s{sT1}, s{sT1}, 16
    s_mov_b32 s{sT2}, 0xfffefffe
    ''')
    wait(C_ST, 1, sleep=1)
    wait(C_CW, 2, addr=10, sleep=0)
    XV=24; T=40
    for q in range(4):
        e(f'ds_read_b128 {v(CACC+16+4*q,4)}, v{b} offset:{q*1024}')
        e(f'ds_read_b64 {v(XV+2*q,2)}, v{d} offset:{q*512}')
    signal(C_CONV)
    for q in range(4):
        y=CACC+4*q
        e(f's_waitcnt lgkmcnt({7-2*q})')
        for r in range(4): e(f'v_add_f32 v{y+r}, v{y+r}, v{y+16+r}')
        for hh in range(2):
            x=XV+2*q+hh
            e(f'''
            v_cvt_pk_bf16_f32 v{T}, v{y+2*hh}, v{y+2*hh+1}
            v_lshlrev_b32 v{T+1}, 16, v{x}
            v_and_b32 v{T+2}, 0xffff0000, v{x}
            v_mul_f32 v{T+1}, s{sT1}, v{T+1}
            v_mul_f32 v{T+2}, s{sT1}, v{T+2}
            v_cvt_pk_bf16_f32 v{T+1}, v{T+1}, v{T+2}
            v_lshlrev_b32 v{T+2}, 16, v{T}
            v_and_b32 v{T}, 0xffff0000, v{T}
            v_lshlrev_b32 v{T+3}, 16, v{T+1}
            v_and_b32 v{T+1}, 0xffff0000, v{T+1}
            v_add_f32 v{T+2}, v{T+2}, v{T+3}
            v_add_f32 v{T}, v{T}, v{T+1}
            v_cvt_pk_bf16_f32 v{x}, v{T+2}, v{T}
            v_pk_min_u16 v{x}, v{x}, s{sT2}
            ''')
        e(f'buffer_store_dwordx2 {v(XV+2*q,2)}, v{c}, {srd(S_WS)}, s{sT0} offen offset:{q*512} sc1')
    e('@stamp h_bout')
    WOF=36; ACC=12; BP=28; GV=10; OA=11
    NS=6
    e(f'''
    v_lshrrev_b32 v{a}, 2, v{vL}
    v_lshlrev_b32 v{a}, 10, v{a}
    v_and_b32 v{b}, 3, v{vL}
    v_lshl_add_u32 v{a}, v{b}, 4, v{a}
    s_lshr_b32 s{sT0}, s{sCB}, 1
    s_lshl_b32 s{sT0}, s{sT0}, 8
    s_lshl_b32 s{sT1}, s{sW}, 6
    s_add_u32 s{sT0}, s{sT0}, s{sT1}
    s_mul_i32 s{sT2}, s{sW}, {NS*1024}
    s_add_u32 s{sT2}, s{sT2}, {POOL}
    v_bfe_u32 v{c}, v{vL}, 2, 2
    v_lshrrev_b32 v{d}, 5, v{vL}
    v_lshl_add_u32 v{c}, v{d}, 2, v{c}         ; 4h + r
    v_lshlrev_b32 v{c}, 6, v{c}
    v_bfe_u32 v{d}, v{vL}, 4, 1
    v_lshl_add_u32 v{c}, v{d}, 5, v{c}
    v_lshl_add_u32 v{c}, v{b}, 3, v{c}
    v_add_u32 v{c}, s{sT2}, v{c}
    s_waitcnt vmcnt(0)
    ''')
    wait(C_CONV, 4)
    def wodma(k):
        e(f'''
        s_add_u32 s{sT3}, s{sT2}, {(k%NS)*1024}
        s_mov_b32 m0, s{sT3}
        s_nop 0
        buffer_load_dwordx4 v{a}, {srd(S_WO)}, s{sT0} offen lds
        s_add_u32 s{sT0}, s{sT0}, 16384
        ''')
    for k in range(NS): wodma(k)
    for k in range(28):
        e(f's_waitcnt vmcnt({min(NS-1, 31-k)})')
        e(f'ds_read_b64_tr_b16 {v(WOF+4*k,2)}, v{c} offset:{(k%NS)*1024}')
        e(f'ds_read_b64_tr_b16 {v(WOF+4*k+2,2)}, v{c} offset:{(k%NS)*1024+512}')
        if k+NS < 32:
            e('s_waitcnt lgkmcnt(0)')
            wodma(k+NS)
    e(f'v_mov_b32 v{d}, v{c}')
    e('@stamp h_wo')
    e(f'''
    s_mov_b32 s{sT0}, {WS_F2}
    L_pollA:
    buffer_load_dwordx4 {v(ACC,4)}, v{vL16}, {srd(S_WS)}, s{sT0} offen sc1
    s_waitcnt vmcnt(0)
    v_xor_b32 v{ACC}, s{sNON}, v{ACC}
    v_xor_b32 v{ACC+1}, s{sNON}, v{ACC+1}
    v_xor_b32 v{ACC+2}, s{sNON}, v{ACC+2}
    v_xor_b32 v{ACC+3}, s{sNON}, v{ACC+3}
    v_or3_b32 v{ACC}, v{ACC}, v{ACC+1}, v{ACC+2}
    v_or_b32 v{ACC}, v{ACC}, v{ACC+3}
    v_cmp_ne_u32 vcc, 0, v{ACC}
    s_cbranch_vccz L_polledA
    s_sleep 8
    s_sub_u32 s{sTO}, s{sTO}, 16
    s_cbranch_scc0 L_pollA
    s_mov_b32 s{sTO}, 0
    L_polledA:
    s_or_b32 s{sT0}, s2, s{sW}
    s_cmp_lg_u32 s{sT0}, 0
    s_cbranch_scc1 L_nogen
    v_mov_b32 v{a}, {WS_GEN}
    v_mov_b32 v{b}, s{sNON}
    s_mov_b64 exec, 1
    buffer_store_dword v{b}, v{a}, {srd(S_WS)}, 0 offen sc1
    s_mov_b64 exec, -1
    L_nogen:
    ''')
    e(f'''
    s_lshl_b32 s{sT0}, s{sRB}, 6
    s_and_b32 s{sT1}, s{sCB}, 1
    s_lshl_b32 s{sT1}, s{sT1}, 5
    s_add_u32 s{sT0}, s{sT0}, s{sT1}
    v_and_b32 v{a}, 31, v{vL}
    v_add_u32 v{a}, s{sT0}, v{a}               ; row
    s_lshr_b32 s{sT0}, s{sCB}, 1
    s_lshl_b32 s{sT0}, s{sT0}, 7
    s_lshl_b32 s{sT1}, s{sW}, 5
    s_add_u32 s{sT0}, s{sT0}, s{sT1}
    v_lshrrev_b32 v{b}, 5, v{vL}
    v_lshlrev_b32 v{b}, 2, v{b}
    v_add_u32 v{b}, s{sT0}, v{b}
    v_lshlrev_b32 v{OA}, 10, v{a}
    v_lshl_add_u32 v{OA}, v{b}, 1, v{OA}
    v_lshlrev_b32 v{b}, 12, v{b}
    v_lshl_add_u32 v{b}, v{a}, 1, v{b}
    v_add_u32 v{b}, {WS_B}, v{b}
    v_lshlrev_b32 v{a}, 2, v{a}
    s_mov_b32 s{sT0}, {WS_G}
    buffer_load_dword v{GV}, v{a}, {srd(S_WS)}, s{sT0} offen sc1
    L_bpoll:
    ''')
    for i in range(16):
        col = (i>>2)*8 + (i&3)
        e(f's_mov_b32 s{sT0}, {col*4096}')
        e(f'buffer_load_ushort v{ACC+i}, v{b}, {srd(S_WS)}, s{sT0} offen sc1')
    e(f's_waitcnt vmcnt(0)')
    e(f'v_max3_u32 v{c}, v{ACC}, v{ACC+1}, v{ACC+2}')
    for i in range(3,15,2): e(f'v_max3_u32 v{c}, v{c}, v{ACC+i}, v{ACC+i+1}')
    e(f'''
    v_max_u32 v{c}, v{c}, v{ACC+15}
    v_cmp_eq_u32 vcc, 0xffff, v{c}
    s_cbranch_vccz L_bok
    s_sleep 8
    s_sub_u32 s{sTO}, s{sTO}, 16
    s_cbranch_scc0 L_bpoll
    s_mov_b32 s{sTO}, 0
    L_bok:
    v_sub_f32 v{c}, 1.0, v{GV}
    v_cvt_pk_bf16_f32 v{c}, v{c}, v{c}
    v_lshlrev_b32 v{c}, 16, v{c}
    ''')
    for i in range(16):
        e(f'v_lshlrev_b32 v{ACC+i}, 16, v{ACC+i}')
        e(f'v_mul_f32 v{ACC+i}, v{ACC+i}, v{c}')
    for i in range(8):
        e(f'v_cvt_pk_bf16_f32 v{BP+i}, v{ACC+2*i}, v{ACC+2*i+1}')
    e('@stamp h_bok')
    OF0=4
    e('s_barrier')
    e('s_barrier')
    e('@stamp h_o0')
    OB=148
    q=[]
    def ds(tag, txt): e(txt); q.append(tag)
    def need_(tags):
        idx=max(i for i,t in enumerate(q) if t in tags) if any(t in tags for t in q) else -1
        if idx >= 0:
            e(f's_waitcnt lgkmcnt({len(q)-1-idx})')
            del q[:idx+1]
    for k in range(4): ds(('o',k), f'ds_read_b128 {v(OB+4*k,4)}, v{vL16} offset:{k*1024}')
    for k in range(32):
        need_({('o',k),('w',k)})
        W = WOF+4*k if k < 28 else WOF+4*(k-28)
        e(f'v_mfma_f32_32x32x16_bf16 {v(ACC,16)}, {v(W,4)}, {v(OB+4*(k%4),4)}, {"0" if k==0 else v(ACC,16)}')
        if k+4 < 32: ds(('o',k+4), f'ds_read_b128 {v(OB+4*(k%4),4)}, v{vL16} offset:{(k+4)*1024}')
        if k < 4:
            kk=28+k
            ds(('w',kk), f'ds_read_b64_tr_b16 {v(WOF+4*k,2)}, v{d} offset:{(kk%NS)*1024}')
            ds(('w',kk), f'ds_read_b64_tr_b16 {v(WOF+4*k+2,2)}, v{d} offset:{(kk%NS)*1024+512}')
    e('@stamp h_mm')
    T=WOF+16
    for i in range(8):
        x=ACC+2*i
        e(f'''
        v_cvt_pk_bf16_f32 v{T}, v{x}, v{x+1}
        v_lshlrev_b32 v{x}, 16, v{T}
        v_and_b32 v{x+1}, 0xffff0000, v{T}
        v_mul_f32 v{x}, v{x}, v{GV}
        v_mul_f32 v{x+1}, v{x+1}, v{GV}
        v_cvt_pk_bf16_f32 v{T}, v{x}, v{x+1}
        v_lshlrev_b32 v{x}, 16, v{T}
        v_and_b32 v{x+1}, 0xffff0000, v{T}
        v_lshlrev_b32 v{T}, 16, v{BP+i}
        v_and_b32 v{T+1}, 0xffff0000, v{BP+i}
        v_add_f32 v{x}, v{x}, v{T}
        v_add_f32 v{x+1}, v{x+1}, v{T+1}
        v_cvt_pk_bf16_f32 v{T+2+i}, v{x}, v{x+1}
        ''')
        if i & 1:
            e(f'buffer_store_dwordx2 {v(T+2+i-1,2)}, v{OA}, {srd(S_OUT)}, 0 offen offset:{(i>>1)*16}')
    e('@stamp h_end')
    finish()
    vQ=10; vGI=14
    e(f'''
    L_main:
    s_sub_u32 s{sM}, s{sW}, 4
    s_and_b32 s{sRT}, s{sM}, 1
    s_lshr_b32 s{sHD}, s{sM}, 1
    s_cmp_ge_u32 s{sM}, 4
    s_cbranch_scc1 L_idx
    ''')
    PR=14
    R=40; s1=56; s2=58; mu=60; tt=62; pk=64; wa=136; ra=144; FA=72; FB=88; vG=148
    al=104; bh=105; bl=106; dt=29; p1=30; p2=31; ee=107
    e(f'''
    s_add_u32 s{sT0}, s{sD0}, s{sHD}
    s_lshl_b32 s{sT0}, s{sT0}, 8
    s_lshl_b32 s{sT1}, s{sRT}, 7
    s_add_u32 s{sT0}, s{sT0}, s{sT1}
    v_and_b32 v{a}, 31, v{vL}
    v_lshlrev_b32 v{a}, 1, v{a}
    v_add_u32 v{a}, s{sT0}, v{a}
    ''')
    for ps in range(2):
        for i,P in enumerate((P_LAR,P_AIM,P_CR,P_CI)):
            e(f'global_load_ushort v{PR+4*ps+i}, v{a}, {sp(P)} offset:{64*ps}')
    def exp_acc(dst, x, t, u):
        e(f'''
        v_mul_f32 v{t}, {f32(L2E_HI)}, v{x}
        v_fma_f32 v{u}, v{x}, s{sT4}, -v{t}
        v_fmac_f32 v{u}, {f32(L2E_LO)}, v{x}
        v_exp_f32 v{dst}, v{t}
        v_mul_f32 v{u}, {f32(math.log(2.0))}, v{u}
        v_fma_f32 v{dst}, v{dst}, v{u}, v{dst}
        v_cvt_pk_bf16_f32 v{dst}, v{dst}, v{dst}
        v_lshlrev_b32 v{dst}, 16, v{dst}
        ''')
    def cmul(D, X, Y, T=None):
        T = D if T is None else T
        e(f'''
        v_pk_mul_f32 {v(T,2)}, {v(X,2)}, {v(Y,2)} op_sel:[0,0] op_sel_hi:[0,1]
        v_pk_fma_f32 {v(D,2)}, {v(X,2)}, {v(Y,2)}, {v(T,2)} op_sel:[1,1,0] op_sel_hi:[1,0,1] neg_lo:[1,0,0]
        ''')
    def cmul_inplace(idxs, Y):
        for k,i in enumerate(idxs):
            e(f'v_pk_mul_f32 {v(110+2*(k%4),2)}, {v(R+2*i,2)}, {v(Y,2)} op_sel:[0,0] op_sel_hi:[0,1]')
            if k >= 1:
                j = idxs[k-1]
                e(f'v_pk_fma_f32 {v(R+2*j,2)}, {v(R+2*j,2)}, {v(Y,2)}, {v(110+2*((k-1)%4),2)} op_sel:[1,1,0] op_sel_hi:[1,0,1] neg_lo:[1,0,0]')
        k = len(idxs)-1; j = idxs[k]
        e(f'v_pk_fma_f32 {v(R+2*j,2)}, {v(R+2*j,2)}, {v(Y,2)}, {v(110+2*(k%4),2)} op_sel:[1,1,0] op_sel_hi:[1,0,1] neg_lo:[1,0,0]')
    e(f'''
    s_mov_b32 s{sT4}, {f32(L2E_HI)}
    s_mov_b32 s{sT5}, {f32(I2P_HI)}
    v_cmp_lt_u32 s[{sM0}:{sM0+1}], 31, v{vL}
    v_mov_b32 v{b}, {f32(8.0)}
    v_cndmask_b32 v{p1}, v{b}, 1.0, s[{sM0}:{sM0+1}]
    v_mov_b32 v{b}, {f32(64.0)}
    v_mov_b32 v{c}, {f32(256.0)}
    v_cndmask_b32 v{p2}, v{b}, v{c}, s[{sM0}:{sM0+1}]
    s_mul_i32 s{sT0}, s{sM}, {GW}
    s_add_u32 s{sT0}, s{sT0}, {PB}
    v_lshrrev_b32 v{a}, 5, v{vL}
    v_lshlrev_b32 v{a}, 10, v{a}
    v_and_b32 v{b}, 31, v{vL}
    v_lshl_add_u32 v{a}, v{b}, 2, v{a}
    v_add_u32 v{wa}, s{sT0}, v{a}
    ''')
    for i in range(1,8): e(f'v_xor_b32 v{wa+i}, {16*i}, v{wa}')
    e(f'''
    v_and_b32 v{a}, 7, v{vL}
    v_lshrrev_b32 v{b}, 5, v{vL}
    v_xor_b32 v{b}, v{b}, v{a}
    v_lshlrev_b32 v{b}, 4, v{b}
    v_lshl_add_u32 v{a}, v{a}, 7, v{b}
    v_add_u32 v{ra}, s{sT0}, v{a}
    ''')
    for s in range(1,4): e(f'v_xor_b32 v{ra+s}, {32*s}, v{ra}')
    for i in range(16): e(f'v_mov_b32 v{vG+i}, 0')
    e(f'''
    s_waitcnt lgkmcnt(0)
    s_lshl_b32 s{sT0}, s{sHD}, 4
    s_lshr_b32 s{sT1}, s{sLDT}, s{sT0}
    s_lshl_b32 s{sT1}, s{sT1}, 16
    v_mov_b32 v{a}, s{sT1}
    ''')
    exp_acc(dt, a, b, c)
    e(f'''
    s_waitcnt vmcnt(0)
    @stamp m_par
    v_max_u32 v{a}, v{PR+2}, v{PR+2}
    v_and_b32 v{a}, 0x7fff, v{PR+2}
    v_and_b32 v{b}, 0x7fff, v{PR+3}
    v_and_b32 v{c}, 0x7fff, v{PR+6}
    v_and_b32 v{d}, 0x7fff, v{PR+7}
    v_max_u32 v{a}, v{a}, v{b}
    v_max3_u32 v{a}, v{a}, v{c}, v{d}
    v_max_u32_dpp v{a}, v{a}, v{a} row_shr:1 row_mask:0xf bank_mask:0xf
    v_max_u32_dpp v{a}, v{a}, v{a} row_shr:2 row_mask:0xf bank_mask:0xf
    v_max_u32_dpp v{a}, v{a}, v{a} row_shr:4 row_mask:0xf bank_mask:0xf
    v_max_u32_dpp v{a}, v{a}, v{a} row_shr:8 row_mask:0xf bank_mask:0xf
    v_readlane_b32 s{sT0}, v{a}, 15
    v_readlane_b32 s{sT1}, v{a}, 31
    s_max_u32 s{sT0}, s{sT0}, s{sT1}
    s_lshr_b32 s{sT0}, s{sT0}, 7
    s_max_u32 s{sT0}, s{sT0}, 1
    s_min_u32 s{sT0}, s{sT0}, 253
    s_lshl_b32 s{sSC}, s{sT0}, 23
    s_sub_u32 s{sT0}, 254, s{sT0}
    s_lshl_b32 s{sSCI}, s{sT0}, 23
    s_mov_b32 s{sCNT}, 0
    L_kg:
    v_lshlrev_b32 v{a}, 16, v{PR}
    ''')
    exp_acc(al, a, b, c)
    e(f'''
    v_mul_f32 v{al}, v{al}, v{dt}
    v_mul_f32 v{al}, {f32(-LOG2E)}, v{al}
    v_lshlrev_b32 v{a}, 16, v{PR+1}
    v_mul_f32 v{a}, v{a}, v{dt}
    v_cndmask_b32 v{a}, v{a}, -v{a}, s[{sM0}:{sM0+1}]
    v_mul_f32 v{bh}, {f32(I2P_HI)}, v{a}
    v_fma_f32 v{bl}, v{a}, s{sT5}, -v{bh}
    v_fmac_f32 v{bl}, {f32(I2P_LO)}, v{a}
    ''')
    for (S, p) in ((s1,p1),(s2,p2)):
        e(f'''
        v_mul_f32 v{a}, v{al}, v{p}
        v_mul_f32 v{b}, v{bh}, v{p}
        v_exp_f32 v{ee}, v{a}
        v_fract_f32 v{b}, v{b}
        v_fmac_f32 v{b}, v{bl}, v{p}
        v_cos_f32 v{c}, v{b}
        v_sin_f32 v{d}, v{b}
        v_mul_f32 v{S}, v{ee}, v{c}
        v_mul_f32 v{S+1}, v{ee}, v{d}
        ''')
    e(f'''
    v_lshlrev_b32 v{a}, 16, v{PR+2}
    v_lshlrev_b32 v{b}, 16, v{PR+3}
    v_mul_f32 v{a}, s{sSCI}, v{a}
    v_mul_f32 v{b}, s{sSCI}, v{b}
    v_cndmask_b32 v{R}, 1.0, v{a}, s[{sM0}:{sM0+1}]
    v_cndmask_b32 v{R+1}, 0, -v{b}, s[{sM0}:{sM0+1}]
    ''')
    cmul(tt, s1, s1)
    cmul(R+2, R, s1)
    cmul(mu, s2, s2)
    cmul(R+4, R, tt)
    cmul(R+6, R+2, tt)
    cmul(pk, tt, tt)
    e(f'''
    v_cndmask_b32 v{mu}, v{s1}, v{mu}, s[{sM0}:{sM0+1}]
    v_cndmask_b32 v{mu+1}, v{s1+1}, v{mu+1}, s[{sM0}:{sM0+1}]
    ''')
    for i in range(4): cmul(R+8+2*i, R+2*i, pk)
    def flush(rnd):
        for i in range(8):
            e(f'v_cvt_pk_f16_f32 v{pk+i}, v{R+2*i}, v{R+2*i+1}')
            e(f'ds_write_b32 v{wa+i}, v{pk+i} offset:{128*i}')
        m = 0xff << (8*rnd)
        e(f's_mov_b32 exec_lo, {hex(m)}\ns_mov_b32 exec_hi, {hex(m)}')
        for s in range(4):
            e(f'ds_read_b128 {v(FB+4*s,4)}, v{ra+s}')
            e(f'ds_read_b128 {v(FA+4*s,4)}, v{ra+s} offset:1024')
        e('s_mov_b64 exec, -1')
    flush(0)
    cmul_inplace(list(range(8)), s2)
    flush(1)
    for rnd in (2,3):
        cmul_inplace([0,4,5], s2)
        cmul(R+2, R, mu)
        cmul_inplace([6,7], s2)
        cmul(R+4, R+2, mu)
        cmul(R+6, R+4, mu)
        flush(rnd)
    for i in range(4): e(f'v_mov_b32 v{PR+i}, v{PR+4+i}')
    e('s_waitcnt lgkmcnt(0)')
    for s in range(4):
        e(f'v_mfma_f32_32x32x16_f16 {v(vG,16)}, {v(FA+4*s,4)}, {v(FB+4*s,4)}, {v(vG,16)}')
    e(f'''
    s_add_u32 s{sCNT}, s{sCNT}, 1
    s_cmp_lt_u32 s{sCNT}, 2
    s_cbranch_scc0 L_kg_d
    @stamp m_kg1
    s_branch L_q
    L_kg_d:
    @stamp m_kg2
    v_add_f32 v{dt}, v{dt}, v{dt}
    v_mul_f32 v{dt}, s{sSC}, v{dt}
    s_mul_i32 s{sT0}, s{sM}, {GW}
    s_add_u32 s{sT0}, s{sT0}, {PB}
    v_and_b32 v{c}, 31, v{vL}
    v_lshlrev_b32 v{c}, 2, v{c}
    v_lshrrev_b32 v{d}, 5, v{vL}
    v_lshl_add_u32 v{c}, v{d}, 9, v{c}
    v_add_u32 v{c}, s{sT0}, v{c}
    s_nop 4
    ''')
    for r in (0,1,2,3,4,6,8,9,10,11,12,13,14):
        e(f'v_mul_f32 v{vG+r}, v{vG+r}, v{dt}')
    e(f'v_mov_b32 v{vG+15}, 0')
    for r in (0,1,2,3,4,6,8,9,10,11,12):
        e(f'ds_write_b32 v{c}, v{vG+r} offset:{((r>>2)*8+(r&3))*128}')
    e('s_mov_b32 exec_hi, 0')
    for r in (13,14,15):
        e(f'ds_write_b32 v{c}, v{vG+r} offset:{((r>>2)*8+(r&3))*128}')
    e('s_mov_b64 exec, -1')
    signal(C_G)
    e('@stamp m_kgen')
    e('s_branch L_q1')
    t0=24
    e(f'''
    L_idx:
    v_and_b32 v{t0}, 255, v0
    v_lshlrev_b32 v{t0}, 3, v{t0}
    v_sub_u32 v{t0}, 2047, v{t0}
    v_mov_b32 v{t0+1}, {PB}
    ''')
    for k in range(9):
        e(f'''
        v_subrev_u32 v{a}, {k}, v{t0}
        v_cvt_f32_i32 v{a}, v{a}
        v_cvt_pk_bf16_f32 v{a}, v{a}, v{a}
        v_lshlrev_b32 v{a}, 16, v{a}
        v_cvt_u32_f32 v{a}, v{a}
        v_lshrrev_b32 v{b}, 9, v{a}
        v_cmp_lt_u32 vcc, 0, v{b}
        v_add_u32 v{b}, 15, v{b}
        v_and_b32 v{c}, 7, v{a}
        v_cndmask_b32 v{b}, 0, v{b}, vcc
        v_bfe_u32 v{d}, v{a}, 8, 1
        v_lshl_add_u32 v{c}, v{d}, 3, v{c}
        v_add_u32 v{b}, v{b}, v{c}
        v_bfe_u32 v{d}, v{a}, 3, 5
        v_lshl_add_u32 v{b}, v{b}, 5, v{d}
        ''')
        if k == 8:
            e(f'''
            v_cmp_gt_u32 vcc, 8, v{t0}
            v_mov_b32 v{c}, {27*32}
            v_cndmask_b32 v{b}, v{b}, v{c}, vcc
            ''')
        e(f'v_lshl_add_u32 v{vGI+k}, v{b}, 2, v{t0+1}')
    xa=24; wadr=28; acc=32; QX=40; QW=104
    e(f'''
    L_q:
    s_lshl_b32 s{sT0}, s{sRT}, 14
    v_lshlrev_b32 v{a}, 9, v{vM15}
    v_xor_b32 v{b}, v{vG4}, v{vM15}
    v_lshl_add_u32 v{a}, v{b}, 4, v{a}
    v_add_u32 v{xa}, s{sT0}, v{a}
    v_xor_b32 v{xa+1}, 64, v{xa}
    v_xor_b32 v{xa+2}, 0x80, v{xa}
    v_xor_b32 v{xa+3}, 0xc0, v{xa}
    v_bfe_u32 v{a}, v{vL}, 2, 2                ; r
    v_lshrrev_b32 v{b}, 1, v{a}
    v_and_b32 v{c}, 1, v{vG4}
    v_lshl_add_u32 v{b}, v{c}, 1, v{b}         ; swz
    v_xor_b32 v{b}, s{sHD}, v{b}
    v_lshl_add_u32 v{a}, v{vG4}, 3, v{a}       ; 8g + r
    v_lshlrev_b32 v{a}, 7, v{a}
    v_lshl_add_u32 v{a}, v{b}, 5, v{a}
    v_and_b32 v{b}, 3, v{vL}
    v_lshl_add_u32 v{a}, v{b}, 3, v{a}
    v_add_u32 v{wadr}, 0x8000, v{a}
    ''')
    def qchunk(first):
        def rd(s):
            e(f'ds_read_b64_tr_b16 {v(QW+4*s,2)}, v{wadr} offset:{s*4096}')
            e(f'ds_read_b64_tr_b16 {v(QW+4*s+2,2)}, v{wadr} offset:{s*4096+512}')
            e(f'ds_read_b128 {v(QX+8*s,4)}, v{xa+(s&3)} offset:{(s>>2)*256}')
            e(f'ds_read_b128 {v(QX+8*s+4,4)}, v{xa+(s&3)} offset:{(s>>2)*256+8192}')
        for s in range(3): rd(s)
        for s in range(8):
            if s+3 < 8:
                rd(s+3); e('s_waitcnt lgkmcnt(12)')
            else:
                if s == 5: signal(C_Q0 if first else C_Q1)
                e(f's_waitcnt lgkmcnt({4*(7-s)+1})')
            z = first and s == 0
            e(f'v_mfma_f32_16x16x32_bf16 {v(acc,4)}, {v(QW+4*s,4)}, {v(QX+8*s,4)}, {"0" if z else v(acc,4)}')
            e(f'v_mfma_f32_16x16x32_bf16 {v(acc+4,4)}, {v(QW+4*s,4)}, {v(QX+8*s+4,4)}, {"0" if z else v(acc+4,4)}')
    wait(C_T0, 2)
    e('@stamp m_t0')
    qchunk(True)
    for i in range(4): e(f'v_add_u32 v{xa+i}, 0x10000, v{xa+i}')
    e(f'''
    v_add_u32 v{wadr}, 0x10000, v{wadr}
    @stamp m_q0
    s_cmp_lt_u32 s{sM}, 4
    s_cbranch_scc1 L_kg
    ''')
    wait(C_G, 4)
    wait(C_KVW, 1)
    GA=40
    e(f'''
    v_and_b32 v{c}, 255, v0
    v_lshlrev_b32 v{c}, 4, v{c}
    v_add_u32 v{c}, {KREV}, v{c}
    v_mov_b32 v{a}, 0
    v_mov_b32 v{b}, 0
    v_lshlrev_b32 v{d}, 3, v{vL}
    v_add_u32 v{d}, {KREV+4096}, v{d}
    s_mov_b64 exec, 0xff
    ds_write_b64 v{d}, {v(a,2)}
    ds_write_b64 v{d}, {v(a,2)} offset:{KREV_O}
    ds_write_b64 v{d}, {v(a,2)} offset:{KREV_CH}
    ds_write_b64 v{d}, {v(a,2)} offset:{KREV_CH+KREV_O}
    s_mov_b64 exec, -1
    ''')
    for ch in range(2):
        g0 = GA + 32*ch
        for k in range(9):
            e(f'ds_read_b32 v{g0+k}, v{vGI+k} offset:{ch*2*GW}')
            e(f'ds_read_b32 v{g0+10+k}, v{vGI+k} offset:{ch*2*GW+GW}')
        e('s_waitcnt lgkmcnt(0)')
        for k in range(9): e(f'v_add_f32 v{g0+k}, v{g0+k}, v{g0+10+k}')
        for i in range(4):
            e(f'v_cvt_pk_bf16_f32 v{g0+20+i}, v{g0+2*i}, v{g0+2*i+1}')
            e(f'v_cvt_pk_bf16_f32 v{g0+24+i}, v{g0+2*i+1}, v{g0+2*i+2}')
        e(f'ds_write_b128 v{c}, {v(g0+20,4)} offset:{ch*KREV_CH}')
        e(f'ds_write_b128 v{c}, {v(g0+24,4)} offset:{ch*KREV_CH+KREV_O}')
    signal(C_KREV)
    e('@stamp m_krev')
    e('L_q1:')
    wait(C_T1, 2)
    e('@stamp m_t1')
    qchunk(False)
    NM=16; S0=40; S1=56; P=72; O=80; KF=96; VF=112; ad=14; mx=15; kvf=144; fl=145
    e(f'''
    s_mov_b32 s{sT0}, {f32(0.25*LOG2E)}
    s_mov_b32 s{sFB}, 0
    s_mov_b32 s{sM0}, 0xffff
    s_mov_b32 s{sM0+1}, 0xffff
    s_lshl_b32 s{sT1}, s{sRB}, 1
    s_add_u32 s{sT1}, s{sT1}, s{sRT}
    s_lshl_b32 s{sT1}, s{sT1}, 5
    s_lshl_b32 s{sT2}, s{sCB}, 2
    s_add_u32 s{sT1}, s{sT1}, s{sT2}
    s_add_u32 s{sT1}, s{sT1}, s{sHD}
    s_lshl_b32 s{sT1}, s{sT1}, 10
    s_add_u32 s{sOB}, s{sT1}, {WS_O}
    ''')
    for r in range(8): e(f'v_mul_f32 v{acc+r}, s{sT0}, v{acc+r}')
    e(f'''
    v_cvt_pk_bf16_f32 v{vQ}, v{acc}, v{acc+1}
    v_cvt_pk_bf16_f32 v{vQ+1}, v{acc+2}, v{acc+3}
    v_cvt_pk_bf16_f32 v{vQ+2}, v{acc+4}, v{acc+5}
    v_cvt_pk_bf16_f32 v{vQ+3}, v{acc+6}, v{acc+7}
    v_and_b32 v{a}, 27, v{vL}
    v_cmp_eq_u32 vcc, 16, v{a}
    v_mov_b32 v{b}, 0x3f803f80
    v_permlane16_swap_b32 v{vQ}, v{vQ+2}
    v_permlane16_swap_b32 v{vQ+1}, v{vQ+3}
    v_cndmask_b32 v{VF}, 0, v{b}, vcc
    ''')
    for i in range(1,32): e(f'v_mov_b32 v{VF+i}, v{VF}')
    e('@stamp m_q1')
    wait(C_KV, 1, sleep=0)
    e(f'''
    @stamp m_att0
    s_setprio 1
    s_cmp_ge_u32 s{sM}, 4
    s_cbranch_scc1 L_pr
    s_setprio 3
    L_pr:
    ds_read_b128 {v(KF,4)}, v{vL16}
    s_waitcnt lgkmcnt(0)
    v_mfma_f32_32x32x16_bf16 {v(S0,16)}, {v(KF,4)}, {v(vQ,4)}, 0
    v_max3_f32 v{mx}, v{S0}, v{S0+1}, v{S0+2}
    ''')
    for i in range(3,15,2): e(f'v_max3_f32 v{mx}, v{mx}, v{S0+i}, v{S0+i+1}')
    e(f'''
    v_max_f32 v{mx}, v{mx}, v{S0+15}
    L_setm:
    v_mov_b32 v{a}, v{mx}
    v_permlane32_swap_b32 v{a}, v{mx}
    v_max_f32 v{mx}, v{mx}, v{a}
    ''')
    for i in range(16): e(f'v_sub_f32 v{NM+i}, 0, v{mx}')
    for i in range(16): e(f'v_mov_b32 v{O+i}, 0')
    for i in range(4): e(f'v_mov_b32 v{P+4+i}, 0')
    e(f'''
    v_mov_b32 v{ad}, v{vL16}
    v_add_u32 v{kvf}, {4*(C_KV+1)}, v{vC}
    ds_read_b128 {v(KF+8,4)}, v{ad}
    ds_read_b128 {v(KF,4)}, v{ad} offset:2048
    ds_read_b128 {v(KF+4,4)}, v{ad} offset:4096
    s_mov_b64 exec, s[{sM0}:{sM0+1}]
    ds_read_b128 {v(VF,4)}, v{ad} offset:1024
    ds_read_b128 {v(VF+4,4)}, v{ad} offset:1280
    ds_read_b128 {v(VF+8,4)}, v{ad} offset:3072
    ds_read_b128 {v(VF+12,4)}, v{ad} offset:3328
    ds_read_b128 {v(VF+28,4)}, v{ad} offset:1280
    s_mov_b64 exec, -1
    s_mov_b32 s{sCNT}, 0
    s_waitcnt lgkmcnt(7)
    v_mfma_f32_32x32x16_bf16 {v(S0,16)}, {v(KF+8,4)}, {v(vQ,4)}, {v(NM,16)}
    L_chk:
    ''')
    wait(0, 1, addr=kvf, sleep=0)
    e(f'''
    L_chk_ok:
    v_add_u32 v{kvf}, 4, v{kvf}
    .p2align 6
    L_loop:
    ''')
    def step(tt):
        par = tt & 1; pr = tt >> 1; st = pr & 1
        Sc = S0 if par == 0 else S1
        Sn = S1 if par == 0 else S0
        Kn = KF + 8*st + 4*par
        Vc = VF + 16*st + 8*par
        Vp = (VF + 16*st + 4) if par == 1 else (VF + 16*(1-st) + 12)
        ex = lambda i: e(f'v_exp_f32 v{Sc+i}, v{Sc+i}')
        cv = lambda i: e(f'v_cvt_pk_bf16_f32 v{P+i}, v{Sc+2*i}, v{Sc+2*i+1}')
        if par == 0: e('s_waitcnt lgkmcnt(0)')
        e(f'v_mfma_f32_32x32x16_bf16 {v(Sn,16)}, {v(Kn,4)}, {v(vQ,4)}, {v(NM,16)}')
        ex(0); ex(1); ex(2); ex(3)
        e(f'v_mfma_f32_32x32x16_bf16 {v(O,16)}, {v(Vp,4)}, {v(P+4,4)}, {v(O,16)}')
        if par == 0:
            o = 1-st
            e(f'ds_read_b128 {v(KF+8*o,4)}, v{ad} offset:{(tt+3)*2048}')
            e(f'ds_read_b128 {v(KF+8*o+4,4)}, v{ad} offset:{(tt+4)*2048}')
            e(f's_mov_b64 exec, s[{sM0}:{sM0+1}]')
            e(f'ds_read_b128 {v(VF+16*o,4)}, v{ad} offset:{(tt+2)*2048+1024}')
            e(f'ds_read_b128 {v(VF+16*o+4,4)}, v{ad} offset:{(tt+2)*2048+1280}')
            e(f'ds_read_b128 {v(VF+16*o+8,4)}, v{ad} offset:{(tt+3)*2048+1024}')
            e(f'ds_read_b128 {v(VF+16*o+12,4)}, v{ad} offset:{(tt+3)*2048+1280}')
            e(f's_mov_b64 exec, -1')
            if tt == 4: e(f'ds_read_b32 v{fl}, v{kvf}')
        if tt == 7: e(f'v_readfirstlane_b32 s{sWT}, v{fl}')
        cv(0); ex(4); ex(5); cv(1); ex(6); ex(7); cv(2); ex(8); cv(3); ex(9); ex(10)
        e(f'v_mfma_f32_32x32x16_bf16 {v(O,16)}, {v(Vc,4)}, {v(P,4)}, {v(O,16)}')
        ex(11); cv(4); ex(12); ex(13); cv(5); ex(14); ex(15); cv(6); cv(7)
    for tt in range(8): step(tt)
    e(f'''
    v_add_u32 v{ad}, 0x4000, v{ad}
    s_add_u32 s{sCNT}, s{sCNT}, 1
    s_cmp_ge_u32 s{sCNT}, 7
    s_cbranch_scc1 L_last
    s_cmp_ge_u32 s{sWT}, 1
    s_cbranch_scc1 L_chk_ok
    s_branch L_chk
    L_last:
    s_setprio 0
    s_cmp_eq_u32 s{sCNT}, 7
    s_cbranch_scc1 L_loop
    v_mfma_f32_32x32x16_bf16 {v(O,16)}, {v(VF+28,4)}, {v(P+4,4)}, {v(O,16)}
    s_mov_b32 s{sT0}, {f32(2.0**40)}
    s_waitcnt lgkmcnt(0)
    s_nop 9
    v_rcp_f32 v{S0}, v{O+8}
    v_cmp_nlt_f32 vcc, v{O+8}, s{sT0}
    ''')
    for i in range(8): e(f'v_mul_f32 v{O+i}, v{O+i}, v{S0}')
    e(f'''
    v_add_f32 v{S0+2}, v{O+3}, v{O+4}
    v_add_f32 v{S0+3}, v{O+5}, v{O+6}
    v_add_f32 v{S0+2}, v{S0+2}, v{O+7}
    v_add_f32 v{S0+3}, v{S0+3}, v{O}
    v_add_f32 v{S0+2}, v{S0+2}, v{O+1}
    v_add_f32 v{S0+3}, v{S0+3}, v{O+2}
    v_add_f32 v{S0+2}, v{S0+2}, v{S0+3}
    v_mov_b32 v{S0+4}, 0x207
    v_cmp_class_f32 s[{sM1}:{sM1+1}], v{S0+2}, v{S0+4}
    s_or_b64 vcc, vcc, s[{sM1}:{sM1+1}]
    s_cbranch_vccz L_att_ok
    s_cmp_lg_u32 s{sFB}, 0
    s_cbranch_scc1 L_att_ok
    s_mov_b32 s{sFB}, 1
    v_mov_b32 v{ad}, v{vL16}
    v_mov_b32 v{mx}, 0xff7fffff
    s_mov_b32 s{sCNT}, 0
    L_maxloop:
    ds_read_b128 {v(KF,4)}, v{ad}
    v_add_u32 v{ad}, 2048, v{ad}
    s_waitcnt lgkmcnt(0)
    v_mfma_f32_32x32x16_bf16 {v(S0,16)}, {v(KF,4)}, {v(vQ,4)}, 0
    ''')
    for i in range(0,16,2): e(f'v_max3_f32 v{mx}, v{mx}, v{S0+i}, v{S0+i+1}')
    e(f'''
    s_add_u32 s{sCNT}, s{sCNT}, 1
    s_cmp_lt_u32 s{sCNT}, 64
    s_cbranch_scc1 L_maxloop
    s_branch L_setm
    L_att_ok:
    @stamp m_att1
    ''')
    wait(C_ST, 1, sleep=4)
    e(f's_mov_b32 s{sT0}, 0xfffffffe')
    for i in range(4):
        e(f'v_cvt_pk_bf16_f32 v{P+i}, v{O+2*i}, v{O+2*i+1}')
        e(f'v_min_u32 v{P+i}, s{sT0}, v{P+i}')
    e(f'buffer_store_dwordx4 {v(P,4)}, v{vL16}, {srd(S_WS)}, s{sOB} offen sc1')
    e(f'''
    s_lshl_b32 s{sT0}, s{sRB}, 1
    s_and_b32 s{sT1}, s{sCB}, 1
    s_add_u32 s{sT0}, s{sT0}, s{sT1}
    s_lshl_b32 s{sT0}, s{sT0}, 15
    s_lshl_b32 s{sT1}, s{sM}, 12
    s_add_u32 s{sT0}, s{sT0}, s{sT1}
    s_add_u32 s{sT0}, s{sT0}, {WS_O}
    v_add_u32 v{a}, s{sT1}, v{vL16}
    s_lshl_b32 s{sT1}, s{sM}, 2
    v_add_u32 v{b}, s{sT1}, v{vC}
    ''')
    e('s_barrier')
    e('@stamp m_all')
    e('L_opoll:')
    for i in range(4):
        e(f'buffer_load_dwordx4 {v(S0+4*i,4)}, v{vL16}, {srd(S_WS)}, s{sT0} offen offset:{i*1024} sc1')
    e(f's_waitcnt vmcnt(0)')
    e(f'v_max3_u32 v{c}, v{S0}, v{S0+1}, v{S0+2}')
    for i in range(3,15,2): e(f'v_max3_u32 v{c}, v{c}, v{S0+i}, v{S0+i+1}')
    e(f'''
    v_max_u32 v{c}, v{c}, v{S0+15}
    v_cmp_eq_u32 vcc, -1, v{c}
    s_cbranch_vccz L_ook
    s_sub_u32 s{sTO}, s{sTO}, 16
    s_cbranch_scc0 L_opoll
    s_mov_b32 s{sTO}, 0
    L_ook:
    ''')
    for i in range(4):
        e(f'ds_write_b128 v{a}, {v(S0+4*i,4)} offset:{i*1024}')
    e('s_waitcnt lgkmcnt(0)')
    e('s_barrier')
    e('@stamp m_end')
    finish()
    e('''
    L_end:
    s_endpgm
    ''')
    return e.text()

HEAD = open('cdna_kernels/%s.s.ref' % NAME).read().split('; Override launch geometry')[0]
def full():
    body = gen()
    s = HEAD
    s += f'; @launch grid=(256,1,1) block=(768,1,1) lds={LDS_BYTES}\n'
    s += f'''.amdgcn_target "amdgcn-amd-amdhsa--gfx950"
.text
.globl {NAME}_kernel
.p2align 8
.type {NAME}_kernel,@function
{NAME}_kernel:
{body}
.section .rodata,"a"
.p2align 6
.amdhsa_kernel {NAME}_kernel
  .amdhsa_next_free_vgpr 168
  .amdhsa_next_free_sgpr 102
  .amdhsa_accum_offset 168
  .amdhsa_group_segment_fixed_size 0
  .amdhsa_kernarg_size 128
  .amdhsa_user_sgpr_count 2
  .amdhsa_user_sgpr_kernarg_segment_ptr 1
  .amdhsa_system_sgpr_workgroup_id_x 1
.end_amdhsa_kernel
'''
    return s
if __name__ == '__main__':
    if len(sys.argv) > 1 and sys.argv[1].startswith('diag'):
        DIAG = 1
        open('dev/%s.s' % sys.argv[1], 'w').write(full())
        import json; json.dump(gen.e.stamps, open('diag.json','w'))
    else:
        out = sys.argv[1] if len(sys.argv) > 1 else f'cdna_kernels/{NAME}.s'
        open(out, 'w').write(full())
```

```python
import sys, struct, math
from asmlib import Asm

NAME = 'gated_mix__grouped_kv_mqa__ssm_conv_s4d__prompt'
def f32(x): return '0x%08x' % struct.unpack('<I', struct.pack('<f', x))[0]
def f32v(x): return struct.unpack('<f', struct.pack('<f', x))[0]

WS_KV = 0x0
WS_G  = 0x20000
FST = 0x1100
WS_F1 = 0x30000
WS_F2 = 0x40000
WS_GEN = 0x50000
LDELTA = 0x80000
WS_O  = 0x100000
WS_B  = 0x400000
WS_XT = 0x600000
WS_DIAG = 0x800000
WS_SIZE = 0x900000
POOL = 131072
PA = 0; XH = 0x4000; XFL = 0xC000; WQ = 0x14000
KREV = POOL; KREV_CH = 8320; KREV_O = 4160
PB = POOL + 16640; GW = 2592
XC = PB; XC_CH = 4608
PC = POOL + 31488
PG = PC + 256
LDS_BYTES = 163840
C_ISS,C_T0,C_T1,C_QH,C_QA,C_G,C_T2,C_KREV,C_ST,C_KVOK,C_KISS = range(11)
C_XT=11; C_CR=13; C_CW=15; C_CONV=17; C_GH=18; C_KV=24

P_X=4; P_WQ=6; P_WK=8; P_WV=10; P_WO=12; P_LAR=16; P_AIM=18; P_CR=20; P_CI=22; P_LDT=24; P_DSK=26; P_GATE=28; P_OUT=30; P_DBG=32; P_WS=34
S_X=36; S_WQ=40; S_WKV=44; S_WS=48; S_OUT=52; S_GATE=56; S_DBG=60; S_WO=64
sW=68; sRB=69; sCB=70; sD0=71; sLDT=72; sDSK=73; sT0=74; sT1=75; sT2=76; sT3=77; sRT=78; sHD=79; sM=80; sCNT=81; sFB=82; sTO=83
sM0=84; sM1=86
sOB=88; sT4=89; sT5=90; sSC=91; sSCI=92; sWT=93
sCH=96; sHF=97; sKAP=98; sNON=99; sPOS=100; sXCD=101

def srd(n): return f's[{n}:{n+3}]'
def sp(n): return f's[{n}:{n+1}]'
def v(n, k=1): return f'v{n}' if k == 1 else f'v[{n}:{n+k-1}]'

LOG2E = 1.4426950408889634
L2E_HI = f32v(LOG2E); L2E_LO = LOG2E - L2E_HI
INV2PI = 1.0/(2*math.pi); I2P_HI = f32v(INV2PI); I2P_LO = INV2PI - I2P_HI

DIAG = False
def gen():
    e = Asm(DIAG)
    gen.e = e
    vL=1; vL16=2; vC=3; vOne=166; vWT=165
    uid = [0]
    def wait(c, target, addr=vC, sleep=1):
        uid[0] += 1; u = uid[0]
        e(f'''
        L_wt{u}:
        ds_read_b32 v{vWT}, v{addr} offset:{4*c}
        s_waitcnt lgkmcnt(0)
        v_readfirstlane_b32 s{sWT}, v{vWT}
        s_cmp_ge_u32 s{sWT}, {target}
        s_cbranch_scc1 L_wd{u}
        s_sleep {sleep}
        s_sub_u32 s{sTO}, s{sTO}, 1
        s_cbranch_scc0 L_wt{u}
        s_mov_b32 s{sTO}, 0
        L_wd{u}:
        ''')
    def signal(c, addr=vC):
        e(f'''
        s_mov_b64 exec, 1
        ds_add_u32 v{addr}, v{vOne} offset:{4*c}
        s_mov_b64 exec, -1
        ''')
    def mk(S, P, nbytes):
        e(f'''
        s_mov_b32 s{S}, s{P}
        s_and_b32 s{S+1}, s{P+1}, 0xffff
        s_mov_b32 s{S+2}, {nbytes}
        s_mov_b32 s{S+3}, 0x00020000
        ''')
    def finish():
        if DIAG == 1:
            e(f'''
            @rt 63
            s_getreg_b32 s94, hwreg(HW_REG_XCC_ID)
            v_writelane_b32 v167, s94, 62
            v_writelane_b32 v167, s{sTO}, 61
            s_mul_i32 s{sT0}, s2, 3072
            s_lshl_b32 s{sT1}, s{sW}, 8
            s_add_u32 s{sT0}, s{sT0}, s{sT1}
            s_add_u32 s{sT0}, s{sT0}, {WS_DIAG}
            v_lshlrev_b32 v{vWT}, 2, v{vL}
            buffer_store_dword v167, v{vWT}, {srd(S_WS)}, s{sT0} offen
            ''')
        e('s_endpgm')
    vM15=4; vG4=5; a=6; b=7; c=8; d=9
    e(f'''
    s_cmp_ge_u32 s2, 256
    s_cbranch_scc1 L_end
    s_load_dwordx16 s[4:19], s[0:1], 0
    s_load_dwordx16 s[20:35], s[0:1], 64
    @stamp start
    @rt 60
    v_and_b32 v{vL}, 63, v0
    v_lshrrev_b32 v{a}, 6, v0
    v_lshlrev_b32 v{vL16}, 4, v{vL}
    v_readfirstlane_b32 s{sW}, v{a}
    v_mov_b32 v{vC}, {PC}
    v_lshl_add_u32 v{a}, v{vL}, 2, v{vC}
    v_mov_b32 v{b}, 0
    ds_write_b32 v{a}, v{b}
    v_mov_b32 v{vOne}, 1
    s_mov_b32 s{sTO}, 0x100000
    s_and_b32 s{sT0}, s2, 7
    s_lshr_b32 s{sT1}, s2, 3
    s_lshr_b32 s{sT2}, s{sT1}, 3
    s_lshl_b32 s{sRB}, s{sT0}, 2
    s_add_u32 s{sRB}, s{sRB}, s{sT2}
    s_and_b32 s{sCB}, s{sT1}, 7
    s_lshl_b32 s{sD0}, s{sT0}, 6
    s_lshl_b32 s{sT1}, s{sT1}, 1
    s_add_u32 s{sD0}, s{sD0}, s{sT1}
    s_lshr_b32 s{sKAP}, s{sCB}, 2
    s_mov_b32 s{sXCD}, s{sT0}
    v_and_b32 v{vM15}, 15, v{vL}
    v_lshrrev_b32 v{vG4}, 4, v{vL}
    s_waitcnt lgkmcnt(0)
    s_barrier
    ''')
    mk(S_X, P_X, 2097152)
    mk(S_WS, P_WS, WS_SIZE)
    mk(S_WQ, P_WQ, 524288)
    mk(S_GATE, P_GATE, 1024)
    e(f'''
    s_bitcmp1_b32 s{sCB}, 0
    s_cselect_b32 s{S_WKV}, s{P_WV}, s{P_WK}
    s_cselect_b32 s{S_WKV+1}, s{P_WV+1}, s{P_WK+1}
    s_and_b32 s{S_WKV+1}, s{S_WKV+1}, 0xffff
    s_mov_b32 s{S_WKV+2}, 16384
    s_mov_b32 s{S_WKV+3}, 0x00020000
    s_lshl_b32 s{sT4}, s{sD0}, 1
    s_load_dword s{sLDT}, {sp(P_LDT)}, s{sT4}
    s_load_dword s{sDSK}, {sp(P_DSK)}, s{sT4}
    s_cmp_ge_u32 s{sW}, 4
    s_cbranch_scc1 L_main
    s_setprio 3
    v_mov_b32 v11, {WS_GEN}
    buffer_load_dword v164, v11, {srd(S_WS)}, 0 offen sc1
    s_cmp_eq_u32 s{sW}, 1
    s_cbranch_scc1 L_h1
    s_cmp_ge_u32 s{sW}, 2
    s_cbranch_scc1 L_h23
    ''')
    XF=16; WF=80; GF=96; dk=112; dg=116
    e(f'''
    s_lshl_b32 s{sT0}, s{sRB}, 6
    s_lshr_b32 s{sT1}, s{sCB}, 1
    s_lshl_b32 s{sT1}, s{sT1}, 4
    s_add_u32 s{sT0}, s{sT0}, s{sT1}
    s_lshl_b32 s{sT0}, s{sT0}, 10             ; row0*1024
    v_lshlrev_b32 v{a}, 10, v{vM15}
    v_lshl_add_u32 v{a}, v{vG4}, 4, v{a}      ; (l&15)*1024 + g*16
    s_mov_b32 m0, {PG}
    s_mov_b32 s{sT1}, 0
    buffer_load_dwordx4 v{vL16}, {srd(S_GATE)}, 0 offen lds
    ''')
    for s in range(16):
        e(f'''
        s_mov_b32 m0, {PA + (s//4)*4096}
        buffer_load_dwordx4 {v(XF+4*s,4)}, v{a}, {srd(S_X)}, s{sT0} offen offset:{64*s}
        buffer_load_dwordx4 v{vL16}, {srd(S_WKV)}, s{sT1} offen offset:{(s%4)*1024} lds
        ''')
        if s % 4 == 3: e(f's_add_u32 s{sT1}, s{sT1}, 4096')
    e(f'''
    @stamp h_issued
    v_lshlrev_b32 v{a}, 8, v{vG4}
    v_lshl_add_u32 v{a}, v{vM15}, 3, v{a}
    v_add_u32 v{a}, {PA}, v{a}                ; PA + g*256 + (l&15)*8
    v_lshlrev_b32 v{b}, 4, v{vG4}
    v_add_u32 v{b}, {PG}, v{b}
    s_lshl_b32 s{sT0}, s{sRB}, 2
    s_lshr_b32 s{sT1}, s{sCB}, 1
    s_add_u32 s{sT0}, s{sT0}, s{sT1}          ; kb
    s_lshr_b32 s{sT1}, s{sT0}, 1
    s_lshl_b32 s{sT1}, s{sT1}, 11
    s_and_b32 s{sT2}, s{sT0}, 1
    s_lshl_b32 s{sT2}, s{sT2}, 8
    s_add_u32 s{sT1}, s{sT1}, s{sT2}
    s_and_b32 s{sT2}, s{sCB}, 1
    s_lshl_b32 s{sT2}, s{sT2}, 10
    s_add_u32 s{sT1}, s{sT1}, s{sT2}
    s_lshl_b32 s{sT0}, s{sT0}, 6
    s_add_u32 s{sT0}, s{sT0}, {WS_G}
    v_and_b32 v{c}, 1, v{vG4}
    v_lshrrev_b32 v{d}, 1, v{vG4}
    s_add_u32 s{sT2}, s{sT1}, {LDELTA}
    s_mov_b32 s{sT3}, {LDELTA}
    s_mul_i32 s{sT4}, s{sXCD}, {FST}
    s_lshr_b32 s{sT5}, s2, 3
    s_lshl_b32 s{sT5}, s{sT5}, 2
    s_add_u32 s{sT4}, s{sT4}, s{sT5}
    s_add_u32 s{sT4}, s{sT4}, {WS_F1}
    v_mov_b32 v11, s{sT4}
    s_waitcnt vmcnt(33) lgkmcnt(0)
    ''')
    def nonce():
        e(f'''
        v_readfirstlane_b32 s{sNON}, v164
        s_mul_i32 s{sNON}, s{sNON}, 0x9e3779b1
        s_add_u32 s{sNON}, s{sNON}, 0x7f4a7c15
        ''')
    nonce()
    e(f'''
    s_getreg_b32 s{sT4}, hwreg(HW_REG_XCC_ID, 0, 4)
    s_xor_b32 s{sT4}, s{sT4}, s{sNON}
    v_mov_b32 v12, s{sT4}
    s_bitcmp1_b32 s{sCB}, 0
    s_cbranch_scc1 L_kv_v
    ''')
    def kvloop(isv):
        for s in range(16):
            bi = s % 4
            e(f's_waitcnt vmcnt({2*(15-s)})')
            e(f'ds_read_b64_tr_b16 {v(WF+4*bi,2)}, v{a} offset:{s*1024}')
            e(f'ds_read_b64_tr_b16 {v(WF+4*bi+2,2)}, v{a} offset:{s*1024+128}')
            if not isv: e(f'ds_read_b128 {v(GF+4*bi,4)}, v{b} offset:{s*64}')
            if s >= 1:
                p = s-1; pb = p % 4
                e(f's_waitcnt lgkmcnt({2 if isv else 3})')
                mm(p, pb, isv)
        e('s_waitcnt lgkmcnt(0)')
        mm(15, 3, isv)
    def mm(p, pb, isv):
        cc = '0' if p == 0 else v(dk,4)
        if isv:
            e(f'v_mfma_f32_16x16x32_bf16 {v(dk,4)}, {v(XF+4*p,4)}, {v(WF+4*pb,4)}, {cc}')
        else:
            e(f'v_mfma_f32_16x16x32_bf16 {v(dk,4)}, {v(WF+4*pb,4)}, {v(XF+4*p,4)}, {cc}')
            e(f'v_mfma_f32_16x16x32_bf16 {v(dg,4)}, {v(GF+4*pb,4)}, {v(XF+4*p,4)}, {"0" if p==0 else v(dg,4)}')
    kvloop(False)
    e(f'''
    v_lshlrev_b32 v{a}, 9, v{d}
    v_lshl_add_u32 v{a}, v{c}, 3, v{a}        ; K: (g>>1)*512 + (g&1)*8
    v_lshl_add_u32 v{a}, v{vM15}, 4, v{a}
    v_lshlrev_b32 v{b}, 2, v{vL}
    v_cvt_pk_bf16_f32 v{dk}, v{dk}, v{dk+1}
    v_cvt_pk_bf16_f32 v{dk+1}, v{dk+2}, v{dk+3}
    buffer_store_dwordx2 {v(dk,2)}, v{a}, {srd(S_WS)}, s{sT2} offen
    buffer_store_dwordx2 {v(dk,2)}, v{a}, {srd(S_WS)}, s{sT1} offen sc1
    v_cvt_pk_bf16_f32 v{dg}, v{dg}, v{dg}
    v_lshlrev_b32 v{dg}, 16, v{dg}
    v_mul_f32 v{dg}, {f32(-LOG2E)}, v{dg}
    v_exp_f32 v{dg}, v{dg}
    v_add_f32 v{dg}, 1.0, v{dg}
    v_rcp_f32 v{dg}, v{dg}
    v_cvt_pk_bf16_f32 v{dg}, v{dg}, v{dg}
    v_lshlrev_b32 v{dg}, 16, v{dg}
    s_mov_b64 exec, 1
    s_waitcnt vmcnt(1)
    buffer_store_dword v12, v11, {srd(S_WS)}, s{sT3} offen
    s_mov_b64 exec, 0xffff
    buffer_store_dword v{dg}, v{b}, {srd(S_WS)}, s{sT0} offen sc1
    s_mov_b64 exec, -1
    s_branch L_kv_d
    L_kv_v:
    ''')
    kvloop(True)
    e(f'''
    v_lshlrev_b32 v{a}, 9, v{c}
    v_lshl_add_u32 v{a}, v{d}, 3, v{a}        ; V: (g&1)*512 + (g>>1)*8
    v_lshl_add_u32 v{a}, v{vM15}, 4, v{a}
    v_cvt_pk_bf16_f32 v{dk}, v{dk}, v{dk+1}
    v_cvt_pk_bf16_f32 v{dk+1}, v{dk+2}, v{dk+3}
    buffer_store_dwordx2 {v(dk,2)}, v{a}, {srd(S_WS)}, s{sT2} offen
    buffer_store_dwordx2 {v(dk,2)}, v{a}, {srd(S_WS)}, s{sT1} offen sc1
    s_mov_b64 exec, 1
    s_waitcnt vmcnt(1)
    buffer_store_dword v12, v11, {srd(S_WS)}, s{sT3} offen
    s_mov_b64 exec, -1
    L_kv_d:
    @stamp h_a
    ''')
    signal(C_KV+8)
    e(f'''
    s_mov_b64 exec, 1
    s_waitcnt vmcnt(0)
    buffer_store_dword v12, v11, {srd(S_WS)}, 0 offen sc1
    s_mov_b64 exec, -1
    @stamp h_b
    ''')
    def gpoll(lbl, sbase, sleep):
        e(f'''
        v_and_b32 v{a}, 31, v{vL}
        v_lshlrev_b32 v{a}, 2, v{a}
        L_poll{lbl}:
        buffer_load_dword v{b}, v{a}, {srd(S_WS)}, s{sbase} offen sc1
        s_waitcnt vmcnt(0)
        v_xor_b32 v{b}, s{sNON}, v{b}
        v_cmp_lt_u32 vcc, 15, v{b}
        s_cbranch_vccz L_polled{lbl}
        s_sleep {sleep}
        s_sub_u32 s{sTO}, s{sTO}, 16
        s_cbranch_scc0 L_poll{lbl}
        s_mov_b32 s{sTO}, 0
        L_polled{lbl}:
        ''')
    e(f's_mov_b32 s{sPOS}, 2')
    e('s_branch L_h023')
    def xpart(hog):
        e(f'''
        s_lshl_b32 s{sT0}, s{sRB}, 16
        s_add_u32 s{sT0}, s{sT0}, {32768 if hog else 0}
        s_mov_b32 s{sT1}, {XH if hog else XFL}
        s_mov_b32 s{sCNT}, 0
        L_xp{hog}:
        ''')
        for j in range(16):
            e(f'''
            s_mov_b32 m0, s{sT1}
            v_xor_b32 v{a}, {16*j}, v{vL16}
            buffer_load_dwordx4 v{a}, {srd(S_X)}, s{sT0} offen lds
            s_add_u32 s{sT1}, s{sT1}, 1024
            s_add_u32 s{sT0}, s{sT0}, 1024
            ''')
        e(f'''
        s_add_u32 s{sCNT}, s{sCNT}, 1
        s_cmp_lt_u32 s{sCNT}, 2
        s_cbranch_scc1 L_xp{hog}
        ''')
    e('L_h1:')
    xpart(1)
    signal(C_ISS)
    e('@stamp h_issued')
    TR=16; T2=24
    e(f'''
    v_bfe_u32 v{a}, v{vL}, 2, 2               ; r
    v_lshl_add_u32 v{b}, v{vG4}, 3, v{a}      ; row = 8g + r
    v_and_b32 v{c}, 15, v{b}
    s_lshl_b32 s{sT4}, s{sCB}, 3
    v_bfe_u32 v{d}, v{vL}, 1, 1
    v_or_b32 v{d}, s{sT4}, v{d}               ; c16 (q = 0)
    v_xor_b32 v{d}, v{d}, v{c}
    v_lshlrev_b32 v{d}, 4, v{d}
    v_lshl_add_u32 v{d}, v{b}, 10, v{d}
    v_and_b32 v{a}, 1, v{vL}
    v_lshl_add_u32 v{d}, v{a}, 3, v{d}
    ''')
    e('s_waitcnt vmcnt(0) lgkmcnt(0)')
    e('@stamp h_a')
    signal(C_T0)
    def xtr(hog):
        for q in range(4):
            e(f'v_xor_b32 v{a}, {32*q}, v{d}')
            e(f'v_xor_b32 v{b}, {(32*q) ^ 64}, v{d}')
            e(f'ds_read_b64_tr_b16 {v(T2+8*q+4*hog,2)}, v{a} offset:{XH if hog else XFL}')
            e(f'ds_read_b64_tr_b16 {v(T2+8*q+4*hog+2,2)}, v{b} offset:{(XH if hog else XFL)+4096}')
    xtr(1)
    signal(C_QH)
    wait(C_ISS, 3, sleep=1)
    wait(C_G, 4, sleep=1)
    xpart(0)
    e('@stamp h_b')
    nonce()
    e(f'''
    v_mov_b32 v{TR}, -1
    v_mov_b32 v{TR+1}, -1
    v_mov_b32 v{TR+2}, -1
    v_mov_b32 v{TR+3}, -1
    s_lshl_b32 s{sT0}, s{sRB}, 16
    s_lshl_b32 s{sT1}, s{sCB}, 12
    s_add_u32 s{sT0}, s{sT0}, s{sT1}
    s_add_u32 s{sT0}, s{sT0}, {WS_O}
    s_add_u32 s{sT1}, s{sT0}, 32768
    s_lshl_b32 s{sT2}, s{sD0}, 12
    s_add_u32 s{sT2}, s{sT2}, {WS_B}
    s_add_u32 s{sT3}, s{sT2}, 4096
    v_lshlrev_b32 v{c}, 12, v{vM15}
    v_lshl_add_u32 v{c}, v{vG4}, 4, v{c}
    s_lshl_b32 s{sT4}, s{sCB}, 18
    s_lshl_b32 s{sT5}, s{sRB}, 7
    s_add_u32 s{sT4}, s{sT4}, s{sT5}
    s_add_u32 s{sT4}, s{sT4}, {WS_XT}
    s_waitcnt vmcnt(0)
    ''')
    signal(C_T2)
    e('@stamp h_c')
    xtr(0)
    signal(C_QA)
    wait(C_KISS, 3, sleep=1)
    for q in range(8):
        e(f'buffer_store_dwordx4 {v(T2+4*q,4)}, v{c}, {srd(S_WS)}, s{sT4} offen offset:{(q&1)*64} sc1')
        if q & 1: e(f's_add_u32 s{sT4}, s{sT4}, 65536')
    for sr in (sT0, sT1, sT2, sT3):
        for j in range(4):
            e(f'buffer_store_dwordx4 {v(TR,4)}, v{vL16}, {srd(S_WS)}, s{sr} offen offset:{j*1024} sc1')
    e(f'''
    s_mul_i32 s{sT0}, s{sCB}, {FST}
    s_lshl_b32 s{sT1}, s{sRB}, 2
    s_add_u32 s{sT0}, s{sT0}, s{sT1}
    s_add_u32 s{sT0}, s{sT0}, {WS_F2}
    v_mov_b32 v11, s{sT0}
    v_mov_b32 v{a}, s{sNON}
    s_mov_b64 exec, 1
    s_waitcnt vmcnt(0)
    buffer_store_dword v{a}, v11, {srd(S_WS)}, 0 offen sc1
    s_mov_b64 exec, -1
    ''')
    signal(C_ST)
    e('s_branch L_hkvd')
    e('L_h23:')
    e(f'''
    v_lshrrev_b32 v{a}, 3, v{vL}
    v_lshlrev_b32 v{a}, 10, v{a}
    v_and_b32 v{b}, 7, v{vL}
    v_bfe_u32 v{c}, v{vL}, 4, 1
    v_lshlrev_b32 v{c}, 1, v{c}
    v_xor_b32 v{b}, v{b}, v{c}
    v_lshl_add_u32 v{c}, v{b}, 4, v{a}
    v_xor_b32 v{d}, 64, v{c}
    s_sub_u32 s{sPOS}, s{sW}, 1               ; 1 or 2
    s_lshl_b32 s{sT0}, s{sPOS}, 2
    v_add_u32 v10, s{sT0}, v{vC}
    ''')
    wait(C_ISS, f's{sPOS}', sleep=1)
    e(f'''
    s_and_b32 s{sT2}, s{sW}, 1
    s_lshl_b32 s{sT0}, s{sT2}, 18
    s_lshl_b32 s{sT1}, s{sCB}, 7
    s_add_u32 s{sT0}, s{sT0}, s{sT1}
    s_lshl_b32 s{sT1}, s{sT2}, 15
    s_add_u32 s{sT1}, s{sT1}, {WQ}
    s_mov_b32 s{sCNT}, 0
    L_wp:
    ''')
    for j in range(4):
        e(f'''
        s_mov_b32 m0, s{sT1}
        s_add_u32 s{sT1}, s{sT1}, 1024
        buffer_load_dwordx4 v{d if j&1 else c}, {srd(S_WQ)}, s{sT0} offen lds
        s_add_u32 s{sT0}, s{sT0}, 8192
        ''')
    e(f'''
    s_add_u32 s{sCNT}, s{sCNT}, 1
    s_cmp_lt_u32 s{sCNT}, 8
    s_cbranch_scc1 L_wp
    ''')
    signal(C_ISS)
    e('@stamp h_issued')
    e('s_waitcnt vmcnt(0)')
    signal(C_ISS, addr=10)
    e('@stamp h_a')
    nonce()
    e(f's_sub_u32 s{sPOS}, s{sPOS}, 1')
    e('L_h023:')
    e(f'''
    L_kvl:
    s_add_u32 s{sT1}, s{sXCD}, s{sPOS}
    s_and_b32 s{sT1}, s{sT1}, 7
    s_mul_i32 s{sT2}, s{sT1}, {FST}
    s_add_u32 s{sT2}, s{sT2}, {WS_F1}
    s_lshl_b32 s{sT1}, s{sT1}, 14
    s_cmp_ge_u32 s{sPOS}, 3
    s_cbranch_scc1 L_kvp
    s_cmp_eq_u32 s{sPOS}, 0
    s_cbranch_scc0 L_kvw1
    ''')
    wait(C_KV+8, 1, sleep=1)
    e(f'''
    s_getreg_b32 s{sT3}, hwreg(HW_REG_XCC_ID, 0, 4)
    s_xor_b32 s{sT3}, s{sT3}, s{sNON}
    s_add_u32 s{sT4}, s{sT2}, {LDELTA}
    s_mov_b32 s{sCNT}, 0
    v_and_b32 v{a}, 31, v{vL}
    v_lshlrev_b32 v{a}, 2, v{a}
    L_lpoll:
    buffer_load_dword v{b}, v{a}, {srd(S_WS)}, s{sT4} offen sc1
    s_waitcnt vmcnt(0)
    v_cmp_ne_u32 vcc, s{sT3}, v{b}
    v_xor_b32 v{b}, s{sNON}, v{b}
    s_cbranch_vccz L_lok
    s_sleep 2
    s_add_u32 s{sCNT}, s{sCNT}, 1
    s_cmp_lt_u32 s{sCNT}, 12
    s_cbranch_scc1 L_lpoll
    s_branch L_kvp
    L_lok:
    s_add_u32 s{sT1}, s{sT1}, {LDELTA}
    @stamp h_p0
    s_branch L_kvgo
    L_kvw1:
    ''')
    wait(C_QH, 5, sleep=1)
    e('L_kvp:')
    gpoll(1, sT2, 6)
    e(f'''
    s_cmp_lt_u32 s{sPOS}, 3
    s_cbranch_scc1 L_kvgo
    ''')
    wait(C_QA, 9, sleep=1)
    e('L_kvgo:')
    wait(C_KISS, f's{sPOS}', sleep=1)
    e(f'''
    s_lshl_b32 s{sT0}, s{sPOS}, 14
    ''')
    for j in range(4):
        e(f's_mov_b32 m0, s{sT0}')
        for i in range(4):
            e(f'buffer_load_dwordx4 v{vL16}, {srd(S_WS)}, s{sT1} offen offset:{i*1024} sc1 lds')
        e(f's_add_u32 s{sT0}, s{sT0}, 4096')
        e(f's_add_u32 s{sT1}, s{sT1}, 4096')
    signal(C_KISS)
    e(f'''
    s_lshl_b32 s{sT0}, s{sPOS}, 2
    v_add_u32 v{d}, s{sT0}, v{vC}
    s_cmp_lg_u32 s{sPOS}, 0
    s_cbranch_scc1 L_noloc
    s_getreg_b32 s{sT1}, hwreg(HW_REG_XCC_ID, 0, 4)
    v_cmp_ne_u32 vcc, s{sT1}, v{b}
    s_and_b32 s{sT0}, s{sRB}, 3
    s_lshl_b32 s{sT0}, s{sT0}, 3
    s_lshr_b32 s{sT0}, vcc_lo, s{sT0}
    s_and_b32 s{sT0}, s{sT0}, 0xff
    s_cbranch_scc1 L_noloc
    ''')
    signal(C_KVOK)
    e('L_noloc:')
    e(f'''
    s_cmp_lg_u32 s{sPOS}, 7
    s_cbranch_scc1 L_no7
    s_mul_i32 s{sT2}, s{sXCD}, {FST}
    s_add_u32 s{sT2}, s{sT2}, {WS_F1}
    ''')
    gpoll(2, sT2, 6)
    e(f'''
    L_no7:
    s_cmp_eq_u32 s{sPOS}, 7
    s_cselect_b32 s{sT0}, 2, 1
    v_mov_b32 v{a}, s{sT0}
    s_mov_b64 exec, 1
    s_waitcnt vmcnt(0)
    ds_add_u32 v{d}, v{a} offset:{4*C_KV}
    s_mov_b64 exec, -1
    ''')
    e(f'''
    s_cmp_ge_u32 s{sPOS}, 3
    s_cbranch_scc1 L_nostamp
    @stamp h_kv0
    L_nostamp:
    s_add_u32 s{sPOS}, s{sPOS}, 3
    s_cmp_lt_u32 s{sPOS}, 8
    s_cbranch_scc1 L_kvl
    L_hkvd:
    @stamp h_kvd
    ''')
    mk(S_WO, P_WO, 524288)
    mk(S_OUT, P_OUT, 2097152)
    e(f'''
    s_lshr_b32 s{sCH}, s{sW}, 1
    s_and_b32 s{sHF}, s{sW}, 1
    s_lshl_b32 s{sT0}, s{sCH}, 2
    v_add_u32 v10, s{sT0}, v{vC}
    ''')
    wait(C_QA, 9, sleep=1)
    e(f'''
    s_cmp_eq_u32 s{sW}, 1
    s_cbranch_scc1 L_sg1
    s_cmp_eq_u32 s{sW}, 2
    s_cbranch_scc1 L_sg2
    s_cmp_eq_u32 s{sW}, 3
    s_cbranch_scc1 L_sg3
    v_mov_b32 v{a}, 0
    v_mov_b32 v{b}, 0
    v_lshlrev_b32 v11, 3, v{vL}
    v_add_u32 v{c}, {KREV+4096}, v11
    v_sub_u32 v11, {KREV+4088}, v11
    v_add_u32 v{d}, {PB+12}, v{vL16}
    s_mov_b64 exec, 0xff
    ds_write_b64 v{c}, {v(a,2)}
    ds_write_b64 v{c}, {v(a,2)} offset:{KREV_O}
    ds_write_b64 v{c}, {v(a,2)} offset:{KREV_CH}
    ds_write_b64 v{c}, {v(a,2)} offset:{KREV_CH+KREV_O}
    s_mov_b64 exec, -1
    ''')
    for ch in range(2):
        g0 = 16 + 16*ch
        for pp in range(2):
            e(f'ds_read_b128 {v(g0+6*pp,4)}, v{d} offset:{(2*ch+pp)*GW+4}')
            e(f'ds_read_b32 v{g0+6*pp+4}, v{d} offset:{(2*ch+pp)*GW}')
    for ch in range(2):
        g0 = 16 + 16*ch
        e(f's_waitcnt lgkmcnt({4 if ch==0 else 2})')
        for k in range(5): e(f'v_add_f32 v{g0+k}, v{g0+k}, v{g0+6+k}')
        e(f'''
        v_cvt_pk_bf16_f32 v{g0+12}, v{g0+3}, v{g0+2}
        v_cvt_pk_bf16_f32 v{g0+13}, v{g0+1}, v{g0}
        v_cvt_pk_bf16_f32 v{g0+14}, v{g0+2}, v{g0+1}
        v_cvt_pk_bf16_f32 v{g0+15}, v{g0}, v{g0+4}
        ds_write_b64 v11, {v(g0+12,2)} offset:{ch*KREV_CH}
        ds_write_b64 v11, {v(g0+14,2)} offset:{ch*KREV_CH+KREV_O}
        ''')
    e('s_branch L_sgd')
    def seg(sg):
        n = 2 << sg
        p0 = 128 << sg
        ta = {1:2, 2:3, 3:5}[sg]; tb = {1:3, 2:6, 3:12}[sg]
        val = lambda r: 0 if r < ta else (1 if r < tb else 2)
        e(f'''
        L_sg{sg}:
        v_lshlrev_b32 v{d}, 3, v{vL}
        v_add_u32 v{d}, {PB+16+(128+128*sg)*4-4}, v{d}
        v_lshlrev_b32 v11, {sg+2}, v{vL}
        v_sub_u32 v11, {KREV+(2047-(p0+n-1))*2}, v11
        ''')
        if sg == 1: e(f'v_cmp_eq_u32 vcc, 0, v{vL}')
        for ch in range(2):
            g0 = 16 + 32*ch
            for pp in range(2):
                e(f'ds_read_b64 {v(g0+4*pp,2)}, v{d} offset:{(2*ch+pp)*GW+4}')
                e(f'ds_read_b32 v{g0+4*pp+2}, v{d} offset:{(2*ch+pp)*GW+12}')
                if sg == 1: e(f'ds_read_b32 v{g0+4*pp+3}, v{d} offset:{(2*ch+pp)*GW}')
        e('s_waitcnt lgkmcnt(0)')
        for ch in range(2):
            g0 = 16 + 32*ch
            for k in range(4 if sg == 1 else 3): e(f'v_add_f32 v{g0+k}, v{g0+k}, v{g0+4+k}')
            if sg == 1: e(f'v_cndmask_b32 v{g0+3}, v{g0}, v{g0+3}, vcc')
            reg = lambda r: (g0+3 if sg == 1 else g0) if r < 0 else g0+val(r)
            E = g0+8; Oc = g0+16
            for i in range(n//2):
                r = n-1-2*i
                e(f'v_cvt_pk_bf16_f32 v{E+i}, v{reg(r)}, v{reg(r-1)}')
                e(f'v_cvt_pk_bf16_f32 v{Oc+i}, v{reg(r-1)}, v{reg(r-2)}')
            for (X, off) in ((E, 0), (Oc, KREV_O)):
                if sg == 1: e(f'ds_write_b64 v11, {v(X,2)} offset:{ch*KREV_CH+off}')
                else:
                    for hh in range(n//8): e(f'ds_write_b128 v11, {v(X+4*hh,4)} offset:{ch*KREV_CH+off+16*hh}')
        if sg < 3: e('s_branch L_sgd')
    for sg in (1,2,3): seg(sg)
    e('L_sgd:')
    signal(C_KREV)
    e('@stamp h_krev')
    e(f'''
    s_mul_i32 s{sT2}, s{sXCD}, {FST}
    s_add_u32 s{sT2}, s{sT2}, {WS_F2}
    ''')
    gpoll(3, sT2, 8)
    e('@stamp h_f2')
    wait(C_KREV, 4, sleep=1)
    e(f'''
    s_mul_i32 s{sT1}, s{sCH}, {XC_CH}
    s_add_u32 s{sT1}, s{sT1}, {XC}
    s_cmp_eq_u32 s{sHF}, 1
    s_cbranch_scc1 L_xpad
    s_add_u32 s{sT1}, s{sT1}, 512
    s_mov_b32 m0, s{sT1}
    s_add_u32 s{sT0}, s{sD0}, s{sCH}
    s_lshl_b32 s{sT0}, s{sT0}, 12
    s_add_u32 s{sT0}, s{sT0}, {WS_XT}
    ''')
    for i in range(4):
        e(f'buffer_load_dwordx4 v{vL16}, {srd(S_WS)}, s{sT0} offen offset:{i*1024} sc1 lds')
    e(f'''
    s_branch L_xpad_d
    L_xpad:
    v_mov_b32 v{a}, 0
    v_mov_b32 v{b}, 0
    v_lshlrev_b32 v{c}, 3, v{vL}
    v_add_u32 v{c}, s{sT1}, v{c}
    ds_write_b64 v{c}, {v(a,2)}
    L_xpad_d:
    s_waitcnt vmcnt(0)
    ''')
    signal(C_XT, addr=10)
    e('@stamp h_kv1')
    aA=12; aB=20; CA=24; CB=56; CACC=120
    e(f'''
    v_lshrrev_b32 v{a}, 1, v{vG4}
    v_lshlrev_b32 v{a}, 4, v{a}
    v_add_u32 v{a}, v{a}, v{vM15}
    v_and_b32 v{b}, 1, v{vG4}
    v_lshlrev_b32 v{c}, 3, v{b}
    v_sub_u32 v{a}, v{a}, v{c}
    v_sub_u32 v{a}, 2047, v{a}                 ; r00
    v_and_b32 v{c}, 1, v{a}
    v_sub_u32 v{a}, v{a}, v{c}
    v_lshlrev_b32 v{a}, 1, v{a}
    v_mul_u32_u24 v{c}, {KREV_O}, v{c}
    v_add_u32 v{a}, v{a}, v{c}
    s_mul_i32 s{sT0}, s{sCH}, {KREV_CH}
    s_add_u32 s{sT0}, s{sT0}, {KREV - 192}
    s_lshl_b32 s{sT1}, s{sHF}, 8
    s_sub_u32 s{sT0}, s{sT0}, s{sT1}
    v_add_u32 v{aA}, s{sT0}, v{a}
    ''')
    for u in range(1,8):
        e(f'v_subrev_u32 v{aA+u}, {512*u}, v{aA}')
    e(f'''
    v_lshrrev_b32 v{a}, 1, v{vG4}
    v_sub_u32 v{a}, v{vM15}, v{a}
    v_lshlrev_b32 v{a}, 5, v{a}
    v_lshl_add_u32 v{a}, v{b}, 4, v{a}
    s_mul_i32 s{sT0}, s{sCH}, {XC_CH}
    s_add_u32 s{sT0}, s{sT0}, {XC + 512 - 192}
    s_sub_u32 s{sT0}, s{sT0}, s{sT1}
    v_add_u32 v{aB}, s{sT0}, v{a}
    ''')
    def rdA(wq, u):
        o = 16*(3-wq)
        e(f'ds_read2_b32 {v(CA+4*u,2)}, v{aA+u} offset0:{o} offset1:{o+1}')
        e(f'ds_read2_b32 {v(CA+4*u+2,2)}, v{aA+u} offset0:{o+2} offset1:{o+3}')
    def rdB(wq, s):
        e(f'ds_read_b128 {v(CB+32*(wq&1)+4*s,4)}, v{aB} offset:{s*512+(3-wq)*64}')
    for u in range(8): rdA(0, u)
    wait(C_XT, 2, addr=10)
    e('s_setprio 2')
    for s in range(8): rdB(0, s)
    for wq in range(4):
        e('s_waitcnt lgkmcnt(0)')
        B = CB + 32*(wq&1)
        for u in range(7,-1,-1):
            for nt in range(u, 8):
                e(f'v_mfma_f32_16x16x32_bf16 {v(CACC+4*nt,4)}, {v(CA+4*u,4)}, {v(B+4*(nt-u),4)}, {"0" if (wq==0 and nt==u) else v(CACC+4*nt,4)}')
            if wq < 3:
                rdA(wq+1, u)
                rdB(wq+1, u)
    e('s_setprio 3')
    signal(C_CR, addr=10)
    e(f'''
    @stamp h_conv
    s_cmp_eq_u32 s{sHF}, 0
    s_cbranch_scc1 L_noswap
    s_nop 7
    ''')
    for i in range(16): e(f'v_swap_b32 v{CACC+i}, v{CACC+16+i}')
    e(f'''
    L_noswap:
    s_mul_i32 s{sT0}, s{sCH}, {KREV_CH}
    s_add_u32 s{sT0}, s{sT0}, {KREV}
    s_lshl_b32 s{sT1}, s{sHF}, 12
    s_add_u32 s{sT2}, s{sT0}, s{sT1}
    s_xor_b32 s{sT1}, s{sT1}, 4096
    s_add_u32 s{sT0}, s{sT0}, s{sT1}
    v_add_u32 v{a}, s{sT2}, v{vL16}
    v_add_u32 v{b}, s{sT0}, v{vL16}
    ''')
    wait(C_CR, 2, addr=10, sleep=0)
    for q in range(4):
        e(f'ds_write_b128 v{a}, {v(CACC+16+4*q,4)} offset:{q*1024}')
    signal(C_CW, addr=10)
    e(f'''
    v_lshlrev_b32 v{c}, 5, v{vM15}
    v_lshl_add_u32 v{c}, v{vG4}, 3, v{c}
    s_lshl_b32 s{sT1}, s{sHF}, 11
    v_add_u32 v{c}, s{sT1}, v{c}
    s_mul_i32 s{sT0}, s{sCH}, {XC_CH}
    s_add_u32 s{sT0}, s{sT0}, {XC+512}
    v_add_u32 v{d}, s{sT0}, v{c}
    s_add_u32 s{sT0}, s{sD0}, s{sCH}
    s_lshl_b32 s{sT0}, s{sT0}, 12
    s_add_u32 s{sT0}, s{sT0}, {WS_B}
    s_lshl_b32 s{sT1}, s{sCH}, 4
    s_lshr_b32 s{sT1}, s{sDSK}, s{sT1}
    s_lshl_b32 s{sT1}, s{sT1}, 16
    s_mov_b32 s{sT2}, 0xfffefffe
    ''')
    wait(C_ST, 1, sleep=1)
    wait(C_CW, 2, addr=10, sleep=0)
    XV=24; T=40
    for q in range(4):
        e(f'ds_read_b128 {v(CACC+16+4*q,4)}, v{b} offset:{q*1024}')
        e(f'ds_read_b64 {v(XV+2*q,2)}, v{d} offset:{q*512}')
    signal(C_CONV)
    for q in range(4):
        y=CACC+4*q
        e(f's_waitcnt lgkmcnt({7-2*q})')
        for r in range(4): e(f'v_add_f32 v{y+r}, v{y+r}, v{y+16+r}')
        for hh in range(2):
            x=XV+2*q+hh
            e(f'''
            v_lshlrev_b32 v{T+1}, 16, v{x}
            v_and_b32 v{T+2}, 0xffff0000, v{x}
            v_fmac_f32 v{y+2*hh}, s{sT1}, v{T+1}
            v_fmac_f32 v{y+2*hh+1}, s{sT1}, v{T+2}
            v_cvt_pk_bf16_f32 v{x}, v{y+2*hh}, v{y+2*hh+1}
            v_pk_min_u16 v{x}, v{x}, s{sT2}
            ''')
        e(f'buffer_store_dwordx2 {v(XV+2*q,2)}, v{c}, {srd(S_WS)}, s{sT0} offen offset:{q*512} sc1')
    e('@stamp h_bout')
    WOF=36; ACC=12; BP=28; GV=10; OA=11
    NS=6
    e(f'''
    v_lshrrev_b32 v{a}, 2, v{vL}
    v_lshlrev_b32 v{a}, 10, v{a}
    v_and_b32 v{b}, 3, v{vL}
    v_lshl_add_u32 v{a}, v{b}, 4, v{a}
    s_lshr_b32 s{sT0}, s{sCB}, 1
    s_lshl_b32 s{sT0}, s{sT0}, 8
    s_lshl_b32 s{sT1}, s{sW}, 6
    s_add_u32 s{sT0}, s{sT0}, s{sT1}
    s_mul_i32 s{sT2}, s{sW}, {NS*1024}
    s_add_u32 s{sT2}, s{sT2}, {POOL}
    v_bfe_u32 v{c}, v{vL}, 2, 2
    v_lshrrev_b32 v{d}, 5, v{vL}
    v_lshl_add_u32 v{c}, v{d}, 2, v{c}         ; 4h + r
    v_lshlrev_b32 v{c}, 6, v{c}
    v_bfe_u32 v{d}, v{vL}, 4, 1
    v_lshl_add_u32 v{c}, v{d}, 5, v{c}
    v_lshl_add_u32 v{c}, v{b}, 3, v{c}
    v_add_u32 v{c}, s{sT2}, v{c}
    s_waitcnt vmcnt(0)
    ''')
    wait(C_CONV, 4)
    def wodma(k):
        e(f'''
        s_add_u32 s{sT3}, s{sT2}, {(k%NS)*1024}
        s_mov_b32 m0, s{sT3}
        s_nop 0
        buffer_load_dwordx4 v{a}, {srd(S_WO)}, s{sT0} offen lds
        s_add_u32 s{sT0}, s{sT0}, 16384
        ''')
    for k in range(NS): wodma(k)
    for k in range(28):
        e(f's_waitcnt vmcnt({min(NS-1, 31-k)})')
        e(f'ds_read_b64_tr_b16 {v(WOF+4*k,2)}, v{c} offset:{(k%NS)*1024}')
        e(f'ds_read_b64_tr_b16 {v(WOF+4*k+2,2)}, v{c} offset:{(k%NS)*1024+512}')
        if k+NS < 32:
            e('s_waitcnt lgkmcnt(0)')
            wodma(k+NS)
    e(f'v_mov_b32 v{d}, v{c}')
    e('@stamp h_wo')
    e(f'''
    s_mov_b32 s{sT0}, {WS_F2}
    v_lshrrev_b32 v{a}, 3, v{vL}
    v_mul_u32_u24 v{a}, {FST}, v{a}
    v_and_b32 v{b}, 7, v{vL}
    v_lshl_add_u32 v{a}, v{b}, 4, v{a}
    L_pollA:
    buffer_load_dwordx4 {v(ACC,4)}, v{a}, {srd(S_WS)}, s{sT0} offen sc1
    s_waitcnt vmcnt(0)
    v_xor_b32 v{ACC}, s{sNON}, v{ACC}
    v_xor_b32 v{ACC+1}, s{sNON}, v{ACC+1}
    v_xor_b32 v{ACC+2}, s{sNON}, v{ACC+2}
    v_xor_b32 v{ACC+3}, s{sNON}, v{ACC+3}
    v_or3_b32 v{ACC}, v{ACC}, v{ACC+1}, v{ACC+2}
    v_or_b32 v{ACC}, v{ACC}, v{ACC+3}
    v_cmp_ne_u32 vcc, 0, v{ACC}
    s_cbranch_vccz L_polledA
    s_sleep 8
    s_sub_u32 s{sTO}, s{sTO}, 16
    s_cbranch_scc0 L_pollA
    s_mov_b32 s{sTO}, 0
    L_polledA:
    s_or_b32 s{sT0}, s2, s{sW}
    s_cmp_lg_u32 s{sT0}, 0
    s_cbranch_scc1 L_nogen
    v_mov_b32 v{a}, {WS_GEN}
    v_mov_b32 v{b}, s{sNON}
    s_mov_b64 exec, 1
    buffer_store_dword v{b}, v{a}, {srd(S_WS)}, 0 offen sc1
    s_mov_b64 exec, -1
    L_nogen:
    ''')
    e(f'''
    s_lshl_b32 s{sT0}, s{sRB}, 6
    s_and_b32 s{sT1}, s{sCB}, 1
    s_lshl_b32 s{sT1}, s{sT1}, 5
    s_add_u32 s{sT0}, s{sT0}, s{sT1}
    v_and_b32 v{a}, 31, v{vL}
    v_add_u32 v{a}, s{sT0}, v{a}               ; row
    s_lshr_b32 s{sT0}, s{sCB}, 1
    s_lshl_b32 s{sT0}, s{sT0}, 7
    s_lshl_b32 s{sT1}, s{sW}, 5
    s_add_u32 s{sT0}, s{sT0}, s{sT1}
    v_lshrrev_b32 v{b}, 5, v{vL}
    v_lshlrev_b32 v{b}, 2, v{b}
    v_add_u32 v{b}, s{sT0}, v{b}
    v_lshlrev_b32 v{OA}, 10, v{a}
    v_lshl_add_u32 v{OA}, v{b}, 1, v{OA}
    v_lshlrev_b32 v{b}, 12, v{b}
    v_lshl_add_u32 v{b}, v{a}, 1, v{b}
    v_add_u32 v{b}, {WS_B}, v{b}
    v_lshlrev_b32 v{a}, 2, v{a}
    s_mov_b32 s{sT0}, {WS_G}
    buffer_load_dword v{GV}, v{a}, {srd(S_WS)}, s{sT0} offen sc1
    L_bpoll:
    ''')
    for i in range(16):
        col = (i>>2)*8 + (i&3)
        e(f's_mov_b32 s{sT0}, {col*4096}')
        e(f'buffer_load_ushort v{ACC+i}, v{b}, {srd(S_WS)}, s{sT0} offen sc1')
    e(f's_waitcnt vmcnt(0)')
    e(f'v_max3_u32 v{c}, v{ACC}, v{ACC+1}, v{ACC+2}')
    for i in range(3,15,2): e(f'v_max3_u32 v{c}, v{c}, v{ACC+i}, v{ACC+i+1}')
    e(f'''
    v_max_u32 v{c}, v{c}, v{ACC+15}
    v_cmp_eq_u32 vcc, 0xffff, v{c}
    s_cbranch_vccz L_bok
    s_sleep 8
    s_sub_u32 s{sTO}, s{sTO}, 16
    s_cbranch_scc0 L_bpoll
    s_mov_b32 s{sTO}, 0
    L_bok:
    v_sub_f32 v{c}, 1.0, v{GV}
    ''')
    for i in range(16):
        e(f'v_lshlrev_b32 v{ACC+i}, 16, v{ACC+i}')
        e(f'v_mul_f32 v{ACC+i}, v{ACC+i}, v{c}')
    e('@stamp h_bok')
    OF0=4
    e('s_barrier')
    e('s_barrier')
    e('@stamp h_o0')
    OB=148
    q=[]
    def ds(tag, txt): e(txt); q.append(tag)
    def need_(tags):
        idx=max(i for i,t in enumerate(q) if t in tags) if any(t in tags for t in q) else -1
        if idx >= 0:
            e(f's_waitcnt lgkmcnt({len(q)-1-idx})')
            del q[:idx+1]
    for k in range(4): ds(('o',k), f'ds_read_b128 {v(OB+4*k,4)}, v{vL16} offset:{k*1024}')
    for k in range(32):
        need_({('o',k),('w',k)})
        W = WOF+4*k if k < 28 else WOF+4*(k-28)
        e(f'v_mfma_f32_32x32x16_bf16 {v(ACC,16)}, {v(W,4)}, {v(OB+4*(k%4),4)}, {v(ACC,16)}')
        if k+4 < 32: ds(('o',k+4), f'ds_read_b128 {v(OB+4*(k%4),4)}, v{vL16} offset:{(k+4)*1024}')
        if k < 4:
            kk=28+k
            ds(('w',kk), f'ds_read_b64_tr_b16 {v(WOF+4*k,2)}, v{d} offset:{(kk%NS)*1024}')
            ds(('w',kk), f'ds_read_b64_tr_b16 {v(WOF+4*k+2,2)}, v{d} offset:{(kk%NS)*1024+512}')
    e('@stamp h_mm')
    T=WOF+16
    for i in range(8):
        e(f'v_cvt_pk_bf16_f32 v{T+i}, v{ACC+2*i}, v{ACC+2*i+1}')
        if i & 1:
            e(f'buffer_store_dwordx2 {v(T+i-1,2)}, v{OA}, {srd(S_OUT)}, 0 offen offset:{(i>>1)*16}')
    e('@stamp h_end')
    finish()
    vQ=10
    PR=14
    R=24; s1=40; s2=42; mu=44; tt=46; pk=48; wa=18; ra=20; FA=96; FB=146; vG=24
    al=66; bh=67; bl=68; dt=21; p1=22; p2=23; ee=69
    NM=16; S0=40; S1=56; P=72; O=80; KF=96; VF=112; ad=14; mx=15; kvf=144; fl=145
    e(f'''
    L_main:
    s_sub_u32 s{sM}, s{sW}, 4
    s_lshr_b32 s{sRT}, s{sM}, 2
    s_and_b32 s{sHD}, s{sM}, 3
    s_lshr_b32 s{sCH}, s{sHD}, 1
    s_setprio 1
    s_cmp_eq_u32 s{sRT}, 0
    s_cbranch_scc1 L_np
    s_setprio 2
    L_np:
    s_add_u32 s{sT0}, s{sD0}, s{sCH}
    s_lshl_b32 s{sT0}, s{sT0}, 8
    s_and_b32 s{sT1}, s{sM}, 1
    s_lshl_b32 s{sT1}, s{sT1}, 6
    s_add_u32 s{sT0}, s{sT0}, s{sT1}
    s_lshl_b32 s{sT1}, s{sRT}, 7
    s_add_u32 s{sT0}, s{sT0}, s{sT1}
    v_and_b32 v{a}, 31, v{vL}
    v_lshlrev_b32 v{a}, 1, v{a}
    v_add_u32 v{a}, s{sT0}, v{a}
    ''')
    for i,P_ in enumerate((P_LAR,P_AIM,P_CR,P_CI)):
        e(f'global_load_ushort v{PR+i}, v{a}, {sp(P_)}')
    e(f'''
    v_and_b32 v{a}, 27, v{vL}
    v_cmp_eq_u32 vcc, 16, v{a}
    v_mov_b32 v{b}, 0x3f803f80
    v_cndmask_b32 v{VF}, 0, v{b}, vcc
    ''')
    for i in range(1,32): e(f'v_mov_b32 v{VF+i}, v{VF}')
    for i in range(16): e(f'v_mov_b32 v{O+i}, 0')
    for i in range(4): e(f'v_mov_b32 v{P+4+i}, 0')
    def exp_acc(dst, x, t, u):
        e(f'''
        v_mul_f32 v{t}, {f32(L2E_HI)}, v{x}
        v_fma_f32 v{u}, v{x}, s{sT4}, -v{t}
        v_fmac_f32 v{u}, {f32(L2E_LO)}, v{x}
        v_exp_f32 v{dst}, v{t}
        v_mul_f32 v{u}, {f32(math.log(2.0))}, v{u}
        v_fma_f32 v{dst}, v{dst}, v{u}, v{dst}
        v_cvt_pk_bf16_f32 v{dst}, v{dst}, v{dst}
        v_lshlrev_b32 v{dst}, 16, v{dst}
        ''')
    def cmul(D, X, Y, T=None):
        T = D if T is None else T
        e(f'''
        v_pk_mul_f32 {v(T,2)}, {v(X,2)}, {v(Y,2)} op_sel:[0,0] op_sel_hi:[0,1]
        v_pk_fma_f32 {v(D,2)}, {v(X,2)}, {v(Y,2)}, {v(T,2)} op_sel:[1,1,0] op_sel_hi:[1,0,1] neg_lo:[1,0,0]
        ''')
    def cmul_inplace(idxs, Y):
        for k,i in enumerate(idxs):
            e(f'v_pk_mul_f32 {v(56+2*(k%4),2)}, {v(R+2*i,2)}, {v(Y,2)} op_sel:[0,0] op_sel_hi:[0,1]')
            if k >= 1:
                j = idxs[k-1]
                e(f'v_pk_fma_f32 {v(R+2*j,2)}, {v(R+2*j,2)}, {v(Y,2)}, {v(56+2*((k-1)%4),2)} op_sel:[1,1,0] op_sel_hi:[1,0,1] neg_lo:[1,0,0]')
        k = len(idxs)-1; j = idxs[k]
        e(f'v_pk_fma_f32 {v(R+2*j,2)}, {v(R+2*j,2)}, {v(Y,2)}, {v(56+2*(k%4),2)} op_sel:[1,1,0] op_sel_hi:[1,0,1] neg_lo:[1,0,0]')
    e(f'''
    s_mov_b32 s{sT4}, {f32(L2E_HI)}
    s_mov_b32 s{sT5}, {f32(I2P_HI)}
    v_cmp_lt_u32 s[{sM0}:{sM0+1}], 31, v{vL}
    v_mov_b32 v{b}, {f32(8.0)}
    v_cndmask_b32 v{p1}, v{b}, 1.0, s[{sM0}:{sM0+1}]
    v_mov_b32 v{b}, {f32(64.0)}
    v_mov_b32 v{c}, {f32(256.0)}
    v_cndmask_b32 v{p2}, v{b}, v{c}, s[{sM0}:{sM0+1}]
    s_lshl_b32 s{sT0}, s{sM}, 12
    s_add_u32 s{sT3}, s{sT0}, {XFL}
    v_lshrrev_b32 v{a}, 5, v{vL}
    v_lshlrev_b32 v{a}, 11, v{a}
    v_and_b32 v{b}, 31, v{vL}
    v_lshl_add_u32 v{a}, v{b}, 4, v{a}
    v_add_u32 v{wa}, s{sT3}, v{a}
    v_xor_b32 v{wa+1}, 0x80, v{wa}
    v_lshrrev_b32 v{a}, 2, v{vL}              ; 4g + r
    v_lshlrev_b32 v{a}, 4, v{a}
    v_bfe_u32 v{b}, v{vL}, 1, 1               ; gh
    v_mul_u32_u24 v{b}, 0x280, v{b}
    v_xor_b32 v{a}, v{a}, v{b}
    v_and_b32 v{b}, 1, v{vL}
    v_lshl_add_u32 v{a}, v{b}, 3, v{a}
    v_add_u32 v{ra}, s{sT3}, v{a}
    s_waitcnt lgkmcnt(0)
    s_lshl_b32 s{sT0}, s{sCH}, 4
    s_lshr_b32 s{sT1}, s{sLDT}, s{sT0}
    s_lshl_b32 s{sT1}, s{sT1}, 16
    v_mov_b32 v{a}, s{sT1}
    ''')
    exp_acc(dt, a, b, c)
    e(f'''
    s_waitcnt vmcnt(0)
    @stamp m_par
    v_and_b32 v{a}, 0x7fff, v{PR+2}
    v_and_b32 v{b}, 0x7fff, v{PR+3}
    v_max_u32 v{a}, v{a}, v{b}
    v_max_u32_dpp v{a}, v{a}, v{a} row_shr:1 row_mask:0xf bank_mask:0xf
    v_max_u32_dpp v{a}, v{a}, v{a} row_shr:2 row_mask:0xf bank_mask:0xf
    v_max_u32_dpp v{a}, v{a}, v{a} row_shr:4 row_mask:0xf bank_mask:0xf
    v_max_u32_dpp v{a}, v{a}, v{a} row_shr:8 row_mask:0xf bank_mask:0xf
    v_readlane_b32 s{sT0}, v{a}, 15
    v_readlane_b32 s{sT1}, v{a}, 31
    s_max_u32 s{sT0}, s{sT0}, s{sT1}
    s_lshr_b32 s{sT0}, s{sT0}, 7
    s_max_u32 s{sT0}, s{sT0}, 1
    s_min_u32 s{sT0}, s{sT0}, 253
    s_lshl_b32 s{sSC}, s{sT0}, 23
    s_sub_u32 s{sT0}, 254, s{sT0}
    s_lshl_b32 s{sSCI}, s{sT0}, 23
    v_lshlrev_b32 v{a}, 16, v{PR}
    ''')
    exp_acc(al, a, b, c)
    e(f'''
    v_mul_f32 v{al}, v{al}, v{dt}
    v_mul_f32 v{al}, {f32(-LOG2E)}, v{al}
    v_lshlrev_b32 v{a}, 16, v{PR+1}
    v_mul_f32 v{a}, v{a}, v{dt}
    v_cndmask_b32 v{a}, v{a}, -v{a}, s[{sM0}:{sM0+1}]
    v_mul_f32 v{bh}, {f32(I2P_HI)}, v{a}
    v_fma_f32 v{bl}, v{a}, s{sT5}, -v{bh}
    v_fmac_f32 v{bl}, {f32(I2P_LO)}, v{a}
    ''')
    for (S, p) in ((s1,p1),(s2,p2)):
        e(f'''
        v_mul_f32 v{a}, v{al}, v{p}
        v_mul_f32 v{b}, v{bh}, v{p}
        v_exp_f32 v{ee}, v{a}
        v_fract_f32 v{b}, v{b}
        v_fmac_f32 v{b}, v{bl}, v{p}
        v_cos_f32 v{c}, v{b}
        v_sin_f32 v{d}, v{b}
        v_mul_f32 v{S}, v{ee}, v{c}
        v_mul_f32 v{S+1}, v{ee}, v{d}
        ''')
    e(f'''
    v_lshlrev_b32 v{a}, 16, v{PR+2}
    v_lshlrev_b32 v{b}, 16, v{PR+3}
    v_mul_f32 v{a}, s{sSCI}, v{a}
    v_mul_f32 v{b}, s{sSCI}, v{b}
    v_cndmask_b32 v{R}, 1.0, v{a}, s[{sM0}:{sM0+1}]
    v_cndmask_b32 v{R+1}, 0, -v{b}, s[{sM0}:{sM0+1}]
    ''')
    cmul(tt, s1, s1)
    cmul(R+2, R, s1)
    cmul(mu, s2, s2)
    cmul(R+4, R, tt)
    cmul(R+6, R+2, tt)
    cmul(64, tt, tt)
    e(f'''
    v_cndmask_b32 v{mu}, v{s1}, v{mu}, s[{sM0}:{sM0+1}]
    v_cndmask_b32 v{mu+1}, v{s1+1}, v{mu+1}, s[{sM0}:{sM0+1}]
    ''')
    for i in range(4): cmul(R+8+2*i, R+2*i, 64)
    def flush(rnd):
        for i in range(4): e(f'v_cvt_pk_f16_f32 v{pk+i}, v{R+4*i}, v{R+4*i+2}')
        e(f'ds_write_b128 v{wa+(rnd&1)}, {v(pk,4)} offset:{512*(rnd&1)}')
        for i in range(4): e(f'v_cvt_pk_f16_f32 v{pk+4+i}, v{R+4*i+1}, v{R+4*i+3}')
        e(f'ds_write_b128 v{wa+(rnd&1)}, {v(pk+4,4)} offset:{512*(rnd&1)+1024}')
        if rnd & 1:
            rho = rnd >> 1
            for (F, part) in ((FB,0),(FA,1)):
                for s_ in range(2):
                    e(f'ds_read_b64_tr_b16 {v(F+8*rho+4*s_,2)}, v{ra} offset:{part*2048+s_*256}')
                    e(f'ds_read_b64_tr_b16 {v(F+8*rho+4*s_+2,2)}, v{ra} offset:{part*2048+s_*256+1024}')
    flush(0)
    cmul_inplace(list(range(8)), s2)
    flush(1)
    for rnd in (2,3):
        cmul_inplace([0,4,5], s2)
        cmul(R+2, R, mu)
        cmul_inplace([6,7], s2)
        cmul(R+4, R+2, mu)
        cmul(R+6, R+4, mu)
        flush(rnd)
    e(f'''
    v_add_f32 v{dt}, v{dt}, v{dt}
    v_mul_f32 v{dt}, s{sSC}, v{dt}
    s_lshl_b32 s{sT0}, s{sHD}, 2
    v_add_u32 v{d}, s{sT0}, v{vC}
    s_lshl_b32 s{sT0}, s{sHD}, 12
    s_add_u32 s{sT0}, s{sT0}, {XFL+16384}
    v_add_u32 v{b}, s{sT0}, v{vL16}
    s_waitcnt lgkmcnt(0)
    ''')
    for s_ in range(2):
        for ra_ in range(2):
            for rb_ in range(2):
                D = vG + 8*ra_ + 4*rb_
                e(f'v_mfma_f32_16x16x32_f16 {v(D,4)}, {v(FA+8*ra_+4*s_,4)}, {v(FB+8*rb_+4*s_,4)}, {"0" if s_==0 else v(D,4)}')
    for r in range(16): e(f'v_mul_f32 v{vG+r}, v{vG+r}, v{dt}')
    e(f'''
    @stamp m_kg1
    s_cmp_eq_u32 s{sRT}, 0
    s_cbranch_scc1 L_kgf
    ''')
    for q in range(4): e(f'ds_write_b128 v{b}, {v(vG+4*q,4)} offset:{q*1024}')
    signal(C_GH, addr=d)
    e('s_branch L_q')
    A1=40; A3=41; A4=42
    e(f'''
    L_kgf:
    s_mul_i32 s{sT0}, s{sHD}, {GW}
    s_add_u32 s{sT0}, s{sT0}, {PB+16}
    v_and_b32 v{a}, 1, v{vG4}
    v_lshrrev_b32 v{c}, 1, v{vG4}
    v_lshlrev_b32 v{A1}, 5, v{vM15}
    v_lshl_add_u32 v{A1}, v{a}, 4, v{A1}       ; n*32 + (g&1)*16
    v_lshrrev_b32 v{A3}, 1, v{A1}
    v_add_u32 v{A3}, 1024, v{A3}
    v_cndmask_b32 v{A1}, v{A1}, v{A3}, s[{sM0}:{sM0+1}]
    v_add_u32 v{A1}, s{sT0}, v{A1}
    v_lshlrev_b32 v{A3}, 3, v{vM15}
    v_lshl_add_u32 v{A3}, v{a}, 2, v{A3}
    v_lshl_add_u32 v{A3}, v{c}, 8, v{A3}
    v_add_u32 v{A3}, s{sT0}, v{A3}
    v_lshlrev_b32 v{A4}, 2, v{vM15}
    v_lshl_add_u32 v{A4}, v{c}, 7, v{A4}
    v_add_u32 v{A4}, s{sT0}, v{A4}
    v_subrev_u32 v{c}, 4, v{A4}
    ''')
    wait(C_GH, 1, addr=d, sleep=1)
    for q in range(4): e(f'ds_read_b128 {v(FA+4*q,4)}, v{b} offset:{q*1024}')
    e(f'v_mov_b32 v{a}, 0')
    e('s_waitcnt lgkmcnt(0)')
    for r in range(16): e(f'v_add_f32 v{vG+r}, v{vG+r}, v{FA+r}')
    e(f'''
    ds_write_b32 v{A3}, v{vG+8} offset:1536
    ds_write_b32 v{A3}, v{vG+12} offset:{1536+128}
    s_mov_b32 exec_hi, 0
    ds_write_b128 v{A1}, {v(vG,4)}
    ds_write_b128 v{A1}, {v(vG+4,4)} offset:512
    s_mov_b64 exec, s[{sM0}:{sM0+1}]
    ds_write2_b32 v{A1}, v{vG}, v{vG+2} offset0:0 offset1:1
    ds_write2_b32 v{A1}, v{vG+4}, v{vG+6} offset0:64 offset1:65
    s_mov_b32 exec_lo, 0xffff
    s_mov_b32 exec_hi, 0xffff
    ds_write_b32 v{A4}, v{vG+9} offset:2048
    ds_write_b32 v{A4}, v{vG+13} offset:{2048+64}
    ds_write_b32 v{A4}, v{vG+10} offset:{2048+256}
    ds_write_b32 v{A4}, v{vG+14} offset:{2048+256+64}
    s_mov_b64 exec, 1
    ds_write_b32 v{A4}, v{vG+11} offset:{2048+512}
    ds_write_b32 v{c}, v{a}
    s_mov_b64 exec, -1
    ''')
    signal(C_G)
    e('@stamp m_kgen')
    xa=146; wadr=150; acc=152; QX=16; QW=48
    e(f'''
    L_q:
    s_setprio 3
    s_mul_i32 s{sT0}, s{sRT}, {XH-XFL}
    s_add_u32 s{sT0}, s{sT0}, {XFL}
    v_lshlrev_b32 v{a}, 10, v{vM15}
    v_xor_b32 v{b}, v{vG4}, v{vM15}
    v_lshl_add_u32 v{a}, v{b}, 4, v{a}
    v_add_u32 v{xa}, s{sT0}, v{a}
    v_xor_b32 v{xa+1}, 64, v{xa}
    v_xor_b32 v{xa+2}, 0x80, v{xa}
    v_xor_b32 v{xa+3}, 0xc0, v{xa}
    v_bfe_u32 v{a}, v{vL}, 2, 2                ; r
    v_lshrrev_b32 v{b}, 1, v{a}
    v_and_b32 v{c}, 1, v{vG4}
    v_lshl_add_u32 v{b}, v{c}, 1, v{b}         ; swz
    v_xor_b32 v{b}, s{sHD}, v{b}
    v_lshl_add_u32 v{a}, v{vG4}, 3, v{a}       ; 8g + r
    v_lshlrev_b32 v{a}, 7, v{a}
    v_lshl_add_u32 v{a}, v{b}, 5, v{a}
    v_and_b32 v{b}, 3, v{vL}
    v_lshl_add_u32 v{a}, v{b}, 3, v{a}
    v_add_u32 v{wadr}, {WQ}, v{a}
    ''')
    def qchunk(ck):
        def rd(s):
            S = 8*ck + s
            e(f'ds_read_b64_tr_b16 {v(QW+4*(s&3),2)}, v{wadr} offset:{S*4096}')
            e(f'ds_read_b64_tr_b16 {v(QW+4*(s&3)+2,2)}, v{wadr} offset:{S*4096+512}')
            e(f'ds_read_b128 {v(QX+8*(s&3),4)}, v{xa+(s&3)} offset:{(S>>2)*256}')
            e(f'ds_read_b128 {v(QX+8*(s&3)+4,4)}, v{xa+(s&3)} offset:{(S>>2)*256+16384}')
        for s in range(3): rd(s)
        for s in range(8):
            if s+3 < 8:
                rd(s+3); e('s_waitcnt lgkmcnt(12)')
            else:
                x = 0
                if ck == 1:
                    x = 2
                    if s == 5:
                        signal(C_QA); signal(C_QH, addr=d)
                e(f's_waitcnt lgkmcnt({4*(7-s)+x})')
            z = ck == 0 and s == 0
            e(f'v_mfma_f32_16x16x32_bf16 {v(acc,4)}, {v(QW+4*(s&3),4)}, {v(QX+8*(s&3),4)}, {"0" if z else v(acc,4)}')
            e(f'v_mfma_f32_16x16x32_bf16 {v(acc+4,4)}, {v(QW+4*(s&3),4)}, {v(QX+8*(s&3)+4,4)}, {"0" if z else v(acc+4,4)}')
    e(f'''
    s_xor_b32 s{sT0}, s{sRT}, 1
    s_mul_i32 s{sT0}, s{sT0}, {4*(40-C_QH)}
    v_add_u32 v{d}, s{sT0}, v{vC}
    s_cmp_eq_u32 s{sRT}, 1
    s_cbranch_scc1 L_qh
    ''')
    wait(C_T2, 1)
    e('L_qh:')
    wait(C_T0, 2, sleep=1)
    e('@stamp m_t0')
    qchunk(0)
    e('@stamp m_q0')
    wait(C_T1, 1, sleep=1)
    e('@stamp m_t1')
    qchunk(1)
    e(f'''
    s_mov_b32 s{sT0}, {f32(0.25*LOG2E)}
    s_mov_b32 s{sFB}, 0
    s_mov_b32 s{sM0}, 0xffff
    s_mov_b32 s{sM0+1}, 0xffff
    s_lshl_b32 s{sT1}, s{sRB}, 1
    s_add_u32 s{sT1}, s{sT1}, s{sRT}
    s_lshl_b32 s{sT1}, s{sT1}, 5
    s_lshl_b32 s{sT2}, s{sCB}, 2
    s_add_u32 s{sT1}, s{sT1}, s{sT2}
    s_add_u32 s{sT1}, s{sT1}, s{sHD}
    s_lshl_b32 s{sT1}, s{sT1}, 10
    s_add_u32 s{sOB}, s{sT1}, {WS_O}
    ''')
    for r in range(8): e(f'v_mul_f32 v{acc+r}, s{sT0}, v{acc+r}')
    e(f'''
    v_cvt_pk_bf16_f32 v{vQ}, v{acc}, v{acc+1}
    v_cvt_pk_bf16_f32 v{vQ+1}, v{acc+2}, v{acc+3}
    v_cvt_pk_bf16_f32 v{vQ+2}, v{acc+4}, v{acc+5}
    v_cvt_pk_bf16_f32 v{vQ+3}, v{acc+6}, v{acc+7}
    v_permlane16_swap_b32 v{vQ}, v{vQ+2}
    v_permlane16_swap_b32 v{vQ+1}, v{vQ+3}
    ''')
    e('@stamp m_q1')
    wait(C_KV, 1, sleep=1)
    e(f'''
    @stamp m_att0
    s_setprio 1
    s_cmp_lt_u32 s{sM}, 4
    s_cbranch_scc1 L_pr
    s_setprio 3
    L_pr:
    s_mov_b32 s{sCNT}, 0
    v_mov_b32 v{ad}, v{vL16}
    v_add_u32 v{kvf}, {4*(C_KV+1)}, v{vC}
    ds_read_b128 {v(KF+8,4)}, v{ad}
    ds_read_b128 {v(KF,4)}, v{ad} offset:2048
    ds_read_b128 {v(KF+4,4)}, v{ad} offset:4096
    s_mov_b64 exec, s[{sM0}:{sM0+1}]
    ds_read_b128 {v(VF,4)}, v{ad} offset:1024
    ds_read_b128 {v(VF+4,4)}, v{ad} offset:1280
    ds_read_b128 {v(VF+8,4)}, v{ad} offset:3072
    ds_read_b128 {v(VF+12,4)}, v{ad} offset:3328
    s_mov_b64 exec, -1
    s_cmp_lg_u32 s{sFB}, 0
    s_waitcnt lgkmcnt(6)
    s_cbranch_scc1 L_setm
    v_mfma_f32_32x32x16_bf16 {v(S0,16)}, {v(KF+8,4)}, {v(vQ,4)}, 0
    v_max3_f32 v{mx}, v{S0}, v{S0+1}, v{S0+2}
    ''')
    for i in range(3,15,2): e(f'v_max3_f32 v{mx}, v{mx}, v{S0+i}, v{S0+i+1}')
    e(f'''
    v_max_f32 v{mx}, v{mx}, v{S0+15}
    L_setm:
    v_mov_b32 v{a}, v{mx}
    v_permlane32_swap_b32 v{a}, v{mx}
    v_max_f32 v{mx}, v{mx}, v{a}
    ''')
    for i in range(16): e(f'v_sub_f32 v{NM+i}, 0, v{mx}')
    e(f'''
    v_mfma_f32_32x32x16_bf16 {v(S0,16)}, {v(KF+8,4)}, {v(vQ,4)}, {v(NM,16)}
    s_nop 9
    .p2align 6
    L_loop:
    ''')
    def step(tt):
        par = tt & 1; pr = tt >> 1; st = pr & 1
        Sc = S0 if par == 0 else S1
        Sn = S1 if par == 0 else S0
        Kn = KF + 8*st + 4*par
        Vc = VF + 16*st + 8*par
        Vp = (VF + 16*st + 4) if par == 1 else (VF + 16*(1-st) + 12)
        ex = lambda i: e(f'v_exp_f32 v{Sc+i}, v{Sc+i}')
        cv = lambda i: e(f'v_cvt_pk_bf16_f32 v{P+i}, v{Sc+2*i}, v{Sc+2*i+1}')
        if par == 0: e('s_waitcnt lgkmcnt(0)')
        e(f'v_mfma_f32_32x32x16_bf16 {v(Sn,16)}, {v(Kn,4)}, {v(vQ,4)}, {v(NM,16)}')
        ex(0); ex(1); ex(2); ex(3)
        e(f'v_mfma_f32_32x32x16_bf16 {v(O,16)}, {v(Vp,4)}, {v(P+4,4)}, {v(O,16)}')
        if tt == 4:
            e(f's_cmp_lg_u32 s{sWT}, 1')
            e(f's_cbranch_scc1 L_chk')
            e(f'L_chk_ret:')
        if par == 0:
            o = 1-st
            e(f'ds_read_b128 {v(KF+8*o,4)}, v{ad} offset:{(tt+3)*2048}')
            e(f'ds_read_b128 {v(KF+8*o+4,4)}, v{ad} offset:{(tt+4)*2048}')
            e(f's_mov_b64 exec, s[{sM0}:{sM0+1}]')
            e(f'ds_read_b128 {v(VF+16*o,4)}, v{ad} offset:{(tt+2)*2048+1024}')
            e(f'ds_read_b128 {v(VF+16*o+4,4)}, v{ad} offset:{(tt+2)*2048+1280}')
            e(f'ds_read_b128 {v(VF+16*o+8,4)}, v{ad} offset:{(tt+3)*2048+1024}')
            e(f'ds_read_b128 {v(VF+16*o+12,4)}, v{ad} offset:{(tt+3)*2048+1280}')
            e(f's_mov_b64 exec, -1')
            if tt == 0: e(f'ds_read_b32 v{fl}, v{kvf}')
        if tt == 3: e(f'v_readfirstlane_b32 s{sWT}, v{fl}')
        cv(0); ex(4); ex(5); cv(1); ex(6); ex(7); cv(2); ex(8); cv(3); ex(9); ex(10)
        e(f'v_mfma_f32_32x32x16_bf16 {v(O,16)}, {v(Vc,4)}, {v(P,4)}, {v(O,16)}')
        ex(11); cv(4); ex(12); ex(13); cv(5); ex(14); ex(15); cv(6); cv(7)
    for tt in range(8): step(tt)
    e(f'''
    v_add_u32 v{ad}, 0x4000, v{ad}
    v_add_u32 v{kvf}, 4, v{kvf}
    s_add_u32 s{sCNT}, s{sCNT}, 1
    s_cmp_lt_u32 s{sCNT}, 8
    s_cbranch_scc1 L_loop
    v_mfma_f32_32x32x16_bf16 {v(O,16)}, {v(VF+28,4)}, {v(P+4,4)}, {v(O,16)}
    s_mov_b32 s{sT0}, {f32(2.0**40)}
    s_waitcnt vmcnt(0) lgkmcnt(0)
    s_nop 9
    v_rcp_f32 v{S0}, v{O+8}
    v_cmp_nlt_f32 vcc, v{O+8}, s{sT0}
    v_mul_f32 v{S0}, v{S0}, v146
    ''')
    for i in range(8): e(f'v_mul_f32 v{O+i}, v{O+i}, v{S0}')
    e(f'''
    v_add_f32 v{S0+2}, v{O+3}, v{O+4}
    v_add_f32 v{S0+3}, v{O+5}, v{O+6}
    v_add_f32 v{S0+2}, v{S0+2}, v{O+7}
    v_add_f32 v{S0+3}, v{S0+3}, v{O}
    v_add_f32 v{S0+2}, v{S0+2}, v{O+1}
    v_add_f32 v{S0+3}, v{S0+3}, v{O+2}
    v_add_f32 v{S0+2}, v{S0+2}, v{S0+3}
    v_mov_b32 v{S0+4}, 0x207
    v_cmp_class_f32 s[{sM1}:{sM1+1}], v{S0+2}, v{S0+4}
    s_or_b64 vcc, vcc, s[{sM1}:{sM1+1}]
    s_cbranch_vccz L_att_ok
    s_cmp_lg_u32 s{sFB}, 0
    s_cbranch_scc1 L_att_ok
    s_mov_b32 s{sFB}, 1
    v_mov_b32 v{ad}, v{vL16}
    v_mov_b32 v{mx}, 0xff7fffff
    s_mov_b32 s{sCNT}, 0
    L_maxloop:
    ds_read_b128 {v(KF,4)}, v{ad}
    v_add_u32 v{ad}, 2048, v{ad}
    s_waitcnt lgkmcnt(0)
    v_mfma_f32_32x32x16_bf16 {v(S0,16)}, {v(KF,4)}, {v(vQ,4)}, 0
    ''')
    for i in range(0,16,2): e(f'v_max3_f32 v{mx}, v{mx}, v{S0+i}, v{S0+i+1}')
    e(f'''
    s_add_u32 s{sCNT}, s{sCNT}, 1
    s_cmp_lt_u32 s{sCNT}, 64
    s_cbranch_scc1 L_maxloop
    ''')
    for i in range(16): e(f'v_mov_b32 v{O+i}, 0')
    for i in range(4): e(f'v_mov_b32 v{P+4+i}, 0')
    e('s_branch L_pr')
    e('L_chk:')
    wait(0, 1, addr=kvf, sleep=1)
    e(f'''
    s_cmp_lt_u32 s{sWT}, 2
    s_cbranch_scc1 L_chk_ret
    s_lshl_b32 s{sT0}, s{sRB}, 8
    s_lshl_b32 s{sT1}, s{sRT}, 7
    s_add_u32 s{sT0}, s{sT0}, s{sT1}
    s_add_u32 s{sT0}, s{sT0}, {WS_G}
    v_and_b32 v{a}, 31, v{vL}
    v_lshlrev_b32 v{a}, 2, v{a}
    buffer_load_dword v146, v{a}, {srd(S_WS)}, s{sT0} offen sc1
    s_setprio 0
    s_branch L_chk_ret
    L_att_ok:
    @stamp m_att1
    ''')
    e(f'ds_read_b32 v{a}, v{vC} offset:{4*C_KVOK}')
    wait(C_ST, 1, sleep=4)
    e(f'v_readfirstlane_b32 s{sT1}, v{a}')
    e(f's_mov_b32 s{sT0}, 0xfffffffe')
    for i in range(4):
        e(f'v_cvt_pk_bf16_f32 v{P+i}, v{O+2*i}, v{O+2*i+1}')
        e(f'v_min_u32 v{P+i}, s{sT0}, v{P+i}')
    e(f'''
    s_cmp_lg_u32 s{sT1}, 0
    s_cbranch_scc1 L_oloc
    buffer_store_dwordx4 {v(P,4)}, v{vL16}, {srd(S_WS)}, s{sOB} offen sc1
    s_branch L_ost
    L_oloc:
    buffer_store_dwordx4 {v(P,4)}, v{vL16}, {srd(S_WS)}, s{sOB} offen
    L_ost:
    ''')
    e(f'''
    s_lshl_b32 s{sT0}, s{sRB}, 1
    s_and_b32 s{sT1}, s{sCB}, 1
    s_add_u32 s{sT0}, s{sT0}, s{sT1}
    s_lshl_b32 s{sT0}, s{sT0}, 15
    s_lshl_b32 s{sT1}, s{sM}, 12
    s_add_u32 s{sT0}, s{sT0}, s{sT1}
    s_add_u32 s{sT0}, s{sT0}, {WS_O}
    v_add_u32 v{a}, s{sT1}, v{vL16}
    s_lshl_b32 s{sT1}, s{sM}, 2
    v_add_u32 v{b}, s{sT1}, v{vC}
    ''')
    e('s_barrier')
    e('@stamp m_all')
    e('L_opoll:')
    for i in range(4):
        e(f'buffer_load_dwordx4 {v(S0+4*i,4)}, v{vL16}, {srd(S_WS)}, s{sT0} offen offset:{i*1024} sc1')
    e(f's_waitcnt vmcnt(0)')
    e(f'v_max3_u32 v{c}, v{S0}, v{S0+1}, v{S0+2}')
    for i in range(3,15,2): e(f'v_max3_u32 v{c}, v{c}, v{S0+i}, v{S0+i+1}')
    e(f'''
    v_max_u32 v{c}, v{c}, v{S0+15}
    v_cmp_eq_u32 vcc, -1, v{c}
    s_cbranch_vccz L_ook
    s_sub_u32 s{sTO}, s{sTO}, 16
    s_cbranch_scc0 L_opoll
    s_mov_b32 s{sTO}, 0
    L_ook:
    ''')
    for i in range(4):
        e(f'ds_write_b128 v{a}, {v(S0+4*i,4)} offset:{i*1024}')
    e('s_waitcnt lgkmcnt(0)')
    e('s_barrier')
    e('@stamp m_end')
    finish()
    e('''
    L_end:
    s_endpgm
    ''')
    return e.text()

HEAD = open('cdna_kernels/%s.s.ref' % NAME).read().split('; Override launch geometry')[0]
def full():
    body = gen()
    s = HEAD
    s += f'; @launch grid=(256,1,1) block=(768,1,1) lds={LDS_BYTES}\n'
    s += f'''.amdgcn_target "amdgcn-amd-amdhsa--gfx950"
.text
.globl {NAME}_kernel
.p2align 8
.type {NAME}_kernel,@function
{NAME}_kernel:
{body}
.section .rodata,"a"
.p2align 6
.amdhsa_kernel {NAME}_kernel
  .amdhsa_next_free_vgpr 168
  .amdhsa_next_free_sgpr 102
  .amdhsa_accum_offset 168
  .amdhsa_group_segment_fixed_size 0
  .amdhsa_kernarg_size 128
  .amdhsa_user_sgpr_count 2
  .amdhsa_user_sgpr_kernarg_segment_ptr 1
  .amdhsa_system_sgpr_workgroup_id_x 1
.end_amdhsa_kernel
'''
    return s
if __name__ == '__main__':
    if len(sys.argv) > 1 and sys.argv[1].startswith('diag'):
        DIAG = 1
        open('dev/%s.s' % sys.argv[1], 'w').write(full())
        import json; json.dump(gen.e.stamps, open('diag.json','w'))
    else:
        out = sys.argv[1] if len(sys.argv) > 1 else f'cdna_kernels/{NAME}.s'
        open(out, 'w').write(full())
```

```python
import sys, struct, math
from asmlib import Asm

NAME = 'gated_mix__grouped_kv_mqa__ssm_conv_s4d__prompt'
def f32(x): return '0x%08x' % struct.unpack('<I', struct.pack('<f', x))[0]
def f32v(x): return struct.unpack('<f', struct.pack('<f', x))[0]

WS_KV = 0x0
WS_G  = 0x20000
FST = 0x1100
WS_F1 = 0x30000
WS_F2 = 0x40000
WS_GEN = 0x50000
LDELTA = 0x80000
WS_O  = 0x100000
WS_B  = 0x400000
WS_XT = 0x600000
WS_DIAG = 0x800000
WS_SIZE = 0x900000
POOL = 131072
PA = 0; XH = 0x4000; XFL = 0xC000; WQ = 0x14000
KREV = POOL; KREV_CH = 8320; KREV_O = 4160
PB = POOL + 16640; GW = 2592
XC = PB; XC_CH = 4608
PC = POOL + 31488
PG = PC + 256
LDS_BYTES = 163840
C_ISS,C_T0,C_T1,C_QH,C_QA,C_TAB,C_T2,C_KREV,C_ST,C_KVOK,C_KISS = range(11)
C_XT=11; C_CR=13; C_CW=15; C_CONV=17; C_GH=18; C_KV=24

P_X=4; P_WQ=6; P_WK=8; P_WV=10; P_WO=12; P_LAR=16; P_AIM=18; P_CR=20; P_CI=22; P_LDT=24; P_DSK=26; P_GATE=28; P_OUT=30; P_DBG=32; P_WS=34
S_X=36; S_WQ=40; S_WKV=44; S_WS=48; S_OUT=52; S_GATE=56; S_DBG=60; S_WO=64
sW=68; sRB=69; sCB=70; sD0=71; sLDT=72; sDSK=73; sT0=74; sT1=75; sT2=76; sT3=77; sRT=78; sHD=79; sM=80; sCNT=81; sFB=82; sTO=83
sM0=84; sM1=86
sOB=88; sT4=89; sT5=90; sSC=91; sSCI=92; sWT=93
sCH=96; sHF=97; sKAP=98; sNON=99; sPOS=100; sXCD=101

def srd(n): return f's[{n}:{n+3}]'
def sp(n): return f's[{n}:{n+1}]'
def v(n, k=1): return f'v{n}' if k == 1 else f'v[{n}:{n+k-1}]'

LOG2E = 1.4426950408889634
L2E_HI = f32v(LOG2E); L2E_LO = LOG2E - L2E_HI
INV2PI = 1.0/(2*math.pi); I2P_HI = f32v(INV2PI); I2P_LO = INV2PI - I2P_HI

DIAG = False
def gen():
    e = Asm(DIAG)
    gen.e = e
    vL=1; vL16=2; vC=3; vOne=166; vWT=165
    uid = [0]
    def wait(c, target, addr=vC, sleep=1):
        uid[0] += 1; u = uid[0]
        e(f'''
        L_wt{u}:
        ds_read_b32 v{vWT}, v{addr} offset:{4*c}
        s_waitcnt lgkmcnt(0)
        v_readfirstlane_b32 s{sWT}, v{vWT}
        s_cmp_ge_u32 s{sWT}, {target}
        s_cbranch_scc1 L_wd{u}
        s_sleep {sleep}
        s_sub_u32 s{sTO}, s{sTO}, 1
        s_cbranch_scc0 L_wt{u}
        s_mov_b32 s{sTO}, 0
        L_wd{u}:
        ''')
    def signal(c, addr=vC):
        e(f'''
        s_mov_b64 exec, 1
        ds_add_u32 v{addr}, v{vOne} offset:{4*c}
        s_mov_b64 exec, -1
        ''')
    def mk(S, P, nbytes):
        e(f'''
        s_mov_b32 s{S}, s{P}
        s_and_b32 s{S+1}, s{P+1}, 0xffff
        s_mov_b32 s{S+2}, {nbytes}
        s_mov_b32 s{S+3}, 0x00020000
        ''')
    def finish():
        if DIAG == 1:
            e(f'''
            @rt 63
            s_getreg_b32 s94, hwreg(HW_REG_XCC_ID)
            v_writelane_b32 v167, s94, 62
            v_writelane_b32 v167, s{sTO}, 61
            s_mul_i32 s{sT0}, s2, 3072
            s_lshl_b32 s{sT1}, s{sW}, 8
            s_add_u32 s{sT0}, s{sT0}, s{sT1}
            s_add_u32 s{sT0}, s{sT0}, {WS_DIAG}
            v_lshlrev_b32 v{vWT}, 2, v{vL}
            buffer_store_dword v167, v{vWT}, {srd(S_WS)}, s{sT0} offen
            ''')
        e('s_endpgm')
    vM15=4; vG4=5; a=6; b=7; c=8; d=9
    e(f'''
    s_cmp_ge_u32 s2, 256
    s_cbranch_scc1 L_end
    s_load_dwordx16 s[4:19], s[0:1], 0
    s_load_dwordx16 s[20:35], s[0:1], 64
    @stamp start
    @rt 60
    v_and_b32 v{vL}, 63, v0
    v_lshrrev_b32 v{a}, 6, v0
    v_lshlrev_b32 v{vL16}, 4, v{vL}
    v_readfirstlane_b32 s{sW}, v{a}
    v_mov_b32 v{vC}, {PC}
    v_lshl_add_u32 v{a}, v{vL}, 2, v{vC}
    v_mov_b32 v{b}, 0
    ds_write_b32 v{a}, v{b}
    v_mov_b32 v{vOne}, 1
    s_mov_b32 s{sTO}, 0x100000
    s_and_b32 s{sT0}, s2, 7
    s_lshr_b32 s{sT1}, s2, 3
    s_lshr_b32 s{sT2}, s{sT1}, 3
    s_lshl_b32 s{sRB}, s{sT0}, 2
    s_add_u32 s{sRB}, s{sRB}, s{sT2}
    s_and_b32 s{sCB}, s{sT1}, 7
    s_lshl_b32 s{sD0}, s{sT0}, 6
    s_lshl_b32 s{sT1}, s{sT1}, 1
    s_add_u32 s{sD0}, s{sD0}, s{sT1}
    s_lshr_b32 s{sKAP}, s{sCB}, 2
    s_mov_b32 s{sXCD}, s{sT0}
    v_and_b32 v{vM15}, 15, v{vL}
    v_lshrrev_b32 v{vG4}, 4, v{vL}
    s_bfe_u32 s{sT0}, s{sW}, 0x10001
    s_add_u32 s{sT0}, s{sD0}, s{sT0}
    s_lshl_b32 s{sT0}, s{sT0}, 8
    s_and_b32 s{sT1}, s{sW}, 1
    s_lshl_b32 s{sT1}, s{sT1}, 6
    s_add_u32 s{sT0}, s{sT0}, s{sT1}
    s_lshr_b32 s{sT1}, s{sW}, 3
    s_lshl_b32 s{sT1}, s{sT1}, 7
    s_add_u32 s{sT0}, s{sT0}, s{sT1}
    v_and_b32 v{a}, 31, v{vL}
    v_lshlrev_b32 v{a}, 1, v{a}
    v_add_u32 v{a}, s{sT0}, v{a}
    s_cmp_lt_u32 s{sW}, 4
    s_waitcnt lgkmcnt(0)
    s_cbranch_scc1 L_nopar
    global_load_ushort v14, v{a}, {sp(P_LAR)}
    global_load_ushort v15, v{a}, {sp(P_AIM)}
    global_load_ushort v16, v{a}, {sp(P_CR)}
    global_load_ushort v17, v{a}, {sp(P_CI)}
    L_nopar:
    s_barrier
    ''')
    mk(S_X, P_X, 2097152)
    mk(S_WS, P_WS, WS_SIZE)
    mk(S_WQ, P_WQ, 524288)
    mk(S_GATE, P_GATE, 1024)
    e(f'''
    s_bitcmp1_b32 s{sCB}, 0
    s_cselect_b32 s{S_WKV}, s{P_WV}, s{P_WK}
    s_cselect_b32 s{S_WKV+1}, s{P_WV+1}, s{P_WK+1}
    s_and_b32 s{S_WKV+1}, s{S_WKV+1}, 0xffff
    s_mov_b32 s{S_WKV+2}, 16384
    s_mov_b32 s{S_WKV+3}, 0x00020000
    s_lshl_b32 s{sT4}, s{sD0}, 1
    s_load_dword s{sLDT}, {sp(P_LDT)}, s{sT4}
    s_load_dword s{sDSK}, {sp(P_DSK)}, s{sT4}
    s_cmp_ge_u32 s{sW}, 4
    s_cbranch_scc1 L_main
    s_setprio 3
    v_mov_b32 v11, {WS_GEN}
    buffer_load_dword v164, v11, {srd(S_WS)}, 0 offen sc1
    s_cmp_eq_u32 s{sW}, 1
    s_cbranch_scc1 L_h1
    s_cmp_ge_u32 s{sW}, 2
    s_cbranch_scc1 L_h23
    ''')
    XF=16; WF=80; GF=112; dk=144; dg=148; xk=152
    def xrows(lbl, n):
        e(f's_mov_b32 s{sCNT}, 0')
        e(f'L_xp{lbl}:')
        for j in range(16):
            e(f'''
            s_mov_b32 m0, s{sT1}
            v_xor_b32 v{a}, {16*j}, v{vL16}
            buffer_load_dwordx4 v{a}, {srd(S_X)}, s{sT0} offen lds
            s_add_u32 s{sT1}, s{sT1}, 1024
            s_add_u32 s{sT0}, s{sT0}, 1024
            ''')
        if n > 16:
            e(f'''
            s_add_u32 s{sCNT}, s{sCNT}, 1
            s_cmp_lt_u32 s{sCNT}, 2
            s_cbranch_scc1 L_xp{lbl}
            ''')
    e(f'''
    s_lshl_b32 s{sT0}, s{sRB}, 16
    s_lshr_b32 s{sT1}, s{sCB}, 1
    s_lshl_b32 s{sT1}, s{sT1}, 14
    s_add_u32 s{sT0}, s{sT0}, s{sT1}          ; row0*1024
    s_and_b32 s{sT1}, s{sT1}, 0x4000
    s_add_u32 s{sT1}, s{sT1}, {XH}
    v_lshlrev_b32 v{xk}, 10, v{vM15}
    v_xor_b32 v{b}, v{vG4}, v{vM15}
    v_lshl_add_u32 v{xk}, v{b}, 4, v{xk}
    v_add_u32 v{xk}, s{sT1}, v{xk}
    ''')
    xrows('k', 16)
    e(f'''
    s_mov_b32 m0, {PG}
    s_mov_b32 s{sT1}, 0
    buffer_load_dwordx4 v{vL16}, {srd(S_GATE)}, 0 offen lds
    v_xor_b32 v{xk+1}, 64, v{xk}
    v_xor_b32 v{xk+2}, 0x80, v{xk}
    v_xor_b32 v{xk+3}, 0xc0, v{xk}
    ''')
    for s4 in range(4):
        e(f's_mov_b32 m0, {PA + s4*4096}')
        for i in range(4):
            e(f'buffer_load_dwordx4 v{vL16}, {srd(S_WKV)}, s{sT1} offen offset:{i*1024} lds')
        e(f's_add_u32 s{sT1}, s{sT1}, 4096')
    e(f'''
    @stamp h_issued
    v_lshlrev_b32 v{a}, 8, v{vG4}
    v_lshl_add_u32 v{a}, v{vM15}, 3, v{a}
    v_add_u32 v{a}, {PA}, v{a}                ; PA + g*256 + (l&15)*8
    v_lshlrev_b32 v{b}, 4, v{vG4}
    v_add_u32 v{b}, {PG}, v{b}
    s_lshl_b32 s{sT0}, s{sRB}, 2
    s_lshr_b32 s{sT1}, s{sCB}, 1
    s_add_u32 s{sT0}, s{sT0}, s{sT1}          ; kb
    s_lshr_b32 s{sT1}, s{sT0}, 1
    s_lshl_b32 s{sT1}, s{sT1}, 11
    s_and_b32 s{sT2}, s{sT0}, 1
    s_lshl_b32 s{sT2}, s{sT2}, 8
    s_add_u32 s{sT1}, s{sT1}, s{sT2}
    s_and_b32 s{sT2}, s{sCB}, 1
    s_lshl_b32 s{sT2}, s{sT2}, 10
    s_add_u32 s{sT1}, s{sT1}, s{sT2}
    s_lshl_b32 s{sT0}, s{sT0}, 6
    s_add_u32 s{sT0}, s{sT0}, {WS_G}
    v_and_b32 v{c}, 1, v{vG4}
    v_lshrrev_b32 v{d}, 1, v{vG4}
    s_add_u32 s{sT2}, s{sT1}, {LDELTA}
    s_mov_b32 s{sT3}, {LDELTA}
    s_mul_i32 s{sT4}, s{sXCD}, {FST}
    s_lshr_b32 s{sT5}, s2, 3
    s_lshl_b32 s{sT5}, s{sT5}, 2
    s_add_u32 s{sT4}, s{sT4}, s{sT5}
    s_add_u32 s{sT4}, s{sT4}, {WS_F1}
    v_mov_b32 v11, s{sT4}
    s_waitcnt vmcnt(33) lgkmcnt(0)
    ''')
    def nonce():
        e(f'''
        v_readfirstlane_b32 s{sNON}, v164
        s_mul_i32 s{sNON}, s{sNON}, 0x9e3779b1
        s_add_u32 s{sNON}, s{sNON}, 0x7f4a7c15
        ''')
    nonce()
    e(f'''
    s_getreg_b32 s{sT4}, hwreg(HW_REG_XCC_ID, 0, 4)
    s_xor_b32 s{sT4}, s{sT4}, s{sNON}
    v_mov_b32 v12, s{sT4}
    s_waitcnt vmcnt(17)
    ''')
    signal(C_T0)
    for s_ in range(16):
        e(f'ds_read_b128 {v(XF+4*s_,4)}, v{xk+(s_&3)} offset:{(s_>>2)*256}')
    signal(C_QH)
    e(f'''
    s_bitcmp1_b32 s{sCB}, 0
    s_cbranch_scc1 L_kv_v
    ''')
    def kvloop(isv):
        n = 2 if isv else 3
        for g in range(5):
            if g < 4:
                e(f's_waitcnt vmcnt({4*(3-g)})')
                for s in range(4*g, 4*g+4):
                    bi = s % 8
                    e(f'ds_read_b64_tr_b16 {v(WF+4*bi,2)}, v{a} offset:{s*1024}')
                    e(f'ds_read_b64_tr_b16 {v(WF+4*bi+2,2)}, v{a} offset:{s*1024+128}')
                    if not isv: e(f'ds_read_b128 {v(GF+4*bi,4)}, v{b} offset:{s*64}')
            if g >= 1:
                if g < 4: e(f's_waitcnt lgkmcnt({4*n})')
                for p in range(4*g-4, 4*g):
                    if g == 4: e(f's_waitcnt lgkmcnt({n*(15-p)})')
                    mm(p, p % 8, isv)
    def mm(p, pb, isv):
        cc = '0' if p == 0 else v(dk,4)
        if isv:
            e(f'v_mfma_f32_16x16x32_bf16 {v(dk,4)}, {v(XF+4*p,4)}, {v(WF+4*pb,4)}, {cc}')
        else:
            e(f'v_mfma_f32_16x16x32_bf16 {v(dk,4)}, {v(WF+4*pb,4)}, {v(XF+4*p,4)}, {cc}')
            e(f'v_mfma_f32_16x16x32_bf16 {v(dg,4)}, {v(GF+4*pb,4)}, {v(XF+4*p,4)}, {"0" if p==0 else v(dg,4)}')
    kvloop(False)
    e(f'''
    v_lshlrev_b32 v{a}, 9, v{d}
    v_lshl_add_u32 v{a}, v{c}, 3, v{a}        ; K: (g>>1)*512 + (g&1)*8
    v_lshl_add_u32 v{a}, v{vM15}, 4, v{a}
    v_lshlrev_b32 v{b}, 2, v{vL}
    v_cvt_pk_bf16_f32 v{dk}, v{dk}, v{dk+1}
    v_cvt_pk_bf16_f32 v{dk+1}, v{dk+2}, v{dk+3}
    buffer_store_dwordx2 {v(dk,2)}, v{a}, {srd(S_WS)}, s{sT2} offen
    buffer_store_dwordx2 {v(dk,2)}, v{a}, {srd(S_WS)}, s{sT1} offen sc1
    v_cvt_pk_bf16_f32 v{dg}, v{dg}, v{dg}
    v_lshlrev_b32 v{dg}, 16, v{dg}
    v_mul_f32 v{dg}, {f32(-LOG2E)}, v{dg}
    v_exp_f32 v{dg}, v{dg}
    v_add_f32 v{dg}, 1.0, v{dg}
    v_rcp_f32 v{dg}, v{dg}
    v_cvt_pk_bf16_f32 v{dg}, v{dg}, v{dg}
    v_lshlrev_b32 v{dg}, 16, v{dg}
    s_mov_b64 exec, 1
    s_waitcnt vmcnt(1)
    buffer_store_dword v12, v11, {srd(S_WS)}, s{sT3} offen
    s_mov_b64 exec, 0xffff
    buffer_store_dword v{dg}, v{b}, {srd(S_WS)}, s{sT0} offen sc1
    s_mov_b64 exec, -1
    s_branch L_kv_d
    L_kv_v:
    ''')
    kvloop(True)
    e(f'''
    v_lshlrev_b32 v{a}, 9, v{c}
    v_lshl_add_u32 v{a}, v{d}, 3, v{a}        ; V: (g&1)*512 + (g>>1)*8
    v_lshl_add_u32 v{a}, v{vM15}, 4, v{a}
    v_cvt_pk_bf16_f32 v{dk}, v{dk}, v{dk+1}
    v_cvt_pk_bf16_f32 v{dk+1}, v{dk+2}, v{dk+3}
    buffer_store_dwordx2 {v(dk,2)}, v{a}, {srd(S_WS)}, s{sT2} offen
    buffer_store_dwordx2 {v(dk,2)}, v{a}, {srd(S_WS)}, s{sT1} offen sc1
    s_mov_b64 exec, 1
    s_waitcnt vmcnt(1)
    buffer_store_dword v12, v11, {srd(S_WS)}, s{sT3} offen
    s_mov_b64 exec, -1
    L_kv_d:
    @stamp h_a
    ''')
    signal(C_KV+8)
    e(f'''
    s_mov_b64 exec, 1
    s_waitcnt vmcnt(0)
    buffer_store_dword v12, v11, {srd(S_WS)}, 0 offen sc1
    s_mov_b64 exec, -1
    @stamp h_b
    ''')
    def gpoll(lbl, sbase, sleep):
        e(f'''
        v_and_b32 v{a}, 31, v{vL}
        v_lshlrev_b32 v{a}, 2, v{a}
        L_poll{lbl}:
        buffer_load_dword v{b}, v{a}, {srd(S_WS)}, s{sbase} offen sc1
        s_waitcnt vmcnt(0)
        v_xor_b32 v{b}, s{sNON}, v{b}
        v_cmp_lt_u32 vcc, 15, v{b}
        s_cbranch_vccz L_polled{lbl}
        s_sleep {sleep}
        s_sub_u32 s{sTO}, s{sTO}, 16
        s_cbranch_scc0 L_poll{lbl}
        s_mov_b32 s{sTO}, 0
        L_polled{lbl}:
        ''')
    e(f's_mov_b32 s{sPOS}, 2')
    e('s_branch L_h023')
    e(f'''
    L_h1:
    s_lshl_b32 s{sT0}, s{sRB}, 16
    s_lshr_b32 s{sT1}, s{sCB}, 1
    s_xor_b32 s{sT1}, s{sT1}, 1
    s_lshl_b32 s{sT1}, s{sT1}, 14
    s_add_u32 s{sT0}, s{sT0}, s{sT1}
    s_and_b32 s{sT1}, s{sT1}, 0x4000
    s_add_u32 s{sT1}, s{sT1}, {XH}
    ''')
    xrows('h', 16)
    signal(C_ISS)
    e('@stamp h_issued')
    TR=16; T2=24
    e(f'''
    v_bfe_u32 v{a}, v{vL}, 2, 2               ; r
    v_lshl_add_u32 v{b}, v{vG4}, 3, v{a}      ; row = 8g + r
    v_and_b32 v{c}, 15, v{b}
    s_lshl_b32 s{sT4}, s{sCB}, 3
    v_bfe_u32 v{d}, v{vL}, 1, 1
    v_or_b32 v{d}, s{sT4}, v{d}               ; c16 (q = 0)
    v_xor_b32 v{d}, v{d}, v{c}
    v_lshlrev_b32 v{d}, 4, v{d}
    v_lshl_add_u32 v{d}, v{b}, 10, v{d}
    v_and_b32 v{a}, 1, v{vL}
    v_lshl_add_u32 v{d}, v{a}, 3, v{d}
    ''')
    e('s_waitcnt vmcnt(0) lgkmcnt(0)')
    e('@stamp h_a')
    signal(C_T0)
    wait(C_QH, 1, sleep=1)
    def xtr(hog):
        for q in range(4):
            e(f'v_xor_b32 v{a}, {32*q}, v{d}')
            e(f'v_xor_b32 v{b}, {(32*q) ^ 64}, v{d}')
            e(f'ds_read_b64_tr_b16 {v(T2+8*q+4*hog,2)}, v{a} offset:{XH if hog else XFL}')
            e(f'ds_read_b64_tr_b16 {v(T2+8*q+4*hog+2,2)}, v{b} offset:{(XH if hog else XFL)+4096}')
    xtr(1)
    signal(C_QH)
    wait(C_ISS, 3, sleep=1)
    wait(C_TAB, 8, sleep=1)
    e(f'''
    s_lshl_b32 s{sT0}, s{sRB}, 16
    s_xor_b32 s{sT1}, s{sKAP}, 1
    s_lshl_b32 s{sT1}, s{sT1}, 15
    s_add_u32 s{sT0}, s{sT0}, s{sT1}
    s_mov_b32 s{sT1}, {XFL}
    ''')
    xrows('f', 32)
    e('@stamp h_b')
    nonce()
    e(f'''
    v_mov_b32 v{TR}, -1
    v_mov_b32 v{TR+1}, -1
    v_mov_b32 v{TR+2}, -1
    v_mov_b32 v{TR+3}, -1
    s_lshl_b32 s{sT0}, s{sRB}, 16
    s_lshl_b32 s{sT1}, s{sCB}, 12
    s_add_u32 s{sT0}, s{sT0}, s{sT1}
    s_add_u32 s{sT0}, s{sT0}, {WS_O}
    s_add_u32 s{sT1}, s{sT0}, 32768
    s_lshl_b32 s{sT2}, s{sD0}, 12
    s_add_u32 s{sT2}, s{sT2}, {WS_B}
    s_add_u32 s{sT3}, s{sT2}, 4096
    v_lshlrev_b32 v{c}, 12, v{vM15}
    v_lshl_add_u32 v{c}, v{vG4}, 4, v{c}
    s_lshl_b32 s{sT4}, s{sKAP}, 6
    v_add_u32 v13, s{sT4}, v{c}
    v_xor_b32 v{c}, 64, v13
    s_lshl_b32 s{sT4}, s{sCB}, 18
    s_lshl_b32 s{sT5}, s{sRB}, 7
    s_add_u32 s{sT4}, s{sT4}, s{sT5}
    s_add_u32 s{sT4}, s{sT4}, {WS_XT}
    s_waitcnt vmcnt(0)
    ''')
    signal(C_T2)
    e('@stamp h_c')
    xtr(0)
    signal(C_QA)
    wait(C_KISS, 3, sleep=1)
    for q in range(8):
        e(f'buffer_store_dwordx4 {v(T2+4*q,4)}, v{13 if q&1 else c}, {srd(S_WS)}, s{sT4} offen sc1')
        if q & 1: e(f's_add_u32 s{sT4}, s{sT4}, 65536')
    for sr in (sT0, sT1, sT2, sT3):
        for j in range(4):
            e(f'buffer_store_dwordx4 {v(TR,4)}, v{vL16}, {srd(S_WS)}, s{sr} offen offset:{j*1024} sc1')
    e(f'''
    s_mul_i32 s{sT0}, s{sCB}, {FST}
    s_lshl_b32 s{sT1}, s{sRB}, 2
    s_add_u32 s{sT0}, s{sT0}, s{sT1}
    s_add_u32 s{sT0}, s{sT0}, {WS_F2}
    v_mov_b32 v11, s{sT0}
    v_mov_b32 v{a}, s{sNON}
    s_mov_b64 exec, 1
    s_waitcnt vmcnt(0)
    buffer_store_dword v{a}, v11, {srd(S_WS)}, 0 offen sc1
    s_mov_b64 exec, -1
    ''')
    signal(C_ST)
    e('s_branch L_hkvd')
    e('L_h23:')
    e(f'''
    v_lshrrev_b32 v{a}, 3, v{vL}
    v_lshlrev_b32 v{a}, 10, v{a}
    v_and_b32 v{b}, 7, v{vL}
    v_bfe_u32 v{c}, v{vL}, 4, 1
    v_lshlrev_b32 v{c}, 1, v{c}
    v_xor_b32 v{b}, v{b}, v{c}
    v_lshl_add_u32 v{c}, v{b}, 4, v{a}
    v_xor_b32 v{d}, 64, v{c}
    s_sub_u32 s{sPOS}, s{sW}, 1               ; 1 or 2
    s_lshl_b32 s{sT0}, s{sPOS}, 2
    v_add_u32 v10, s{sT0}, v{vC}
    ''')
    wait(C_ISS, f's{sPOS}', sleep=1)
    e(f'''
    s_and_b32 s{sT2}, s{sW}, 1
    s_lshl_b32 s{sT0}, s{sT2}, 18
    s_lshl_b32 s{sT1}, s{sCB}, 7
    s_add_u32 s{sT0}, s{sT0}, s{sT1}
    s_lshl_b32 s{sT1}, s{sT2}, 15
    s_add_u32 s{sT1}, s{sT1}, {WQ}
    s_mov_b32 s{sCNT}, 0
    L_wp:
    ''')
    for j in range(4):
        e(f'''
        s_mov_b32 m0, s{sT1}
        s_add_u32 s{sT1}, s{sT1}, 1024
        buffer_load_dwordx4 v{d if j&1 else c}, {srd(S_WQ)}, s{sT0} offen lds
        s_add_u32 s{sT0}, s{sT0}, 8192
        ''')
    e(f'''
    s_add_u32 s{sCNT}, s{sCNT}, 1
    s_cmp_lt_u32 s{sCNT}, 8
    s_cbranch_scc1 L_wp
    ''')
    signal(C_ISS)
    e('@stamp h_issued')
    e('s_waitcnt vmcnt(0)')
    signal(C_ISS, addr=10)
    e('@stamp h_a')
    nonce()
    e(f's_sub_u32 s{sPOS}, s{sPOS}, 1')
    e('L_h023:')
    e(f'''
    L_kvl:
    s_add_u32 s{sT1}, s{sXCD}, s{sPOS}
    s_and_b32 s{sT1}, s{sT1}, 7
    s_mul_i32 s{sT2}, s{sT1}, {FST}
    s_add_u32 s{sT2}, s{sT2}, {WS_F1}
    s_lshl_b32 s{sT1}, s{sT1}, 14
    s_cmp_ge_u32 s{sPOS}, 3
    s_cbranch_scc1 L_kvp
    s_cmp_eq_u32 s{sPOS}, 0
    s_cbranch_scc0 L_kvw1
    ''')
    wait(C_KV+8, 1, sleep=1)
    e(f'''
    s_getreg_b32 s{sT3}, hwreg(HW_REG_XCC_ID, 0, 4)
    s_xor_b32 s{sT3}, s{sT3}, s{sNON}
    s_add_u32 s{sT4}, s{sT2}, {LDELTA}
    s_mov_b32 s{sCNT}, 0
    v_and_b32 v{a}, 31, v{vL}
    v_lshlrev_b32 v{a}, 2, v{a}
    L_lpoll:
    buffer_load_dword v{b}, v{a}, {srd(S_WS)}, s{sT4} offen sc1
    s_waitcnt vmcnt(0)
    v_cmp_ne_u32 vcc, s{sT3}, v{b}
    v_xor_b32 v{b}, s{sNON}, v{b}
    s_cbranch_vccz L_lok
    s_sleep 2
    s_add_u32 s{sCNT}, s{sCNT}, 1
    s_cmp_lt_u32 s{sCNT}, 12
    s_cbranch_scc1 L_lpoll
    s_branch L_kvp
    L_lok:
    s_add_u32 s{sT1}, s{sT1}, {LDELTA}
    @stamp h_p0
    s_branch L_kvgo
    L_kvw1:
    ''')
    wait(C_QH, 6, sleep=1)
    e('L_kvp:')
    gpoll(1, sT2, 6)
    e(f'''
    s_cmp_lt_u32 s{sPOS}, 3
    s_cbranch_scc1 L_kvgo
    ''')
    wait(C_QA, 9, sleep=1)
    e('L_kvgo:')
    wait(C_KISS, f's{sPOS}', sleep=1)
    e(f'''
    s_lshl_b32 s{sT0}, s{sPOS}, 14
    ''')
    for j in range(4):
        e(f's_mov_b32 m0, s{sT0}')
        for i in range(4):
            e(f'buffer_load_dwordx4 v{vL16}, {srd(S_WS)}, s{sT1} offen offset:{i*1024} sc1 lds')
        e(f's_add_u32 s{sT0}, s{sT0}, 4096')
        e(f's_add_u32 s{sT1}, s{sT1}, 4096')
    signal(C_KISS)
    e(f'''
    s_lshl_b32 s{sT0}, s{sPOS}, 2
    v_add_u32 v{d}, s{sT0}, v{vC}
    s_cmp_lg_u32 s{sPOS}, 0
    s_cbranch_scc1 L_noloc
    s_getreg_b32 s{sT1}, hwreg(HW_REG_XCC_ID, 0, 4)
    v_cmp_ne_u32 vcc, s{sT1}, v{b}
    s_and_b32 s{sT0}, s{sRB}, 3
    s_lshl_b32 s{sT0}, s{sT0}, 3
    s_lshr_b32 s{sT0}, vcc_lo, s{sT0}
    s_and_b32 s{sT0}, s{sT0}, 0xff
    s_cbranch_scc1 L_noloc
    ''')
    signal(C_KVOK)
    e('L_noloc:')
    e(f'''
    s_cmp_lg_u32 s{sPOS}, 7
    s_cbranch_scc1 L_no7
    s_mul_i32 s{sT2}, s{sXCD}, {FST}
    s_add_u32 s{sT2}, s{sT2}, {WS_F1}
    ''')
    gpoll(2, sT2, 6)
    e(f'''
    L_no7:
    s_cmp_eq_u32 s{sPOS}, 7
    s_cselect_b32 s{sT0}, 2, 1
    v_mov_b32 v{a}, s{sT0}
    s_mov_b64 exec, 1
    s_waitcnt vmcnt(0)
    ds_add_u32 v{d}, v{a} offset:{4*C_KV}
    s_mov_b64 exec, -1
    ''')
    e(f'''
    s_cmp_ge_u32 s{sPOS}, 3
    s_cbranch_scc1 L_nostamp
    @stamp h_kv0
    L_nostamp:
    s_add_u32 s{sPOS}, s{sPOS}, 3
    s_cmp_lt_u32 s{sPOS}, 8
    s_cbranch_scc1 L_kvl
    L_hkvd:
    @stamp h_kvd
    ''')
    mk(S_WO, P_WO, 524288)
    mk(S_OUT, P_OUT, 2097152)
    e(f'''
    s_lshr_b32 s{sCH}, s{sW}, 1
    s_and_b32 s{sHF}, s{sW}, 1
    s_lshl_b32 s{sT0}, s{sCH}, 2
    v_add_u32 v10, s{sT0}, v{vC}
    ''')
    import os
    if os.environ.get('SKIPH'):
        e(f'v_mov_b32 v11, 0\nv_mov_b32 v{d}, 0\ns_branch L_hfin')
    wait(C_QA, 9, sleep=1)
    e(f'''
    s_cmp_eq_u32 s{sW}, 1
    s_cbranch_scc1 L_sg1
    s_cmp_eq_u32 s{sW}, 2
    s_cbranch_scc1 L_sg2
    s_cmp_eq_u32 s{sW}, 3
    s_cbranch_scc1 L_sg3
    v_mov_b32 v{a}, 0
    v_mov_b32 v{b}, 0
    v_lshlrev_b32 v11, 3, v{vL}
    v_add_u32 v{c}, {KREV+4096}, v11
    v_sub_u32 v11, {KREV+4088}, v11
    v_add_u32 v{d}, {PB+12}, v{vL16}
    s_mov_b64 exec, 0xff
    ds_write_b64 v{c}, {v(a,2)}
    ds_write_b64 v{c}, {v(a,2)} offset:{KREV_O}
    ds_write_b64 v{c}, {v(a,2)} offset:{KREV_CH}
    ds_write_b64 v{c}, {v(a,2)} offset:{KREV_CH+KREV_O}
    s_mov_b64 exec, -1
    ''')
    for ch in range(2):
        g0 = 16 + 16*ch
        for pp in range(2):
            e(f'ds_read_b128 {v(g0+6*pp,4)}, v{d} offset:{(2*ch+pp)*GW+4}')
            e(f'ds_read_b32 v{g0+6*pp+4}, v{d} offset:{(2*ch+pp)*GW}')
    for ch in range(2):
        g0 = 16 + 16*ch
        e(f's_waitcnt lgkmcnt({4 if ch==0 else 2})')
        for k in range(5): e(f'v_add_f32 v{g0+k}, v{g0+k}, v{g0+6+k}')
        e(f'''
        v_cvt_pk_bf16_f32 v{g0+12}, v{g0+3}, v{g0+2}
        v_cvt_pk_bf16_f32 v{g0+13}, v{g0+1}, v{g0}
        v_cvt_pk_bf16_f32 v{g0+14}, v{g0+2}, v{g0+1}
        v_cvt_pk_bf16_f32 v{g0+15}, v{g0}, v{g0+4}
        ds_write_b64 v11, {v(g0+12,2)} offset:{ch*KREV_CH}
        ds_write_b64 v11, {v(g0+14,2)} offset:{ch*KREV_CH+KREV_O}
        ''')
    e('s_branch L_sgd')
    def seg(sg):
        n = 2 << sg
        p0 = 128 << sg
        ta = {1:2, 2:3, 3:5}[sg]; tb = {1:3, 2:6, 3:12}[sg]
        val = lambda r: 0 if r < ta else (1 if r < tb else 2)
        e(f'''
        L_sg{sg}:
        v_lshlrev_b32 v{d}, 3, v{vL}
        v_add_u32 v{d}, {PB+16+(128+128*sg)*4-4}, v{d}
        v_lshlrev_b32 v11, {sg+2}, v{vL}
        v_sub_u32 v11, {KREV+(2047-(p0+n-1))*2}, v11
        ''')
        if sg == 1: e(f'v_cmp_eq_u32 vcc, 0, v{vL}')
        for ch in range(2):
            g0 = 16 + 32*ch
            for pp in range(2):
                e(f'ds_read_b64 {v(g0+4*pp,2)}, v{d} offset:{(2*ch+pp)*GW+4}')
                e(f'ds_read_b32 v{g0+4*pp+2}, v{d} offset:{(2*ch+pp)*GW+12}')
                if sg == 1: e(f'ds_read_b32 v{g0+4*pp+3}, v{d} offset:{(2*ch+pp)*GW}')
        e('s_waitcnt lgkmcnt(0)')
        for ch in range(2):
            g0 = 16 + 32*ch
            for k in range(4 if sg == 1 else 3): e(f'v_add_f32 v{g0+k}, v{g0+k}, v{g0+4+k}')
            if sg == 1: e(f'v_cndmask_b32 v{g0+3}, v{g0}, v{g0+3}, vcc')
            reg = lambda r: (g0+3 if sg == 1 else g0) if r < 0 else g0+val(r)
            E = g0+8; Oc = g0+16
            for i in range(n//2):
                r = n-1-2*i
                e(f'v_cvt_pk_bf16_f32 v{E+i}, v{reg(r)}, v{reg(r-1)}')
                e(f'v_cvt_pk_bf16_f32 v{Oc+i}, v{reg(r-1)}, v{reg(r-2)}')
            for (X, off) in ((E, 0), (Oc, KREV_O)):
                if sg == 1: e(f'ds_write_b64 v11, {v(X,2)} offset:{ch*KREV_CH+off}')
                else:
                    for hh in range(n//8): e(f'ds_write_b128 v11, {v(X+4*hh,4)} offset:{ch*KREV_CH+off+16*hh}')
        if sg < 3: e('s_branch L_sgd')
    for sg in (1,2,3): seg(sg)
    e('L_sgd:')
    signal(C_KREV)
    e('@stamp h_krev')
    e(f'''
    s_mul_i32 s{sT2}, s{sXCD}, {FST}
    s_add_u32 s{sT2}, s{sT2}, {WS_F2}
    ''')
    gpoll(3, sT2, 8)
    e('@stamp h_f2')
    wait(C_KREV, 4, sleep=1)
    e(f'''
    s_mul_i32 s{sT1}, s{sCH}, {XC_CH}
    s_add_u32 s{sT1}, s{sT1}, {XC}
    s_cmp_eq_u32 s{sHF}, 1
    s_cbranch_scc1 L_xpad
    s_add_u32 s{sT1}, s{sT1}, 512
    s_mov_b32 m0, s{sT1}
    s_add_u32 s{sT0}, s{sD0}, s{sCH}
    s_lshl_b32 s{sT0}, s{sT0}, 12
    s_add_u32 s{sT0}, s{sT0}, {WS_XT}
    ''')
    for i in range(4):
        e(f'buffer_load_dwordx4 v{vL16}, {srd(S_WS)}, s{sT0} offen offset:{i*1024} sc1 lds')
    e(f'''
    s_branch L_xpad_d
    L_xpad:
    v_mov_b32 v{a}, 0
    v_mov_b32 v{b}, 0
    v_lshlrev_b32 v{c}, 3, v{vL}
    v_add_u32 v{c}, s{sT1}, v{c}
    ds_write_b64 v{c}, {v(a,2)}
    L_xpad_d:
    s_waitcnt vmcnt(0)
    ''')
    signal(C_XT, addr=10)
    e('@stamp h_kv1')
    aA=12; aB=20; CA=24; CB=56; CACC=120
    e(f'''
    v_lshrrev_b32 v{a}, 1, v{vG4}
    v_lshlrev_b32 v{a}, 4, v{a}
    v_add_u32 v{a}, v{a}, v{vM15}
    v_and_b32 v{b}, 1, v{vG4}
    v_lshlrev_b32 v{c}, 3, v{b}
    v_sub_u32 v{a}, v{a}, v{c}
    v_sub_u32 v{a}, 2047, v{a}                 ; r00
    v_and_b32 v{c}, 1, v{a}
    v_sub_u32 v{a}, v{a}, v{c}
    v_lshlrev_b32 v{a}, 1, v{a}
    v_mul_u32_u24 v{c}, {KREV_O}, v{c}
    v_add_u32 v{a}, v{a}, v{c}
    s_mul_i32 s{sT0}, s{sCH}, {KREV_CH}
    s_add_u32 s{sT0}, s{sT0}, {KREV - 192}
    s_lshl_b32 s{sT1}, s{sHF}, 8
    s_sub_u32 s{sT0}, s{sT0}, s{sT1}
    v_add_u32 v{aA}, s{sT0}, v{a}
    ''')
    for u in range(1,8):
        e(f'v_subrev_u32 v{aA+u}, {512*u}, v{aA}')
    e(f'''
    v_lshrrev_b32 v{a}, 1, v{vG4}
    v_sub_u32 v{a}, v{vM15}, v{a}
    v_lshlrev_b32 v{a}, 5, v{a}
    v_lshl_add_u32 v{a}, v{b}, 4, v{a}
    s_mul_i32 s{sT0}, s{sCH}, {XC_CH}
    s_add_u32 s{sT0}, s{sT0}, {XC + 512 - 192}
    s_sub_u32 s{sT0}, s{sT0}, s{sT1}
    v_add_u32 v{aB}, s{sT0}, v{a}
    ''')
    def rdA(wq, u):
        o = 16*(3-wq)
        e(f'ds_read2_b32 {v(CA+4*u,2)}, v{aA+u} offset0:{o} offset1:{o+1}')
        e(f'ds_read2_b32 {v(CA+4*u+2,2)}, v{aA+u} offset0:{o+2} offset1:{o+3}')
    def rdB(wq, s):
        e(f'ds_read_b128 {v(CB+32*(wq&1)+4*s,4)}, v{aB} offset:{s*512+(3-wq)*64}')
    for u in range(8): rdA(0, u)
    wait(C_XT, 2, addr=10)
    e('s_setprio 2')
    for s in range(8): rdB(0, s)
    for wq in range(4):
        e('s_waitcnt lgkmcnt(0)')
        B = CB + 32*(wq&1)
        for u in range(7,-1,-1):
            for nt in range(u, 8):
                e(f'v_mfma_f32_16x16x32_bf16 {v(CACC+4*nt,4)}, {v(CA+4*u,4)}, {v(B+4*(nt-u),4)}, {"0" if (wq==0 and nt==u) else v(CACC+4*nt,4)}')
            if wq < 3:
                rdA(wq+1, u)
                rdB(wq+1, u)
    e('s_setprio 3')
    signal(C_CR, addr=10)
    e(f'''
    @stamp h_conv
    s_cmp_eq_u32 s{sHF}, 0
    s_cbranch_scc1 L_noswap
    s_nop 7
    ''')
    for i in range(16): e(f'v_swap_b32 v{CACC+i}, v{CACC+16+i}')
    e(f'''
    L_noswap:
    s_mul_i32 s{sT0}, s{sCH}, {KREV_CH}
    s_add_u32 s{sT0}, s{sT0}, {KREV}
    s_lshl_b32 s{sT1}, s{sHF}, 12
    s_add_u32 s{sT2}, s{sT0}, s{sT1}
    s_xor_b32 s{sT1}, s{sT1}, 4096
    s_add_u32 s{sT0}, s{sT0}, s{sT1}
    v_add_u32 v{a}, s{sT2}, v{vL16}
    v_add_u32 v{b}, s{sT0}, v{vL16}
    ''')
    wait(C_CR, 2, addr=10, sleep=0)
    for q in range(4):
        e(f'ds_write_b128 v{a}, {v(CACC+16+4*q,4)} offset:{q*1024}')
    signal(C_CW, addr=10)
    e(f'''
    v_lshlrev_b32 v{c}, 5, v{vM15}
    v_lshl_add_u32 v{c}, v{vG4}, 3, v{c}
    s_lshl_b32 s{sT1}, s{sHF}, 11
    v_add_u32 v{c}, s{sT1}, v{c}
    s_mul_i32 s{sT0}, s{sCH}, {XC_CH}
    s_add_u32 s{sT0}, s{sT0}, {XC+512}
    v_add_u32 v{d}, s{sT0}, v{c}
    s_add_u32 s{sT0}, s{sD0}, s{sCH}
    s_lshl_b32 s{sT0}, s{sT0}, 12
    s_add_u32 s{sT0}, s{sT0}, {WS_B}
    s_lshl_b32 s{sT1}, s{sCH}, 4
    s_lshr_b32 s{sT1}, s{sDSK}, s{sT1}
    s_lshl_b32 s{sT1}, s{sT1}, 16
    s_mov_b32 s{sT2}, 0xfffefffe
    ''')
    wait(C_ST, 1, sleep=1)
    wait(C_CW, 2, addr=10, sleep=0)
    XV=24; T=40
    for q in range(4):
        e(f'ds_read_b128 {v(CACC+16+4*q,4)}, v{b} offset:{q*1024}')
        e(f'ds_read_b64 {v(XV+2*q,2)}, v{d} offset:{q*512}')
    signal(C_CONV)
    for q in range(4):
        y=CACC+4*q
        e(f's_waitcnt lgkmcnt({7-2*q})')
        for r in range(4): e(f'v_add_f32 v{y+r}, v{y+r}, v{y+16+r}')
        for hh in range(2):
            x=XV+2*q+hh
            e(f'''
            v_lshlrev_b32 v{T+1}, 16, v{x}
            v_and_b32 v{T+2}, 0xffff0000, v{x}
            v_fmac_f32 v{y+2*hh}, s{sT1}, v{T+1}
            v_fmac_f32 v{y+2*hh+1}, s{sT1}, v{T+2}
            v_cvt_pk_bf16_f32 v{x}, v{y+2*hh}, v{y+2*hh+1}
            v_pk_min_u16 v{x}, v{x}, s{sT2}
            ''')
        e(f'buffer_store_dwordx2 {v(XV+2*q,2)}, v{c}, {srd(S_WS)}, s{sT0} offen offset:{q*512} sc1')
    e('@stamp h_bout')
    WOF=36; ACC=12; BP=28; GV=10; OA=11
    NS=6
    e(f'''
    v_lshrrev_b32 v{a}, 2, v{vL}
    v_lshlrev_b32 v{a}, 10, v{a}
    v_and_b32 v{b}, 3, v{vL}
    v_lshl_add_u32 v{a}, v{b}, 4, v{a}
    s_lshr_b32 s{sT0}, s{sCB}, 1
    s_lshl_b32 s{sT0}, s{sT0}, 8
    s_lshl_b32 s{sT1}, s{sW}, 6
    s_add_u32 s{sT0}, s{sT0}, s{sT1}
    s_mul_i32 s{sT2}, s{sW}, {NS*1024}
    s_add_u32 s{sT2}, s{sT2}, {POOL}
    v_bfe_u32 v{c}, v{vL}, 2, 2
    v_lshrrev_b32 v{d}, 5, v{vL}
    v_lshl_add_u32 v{c}, v{d}, 2, v{c}         ; 4h + r
    v_lshlrev_b32 v{c}, 6, v{c}
    v_bfe_u32 v{d}, v{vL}, 4, 1
    v_lshl_add_u32 v{c}, v{d}, 5, v{c}
    v_lshl_add_u32 v{c}, v{b}, 3, v{c}
    v_add_u32 v{c}, s{sT2}, v{c}
    s_waitcnt vmcnt(0)
    ''')
    wait(C_CONV, 4)
    def wodma(k):
        e(f'''
        s_add_u32 s{sT3}, s{sT2}, {(k%NS)*1024}
        s_mov_b32 m0, s{sT3}
        s_nop 0
        buffer_load_dwordx4 v{a}, {srd(S_WO)}, s{sT0} offen lds
        s_add_u32 s{sT0}, s{sT0}, 16384
        ''')
    for k in range(NS): wodma(k)
    for k in range(28):
        e(f's_waitcnt vmcnt({min(NS-1, 31-k)})')
        e(f'ds_read_b64_tr_b16 {v(WOF+4*k,2)}, v{c} offset:{(k%NS)*1024}')
        e(f'ds_read_b64_tr_b16 {v(WOF+4*k+2,2)}, v{c} offset:{(k%NS)*1024+512}')
        if k+NS < 32:
            e('s_waitcnt lgkmcnt(0)')
            wodma(k+NS)
    e(f'v_mov_b32 v{d}, v{c}')
    e('@stamp h_wo')
    e(f'''
    s_mov_b32 s{sT0}, {WS_F2}
    v_lshrrev_b32 v{a}, 3, v{vL}
    v_mul_u32_u24 v{a}, {FST}, v{a}
    v_and_b32 v{b}, 7, v{vL}
    v_lshl_add_u32 v{a}, v{b}, 4, v{a}
    L_pollA:
    buffer_load_dwordx4 {v(ACC,4)}, v{a}, {srd(S_WS)}, s{sT0} offen sc1
    s_waitcnt vmcnt(0)
    v_xor_b32 v{ACC}, s{sNON}, v{ACC}
    v_xor_b32 v{ACC+1}, s{sNON}, v{ACC+1}
    v_xor_b32 v{ACC+2}, s{sNON}, v{ACC+2}
    v_xor_b32 v{ACC+3}, s{sNON}, v{ACC+3}
    v_or3_b32 v{ACC}, v{ACC}, v{ACC+1}, v{ACC+2}
    v_or_b32 v{ACC}, v{ACC}, v{ACC+3}
    v_cmp_ne_u32 vcc, 0, v{ACC}
    s_cbranch_vccz L_polledA
    s_sleep 8
    s_sub_u32 s{sTO}, s{sTO}, 16
    s_cbranch_scc0 L_pollA
    s_mov_b32 s{sTO}, 0
    L_polledA:
    s_or_b32 s{sT0}, s2, s{sW}
    s_cmp_lg_u32 s{sT0}, 0
    s_cbranch_scc1 L_nogen
    v_mov_b32 v{a}, {WS_GEN}
    v_mov_b32 v{b}, s{sNON}
    s_mov_b64 exec, 1
    buffer_store_dword v{b}, v{a}, {srd(S_WS)}, 0 offen sc1
    s_mov_b64 exec, -1
    L_nogen:
    ''')
    e(f'''
    s_lshl_b32 s{sT0}, s{sRB}, 6
    s_and_b32 s{sT1}, s{sCB}, 1
    s_lshl_b32 s{sT1}, s{sT1}, 5
    s_add_u32 s{sT0}, s{sT0}, s{sT1}
    v_and_b32 v{a}, 31, v{vL}
    v_add_u32 v{a}, s{sT0}, v{a}               ; row
    s_lshr_b32 s{sT0}, s{sCB}, 1
    s_lshl_b32 s{sT0}, s{sT0}, 7
    s_lshl_b32 s{sT1}, s{sW}, 5
    s_add_u32 s{sT0}, s{sT0}, s{sT1}
    v_lshrrev_b32 v{b}, 5, v{vL}
    v_lshlrev_b32 v{b}, 2, v{b}
    v_add_u32 v{b}, s{sT0}, v{b}
    v_lshlrev_b32 v{OA}, 10, v{a}
    v_lshl_add_u32 v{OA}, v{b}, 1, v{OA}
    v_lshlrev_b32 v{b}, 12, v{b}
    v_lshl_add_u32 v{b}, v{a}, 1, v{b}
    v_add_u32 v{b}, {WS_B}, v{b}
    v_lshlrev_b32 v{a}, 2, v{a}
    s_mov_b32 s{sT0}, {WS_G}
    buffer_load_dword v{GV}, v{a}, {srd(S_WS)}, s{sT0} offen sc1
    L_bpoll:
    ''')
    for i in range(16):
        col = (i>>2)*8 + (i&3)
        e(f's_mov_b32 s{sT0}, {col*4096}')
        e(f'buffer_load_ushort v{ACC+i}, v{b}, {srd(S_WS)}, s{sT0} offen sc1')
    e(f's_waitcnt vmcnt(0)')
    e(f'v_max3_u32 v{c}, v{ACC}, v{ACC+1}, v{ACC+2}')
    for i in range(3,15,2): e(f'v_max3_u32 v{c}, v{c}, v{ACC+i}, v{ACC+i+1}')
    e(f'''
    v_max_u32 v{c}, v{c}, v{ACC+15}
    v_cmp_eq_u32 vcc, 0xffff, v{c}
    s_cbranch_vccz L_bok
    s_sleep 8
    s_sub_u32 s{sTO}, s{sTO}, 16
    s_cbranch_scc0 L_bpoll
    s_mov_b32 s{sTO}, 0
    L_bok:
    v_sub_f32 v{c}, 1.0, v{GV}
    ''')
    for i in range(16):
        e(f'v_lshlrev_b32 v{ACC+i}, 16, v{ACC+i}')
        e(f'v_mul_f32 v{ACC+i}, v{ACC+i}, v{c}')
    e('@stamp h_bok')
    OF0=4
    e('L_hfin:')
    e('s_barrier')
    e('s_barrier')
    e('@stamp h_o0')
    OB=148
    q=[]
    def ds(tag, txt): e(txt); q.append(tag)
    def need_(tags):
        idx=max(i for i,t in enumerate(q) if t in tags) if any(t in tags for t in q) else -1
        if idx >= 0:
            e(f's_waitcnt lgkmcnt({len(q)-1-idx})')
            del q[:idx+1]
    for k in range(4): ds(('o',k), f'ds_read_b128 {v(OB+4*k,4)}, v{vL16} offset:{k*1024}')
    for k in range(32):
        need_({('o',k),('w',k)})
        W = WOF+4*k if k < 28 else WOF+4*(k-28)
        e(f'v_mfma_f32_32x32x16_bf16 {v(ACC,16)}, {v(W,4)}, {v(OB+4*(k%4),4)}, {v(ACC,16)}')
        if k+4 < 32: ds(('o',k+4), f'ds_read_b128 {v(OB+4*(k%4),4)}, v{vL16} offset:{(k+4)*1024}')
        if k < 4:
            kk=28+k
            ds(('w',kk), f'ds_read_b64_tr_b16 {v(WOF+4*k,2)}, v{d} offset:{(kk%NS)*1024}')
            ds(('w',kk), f'ds_read_b64_tr_b16 {v(WOF+4*k+2,2)}, v{d} offset:{(kk%NS)*1024+512}')
    e('@stamp h_mm')
    T=WOF+16
    for i in range(8):
        e(f'v_cvt_pk_bf16_f32 v{T+i}, v{ACC+2*i}, v{ACC+2*i+1}')
        if i & 1:
            e(f'buffer_store_dwordx2 {v(T+i-1,2)}, v{OA}, {srd(S_OUT)}, 0 offen offset:{(i>>1)*16}')
    e('@stamp h_end')
    finish()
    vQ=10
    PR=14
    R=24; s1=40; s2=42; mu=44; tt=46; pk=48; wa=18; ra=20; FA=96; FB=146; vG=24
    al=66; bh=67; bl=68; dt=21; p1=22; p2=23; ee=69
    NM=16; S0=40; S1=56; P=72; O=80; KF=96; VF=112; ad=14; mx=15; kvf=144; fl=145
    e(f'''
    L_main:
    s_sub_u32 s{sM}, s{sW}, 4
    s_lshr_b32 s{sRT}, s{sM}, 2
    s_and_b32 s{sHD}, s{sM}, 3
    s_lshr_b32 s{sCH}, s{sHD}, 1
    s_setprio 1
    s_cmp_eq_u32 s{sRT}, 0
    s_cbranch_scc1 L_np
    s_setprio 3
    L_np:
    ''')
    e(f'''
    v_and_b32 v{a}, 27, v{vL}
    v_cmp_eq_u32 vcc, 16, v{a}
    v_mov_b32 v{b}, 0x3f803f80
    v_cndmask_b32 v{VF}, 0, v{b}, vcc
    ''')
    for i in range(1,32): e(f'v_mov_b32 v{VF+i}, v{VF}')
    for i in range(16): e(f'v_mov_b32 v{O+i}, 0')
    for i in range(4): e(f'v_mov_b32 v{P+4+i}, 0')
    def exp_acc(dst, x, t, u):
        e(f'''
        v_mul_f32 v{t}, {f32(L2E_HI)}, v{x}
        v_fma_f32 v{u}, v{x}, s{sT4}, -v{t}
        v_fmac_f32 v{u}, {f32(L2E_LO)}, v{x}
        v_exp_f32 v{dst}, v{t}
        v_mul_f32 v{u}, {f32(math.log(2.0))}, v{u}
        v_fma_f32 v{dst}, v{dst}, v{u}, v{dst}
        v_cvt_pk_bf16_f32 v{dst}, v{dst}, v{dst}
        v_lshlrev_b32 v{dst}, 16, v{dst}
        ''')
    def cmul(D, X, Y, T=None):
        T = D if T is None else T
        e(f'''
        v_pk_mul_f32 {v(T,2)}, {v(X,2)}, {v(Y,2)} op_sel:[0,0] op_sel_hi:[0,1]
        v_pk_fma_f32 {v(D,2)}, {v(X,2)}, {v(Y,2)}, {v(T,2)} op_sel:[1,1,0] op_sel_hi:[1,0,1] neg_lo:[1,0,0]
        ''')
    def cmul_inplace(idxs, Y):
        for k,i in enumerate(idxs):
            e(f'v_pk_mul_f32 {v(56+2*(k%4),2)}, {v(R+2*i,2)}, {v(Y,2)} op_sel:[0,0] op_sel_hi:[0,1]')
            if k >= 1:
                j = idxs[k-1]
                e(f'v_pk_fma_f32 {v(R+2*j,2)}, {v(R+2*j,2)}, {v(Y,2)}, {v(56+2*((k-1)%4),2)} op_sel:[1,1,0] op_sel_hi:[1,0,1] neg_lo:[1,0,0]')
        k = len(idxs)-1; j = idxs[k]
        e(f'v_pk_fma_f32 {v(R+2*j,2)}, {v(R+2*j,2)}, {v(Y,2)}, {v(56+2*(k%4),2)} op_sel:[1,1,0] op_sel_hi:[1,0,1] neg_lo:[1,0,0]')
    e(f'''
    s_mov_b32 s{sT4}, {f32(L2E_HI)}
    s_mov_b32 s{sT5}, {f32(I2P_HI)}
    v_cmp_lt_u32 s[{sM0}:{sM0+1}], 31, v{vL}
    v_mov_b32 v{b}, {f32(8.0)}
    v_cndmask_b32 v{p1}, v{b}, 1.0, s[{sM0}:{sM0+1}]
    v_mov_b32 v{b}, {f32(64.0)}
    v_mov_b32 v{c}, {f32(256.0)}
    v_cndmask_b32 v{p2}, v{b}, v{c}, s[{sM0}:{sM0+1}]
    s_lshl_b32 s{sT0}, s{sM}, 12
    s_add_u32 s{sT3}, s{sT0}, {XFL}
    v_lshrrev_b32 v{a}, 5, v{vL}
    v_lshlrev_b32 v{a}, 11, v{a}
    v_and_b32 v{b}, 31, v{vL}
    v_lshl_add_u32 v{a}, v{b}, 4, v{a}
    v_add_u32 v{wa}, s{sT3}, v{a}
    v_xor_b32 v{wa+1}, 0x80, v{wa}
    v_lshrrev_b32 v{a}, 2, v{vL}              ; 4g + r
    v_lshlrev_b32 v{a}, 4, v{a}
    v_bfe_u32 v{b}, v{vL}, 1, 1               ; gh
    v_mul_u32_u24 v{b}, 0x280, v{b}
    v_xor_b32 v{a}, v{a}, v{b}
    v_and_b32 v{b}, 1, v{vL}
    v_lshl_add_u32 v{a}, v{b}, 3, v{a}
    v_add_u32 v{ra}, s{sT3}, v{a}
    s_waitcnt lgkmcnt(0)
    s_lshl_b32 s{sT0}, s{sCH}, 4
    s_lshr_b32 s{sT1}, s{sLDT}, s{sT0}
    s_lshl_b32 s{sT1}, s{sT1}, 16
    v_mov_b32 v{a}, s{sT1}
    ''')
    exp_acc(dt, a, b, c)
    e(f'''
    s_waitcnt vmcnt(0)
    @stamp m_par
    v_and_b32 v{a}, 0x7fff, v{PR+2}
    v_and_b32 v{b}, 0x7fff, v{PR+3}
    v_max_u32 v{a}, v{a}, v{b}
    v_max_u32_dpp v{a}, v{a}, v{a} row_shr:1 row_mask:0xf bank_mask:0xf
    v_max_u32_dpp v{a}, v{a}, v{a} row_shr:2 row_mask:0xf bank_mask:0xf
    v_max_u32_dpp v{a}, v{a}, v{a} row_shr:4 row_mask:0xf bank_mask:0xf
    v_max_u32_dpp v{a}, v{a}, v{a} row_shr:8 row_mask:0xf bank_mask:0xf
    v_readlane_b32 s{sT0}, v{a}, 15
    v_readlane_b32 s{sT1}, v{a}, 31
    s_max_u32 s{sT0}, s{sT0}, s{sT1}
    s_lshr_b32 s{sT0}, s{sT0}, 7
    s_max_u32 s{sT0}, s{sT0}, 1
    s_min_u32 s{sT0}, s{sT0}, 253
    s_lshl_b32 s{sSC}, s{sT0}, 23
    s_sub_u32 s{sT0}, 254, s{sT0}
    s_lshl_b32 s{sSCI}, s{sT0}, 23
    v_lshlrev_b32 v{a}, 16, v{PR}
    ''')
    exp_acc(al, a, b, c)
    e(f'''
    v_mul_f32 v{al}, v{al}, v{dt}
    v_mul_f32 v{al}, {f32(-LOG2E)}, v{al}
    v_lshlrev_b32 v{a}, 16, v{PR+1}
    v_mul_f32 v{a}, v{a}, v{dt}
    v_cndmask_b32 v{a}, v{a}, -v{a}, s[{sM0}:{sM0+1}]
    v_mul_f32 v{bh}, {f32(I2P_HI)}, v{a}
    v_fma_f32 v{bl}, v{a}, s{sT5}, -v{bh}
    v_fmac_f32 v{bl}, {f32(I2P_LO)}, v{a}
    ''')
    for (S, p) in ((s1,p1),(s2,p2)):
        e(f'''
        v_mul_f32 v{a}, v{al}, v{p}
        v_mul_f32 v{b}, v{bh}, v{p}
        v_exp_f32 v{ee}, v{a}
        v_fract_f32 v{b}, v{b}
        v_fmac_f32 v{b}, v{bl}, v{p}
        v_cos_f32 v{c}, v{b}
        v_sin_f32 v{d}, v{b}
        v_mul_f32 v{S}, v{ee}, v{c}
        v_mul_f32 v{S+1}, v{ee}, v{d}
        ''')
    e(f'''
    v_lshlrev_b32 v{a}, 16, v{PR+2}
    v_lshlrev_b32 v{b}, 16, v{PR+3}
    v_mul_f32 v{a}, s{sSCI}, v{a}
    v_mul_f32 v{b}, s{sSCI}, v{b}
    v_cndmask_b32 v{R}, 1.0, v{a}, s[{sM0}:{sM0+1}]
    v_cndmask_b32 v{R+1}, 0, -v{b}, s[{sM0}:{sM0+1}]
    ''')
    cmul(tt, s1, s1)
    cmul(R+2, R, s1)
    cmul(mu, s2, s2)
    cmul(R+4, R, tt)
    cmul(R+6, R+2, tt)
    cmul(64, tt, tt)
    e(f'''
    v_cndmask_b32 v{mu}, v{s1}, v{mu}, s[{sM0}:{sM0+1}]
    v_cndmask_b32 v{mu+1}, v{s1+1}, v{mu+1}, s[{sM0}:{sM0+1}]
    ''')
    for i in range(4): cmul(R+8+2*i, R+2*i, 64)
    def flush(rnd):
        for i in range(4): e(f'v_cvt_pk_f16_f32 v{pk+i}, v{R+4*i}, v{R+4*i+2}')
        e(f'ds_write_b128 v{wa+(rnd&1)}, {v(pk,4)} offset:{512*(rnd&1)}')
        for i in range(4): e(f'v_cvt_pk_f16_f32 v{pk+4+i}, v{R+4*i+1}, v{R+4*i+3}')
        e(f'ds_write_b128 v{wa+(rnd&1)}, {v(pk+4,4)} offset:{512*(rnd&1)+1024}')
        if rnd & 1:
            rho = rnd >> 1
            for (F, part) in ((FB,0),(FA,1)):
                for s_ in range(2):
                    e(f'ds_read_b64_tr_b16 {v(F+8*rho+4*s_,2)}, v{ra} offset:{part*2048+s_*256}')
                    e(f'ds_read_b64_tr_b16 {v(F+8*rho+4*s_+2,2)}, v{ra} offset:{part*2048+s_*256+1024}')
    flush(0)
    cmul_inplace(list(range(8)), s2)
    flush(1)
    for rnd in (2,3):
        cmul_inplace([0,4,5], s2)
        cmul(R+2, R, mu)
        cmul_inplace([6,7], s2)
        cmul(R+4, R+2, mu)
        cmul(R+6, R+4, mu)
        flush(rnd)
    e(f'''
    v_add_f32 v{dt}, v{dt}, v{dt}
    v_mul_f32 v{dt}, s{sSC}, v{dt}
    s_lshl_b32 s{sT0}, s{sHD}, 2
    v_add_u32 v{d}, s{sT0}, v{vC}
    s_mul_i32 s{sT0}, s{sHD}, {GW}
    s_add_u32 s{sT0}, s{sT0}, {PB+16}
    v_and_b32 v{a}, 1, v{vG4}
    v_lshrrev_b32 v{c}, 1, v{vG4}
    v_lshlrev_b32 v40, 5, v{vM15}
    v_lshl_add_u32 v40, v{a}, 4, v40           ; n*32 + (g&1)*16
    v_lshrrev_b32 v41, 1, v40
    v_add_u32 v41, 1024, v41
    v_cndmask_b32 v40, v40, v41, s[{sM0}:{sM0+1}]
    v_add_u32 v40, s{sT0}, v40
    v_lshlrev_b32 v41, 3, v{vM15}
    v_lshl_add_u32 v41, v{a}, 2, v41
    v_lshl_add_u32 v41, v{c}, 8, v41
    v_add_u32 v41, s{sT0}, v41
    v_lshlrev_b32 v42, 2, v{vM15}
    v_lshl_add_u32 v42, v{c}, 7, v42
    v_add_u32 v42, s{sT0}, v42
    v_subrev_u32 v{c}, 4, v42
    v_mov_b32 v{a}, 0
    ''')
    signal(C_TAB)
    e('s_waitcnt lgkmcnt(1)')
    A1=40; A3=41; A4=42
    for s_ in range(2):
        for ra_ in range(2):
            for rb_ in range(2):
                D = vG + 8*ra_ + 4*rb_
                e(f'v_mfma_f32_16x16x32_f16 {v(D,4)}, {v(FA+8*ra_+4*s_,4)}, {v(FB+8*rb_+4*s_,4)}, {"0" if s_==0 else v(D,4)}')
    for r in range(15): e(f'v_mul_f32 v{vG+r}, v{vG+r}, v{dt}')
    e(f'''
    @stamp m_kg1
    s_cmp_eq_u32 s{sRT}, 1
    s_cbranch_scc1 L_kgw
    ''')
    wait(C_GH, 1, addr=d, sleep=1)
    H=FA
    e(f'''
    s_mov_b32 exec_hi, 0
    ds_read_b128 {v(H,4)}, v{A1}
    ds_read_b128 {v(H+4,4)}, v{A1} offset:512
    s_mov_b64 exec, s[{sM0}:{sM0+1}]
    ds_read_b32 v{H}, v{A1}
    ds_read_b32 v{H+2}, v{A1} offset:4
    ds_read_b32 v{H+4}, v{A1} offset:256
    ds_read_b32 v{H+6}, v{A1} offset:260
    s_mov_b64 exec, -1
    ds_read_b32 v{H+8}, v{A3} offset:1536
    ds_read_b32 v{H+12}, v{A3} offset:{1536+128}
    ds_read_b32 v{H+9}, v{A4} offset:2048
    ds_read_b32 v{H+13}, v{A4} offset:{2048+64}
    ds_read_b32 v{H+10}, v{A4} offset:{2048+256}
    ds_read_b32 v{H+14}, v{A4} offset:{2048+256+64}
    ds_read_b32 v{H+11}, v{A4} offset:{2048+512}
    s_waitcnt lgkmcnt(0)
    ''')
    for r in range(15): e(f'v_add_f32 v{vG+r}, v{vG+r}, v{H+r}')
    e(f'''
    L_kgw:
    ds_write_b32 v{A3}, v{vG+8} offset:1536
    ds_write_b32 v{A3}, v{vG+12} offset:{1536+128}
    s_mov_b32 exec_hi, 0
    ds_write_b128 v{A1}, {v(vG,4)}
    ds_write_b128 v{A1}, {v(vG+4,4)} offset:512
    s_mov_b64 exec, s[{sM0}:{sM0+1}]
    ds_write2_b32 v{A1}, v{vG}, v{vG+2} offset0:0 offset1:1
    ds_write2_b32 v{A1}, v{vG+4}, v{vG+6} offset0:64 offset1:65
    s_mov_b32 exec_lo, 0xffff
    s_mov_b32 exec_hi, 0xffff
    ds_write_b32 v{A4}, v{vG+9} offset:2048
    ds_write_b32 v{A4}, v{vG+13} offset:{2048+64}
    ds_write_b32 v{A4}, v{vG+10} offset:{2048+256}
    ds_write_b32 v{A4}, v{vG+14} offset:{2048+256+64}
    s_mov_b64 exec, 1
    ds_write_b32 v{A4}, v{vG+11} offset:{2048+512}
    ds_write_b32 v{c}, v{a}
    ds_add_u32 v{d}, v{vOne} offset:{4*C_GH}
    s_mov_b64 exec, -1
    ''')
    e('@stamp m_kgen')
    xa=146; wadr=150; acc=152; QX=16; QW=48
    e(f'''
    L_q:
    s_mul_i32 s{sT0}, s{sRT}, {XH-XFL}
    s_add_u32 s{sT0}, s{sT0}, {XFL}
    v_lshlrev_b32 v{a}, 10, v{vM15}
    v_xor_b32 v{b}, v{vG4}, v{vM15}
    v_lshl_add_u32 v{a}, v{b}, 4, v{a}
    v_add_u32 v{xa}, s{sT0}, v{a}
    v_xor_b32 v{xa+1}, 64, v{xa}
    v_xor_b32 v{xa+2}, 0x80, v{xa}
    v_xor_b32 v{xa+3}, 0xc0, v{xa}
    v_bfe_u32 v{a}, v{vL}, 2, 2                ; r
    v_lshrrev_b32 v{b}, 1, v{a}
    v_and_b32 v{c}, 1, v{vG4}
    v_lshl_add_u32 v{b}, v{c}, 1, v{b}         ; swz
    v_xor_b32 v{b}, s{sHD}, v{b}
    v_lshl_add_u32 v{a}, v{vG4}, 3, v{a}       ; 8g + r
    v_lshlrev_b32 v{a}, 7, v{a}
    v_lshl_add_u32 v{a}, v{b}, 5, v{a}
    v_and_b32 v{b}, 3, v{vL}
    v_lshl_add_u32 v{a}, v{b}, 3, v{a}
    v_add_u32 v{wadr}, {WQ}, v{a}
    ''')
    def qchunk(ck):
        def rd(s):
            S = 8*ck + s
            e(f'ds_read_b64_tr_b16 {v(QW+4*(s&3),2)}, v{wadr} offset:{S*4096}')
            e(f'ds_read_b64_tr_b16 {v(QW+4*(s&3)+2,2)}, v{wadr} offset:{S*4096+512}')
            e(f'ds_read_b128 {v(QX+8*(s&3),4)}, v{xa+(s&3)} offset:{(S>>2)*256}')
            e(f'ds_read_b128 {v(QX+8*(s&3)+4,4)}, v{xa+(s&3)} offset:{(S>>2)*256+16384}')
        for s in range(3): rd(s)
        for s in range(8):
            if s+3 < 8:
                rd(s+3); e('s_waitcnt lgkmcnt(12)')
            else:
                x = 0
                if ck == 1:
                    x = 2
                    if s == 5:
                        signal(C_QA); signal(C_QH, addr=d)
                e(f's_waitcnt lgkmcnt({4*(7-s)+x})')
            z = ck == 0 and s == 0
            e(f'v_mfma_f32_16x16x32_bf16 {v(acc,4)}, {v(QW+4*(s&3),4)}, {v(QX+8*(s&3),4)}, {"0" if z else v(acc,4)}')
            e(f'v_mfma_f32_16x16x32_bf16 {v(acc+4,4)}, {v(QW+4*(s&3),4)}, {v(QX+8*(s&3)+4,4)}, {"0" if z else v(acc+4,4)}')
    e(f'''
    s_xor_b32 s{sT0}, s{sRT}, 1
    s_mul_i32 s{sT0}, s{sT0}, {4*(40-C_QH)}
    v_add_u32 v{d}, s{sT0}, v{vC}
    s_cmp_eq_u32 s{sRT}, 1
    s_cbranch_scc1 L_qh
    ''')
    wait(C_T2, 1)
    wait(C_QH, 6)
    e('s_setprio 3')
    e('L_qh:')
    wait(C_T0, 3, sleep=1)
    e('@stamp m_t0')
    qchunk(0)
    e('@stamp m_q0')
    wait(C_T1, 1, sleep=1)
    e('@stamp m_t1')
    qchunk(1)
    e(f'''
    s_mov_b32 s{sT0}, {f32(0.25*LOG2E)}
    s_mov_b32 s{sFB}, 0
    s_mov_b32 s{sM0}, 0xffff
    s_mov_b32 s{sM0+1}, 0xffff
    s_xor_b32 s{sRT}, s{sRT}, s{sKAP}
    s_xor_b32 s{sRT}, s{sRT}, 1
    s_lshl_b32 s{sT1}, s{sRB}, 1
    s_add_u32 s{sT1}, s{sT1}, s{sRT}
    s_lshl_b32 s{sT1}, s{sT1}, 5
    s_lshl_b32 s{sT2}, s{sCB}, 2
    s_add_u32 s{sT1}, s{sT1}, s{sT2}
    s_add_u32 s{sT1}, s{sT1}, s{sHD}
    s_lshl_b32 s{sT1}, s{sT1}, 10
    s_add_u32 s{sOB}, s{sT1}, {WS_O}
    ''')
    for r in range(8): e(f'v_mul_f32 v{acc+r}, s{sT0}, v{acc+r}')
    e(f'''
    v_cvt_pk_bf16_f32 v{vQ}, v{acc}, v{acc+1}
    v_cvt_pk_bf16_f32 v{vQ+1}, v{acc+2}, v{acc+3}
    v_cvt_pk_bf16_f32 v{vQ+2}, v{acc+4}, v{acc+5}
    v_cvt_pk_bf16_f32 v{vQ+3}, v{acc+6}, v{acc+7}
    v_permlane16_swap_b32 v{vQ}, v{vQ+2}
    v_permlane16_swap_b32 v{vQ+1}, v{vQ+3}
    ''')
    e('@stamp m_q1')
    wait(C_KV, 1, sleep=1)
    e(f'''
    @stamp m_att0
    s_setprio 1
    s_cmp_lt_u32 s{sM}, 4
    s_cbranch_scc1 L_pr
    s_setprio 3
    L_pr:
    s_mov_b32 s{sCNT}, 0
    v_mov_b32 v{ad}, v{vL16}
    v_add_u32 v{kvf}, {4*(C_KV+1)}, v{vC}
    ds_read_b128 {v(KF+8,4)}, v{ad}
    ds_read_b128 {v(KF,4)}, v{ad} offset:2048
    ds_read_b128 {v(KF+4,4)}, v{ad} offset:4096
    s_mov_b64 exec, s[{sM0}:{sM0+1}]
    ds_read_b128 {v(VF,4)}, v{ad} offset:1024
    ds_read_b128 {v(VF+4,4)}, v{ad} offset:1280
    ds_read_b128 {v(VF+8,4)}, v{ad} offset:3072
    ds_read_b128 {v(VF+12,4)}, v{ad} offset:3328
    s_mov_b64 exec, -1
    s_cmp_lg_u32 s{sFB}, 0
    s_waitcnt lgkmcnt(6)
    s_cbranch_scc1 L_setm
    v_mfma_f32_32x32x16_bf16 {v(S0,16)}, {v(KF+8,4)}, {v(vQ,4)}, 0
    v_max3_f32 v{mx}, v{S0}, v{S0+1}, v{S0+2}
    ''')
    for i in range(3,15,2): e(f'v_max3_f32 v{mx}, v{mx}, v{S0+i}, v{S0+i+1}')
    e(f'''
    v_max_f32 v{mx}, v{mx}, v{S0+15}
    L_setm:
    v_mov_b32 v{a}, v{mx}
    v_permlane32_swap_b32 v{a}, v{mx}
    v_max_f32 v{mx}, v{mx}, v{a}
    ''')
    for i in range(16): e(f'v_sub_f32 v{NM+i}, 0, v{mx}')
    e(f'''
    v_mfma_f32_32x32x16_bf16 {v(S0,16)}, {v(KF+8,4)}, {v(vQ,4)}, {v(NM,16)}
    s_nop 9
    .p2align 6
    L_loop:
    ''')
    def step(tt):
        par = tt & 1; pr = tt >> 1; st = pr & 1
        Sc = S0 if par == 0 else S1
        Sn = S1 if par == 0 else S0
        Kn = KF + 8*st + 4*par
        Vc = VF + 16*st + 8*par
        Vp = (VF + 16*st + 4) if par == 1 else (VF + 16*(1-st) + 12)
        ex = lambda i: e(f'v_exp_f32 v{Sc+i}, v{Sc+i}')
        cv = lambda i: e(f'v_cvt_pk_bf16_f32 v{P+i}, v{Sc+2*i}, v{Sc+2*i+1}')
        if par == 0: e('s_waitcnt lgkmcnt(0)')
        e(f'v_mfma_f32_32x32x16_bf16 {v(Sn,16)}, {v(Kn,4)}, {v(vQ,4)}, {v(NM,16)}')
        ex(0); ex(1); ex(2); ex(3)
        e(f'v_mfma_f32_32x32x16_bf16 {v(O,16)}, {v(Vp,4)}, {v(P+4,4)}, {v(O,16)}')
        if tt == 4:
            e(f's_cmp_lg_u32 s{sWT}, 1')
            e(f's_cbranch_scc1 L_chk')
            e(f'L_chk_ret:')
        if par == 0:
            o = 1-st
            e(f'ds_read_b128 {v(KF+8*o,4)}, v{ad} offset:{(tt+3)*2048}')
            e(f'ds_read_b128 {v(KF+8*o+4,4)}, v{ad} offset:{(tt+4)*2048}')
            e(f's_mov_b64 exec, s[{sM0}:{sM0+1}]')
            e(f'ds_read_b128 {v(VF+16*o,4)}, v{ad} offset:{(tt+2)*2048+1024}')
            e(f'ds_read_b128 {v(VF+16*o+4,4)}, v{ad} offset:{(tt+2)*2048+1280}')
            e(f'ds_read_b128 {v(VF+16*o+8,4)}, v{ad} offset:{(tt+3)*2048+1024}')
            e(f'ds_read_b128 {v(VF+16*o+12,4)}, v{ad} offset:{(tt+3)*2048+1280}')
            e(f's_mov_b64 exec, -1')
            if tt == 0: e(f'ds_read_b32 v{fl}, v{kvf}')
        if tt == 3: e(f'v_readfirstlane_b32 s{sWT}, v{fl}')
        cv(0); ex(4); ex(5); cv(1); ex(6); ex(7); cv(2); ex(8); cv(3); ex(9); ex(10)
        e(f'v_mfma_f32_32x32x16_bf16 {v(O,16)}, {v(Vc,4)}, {v(P,4)}, {v(O,16)}')
        ex(11); cv(4); ex(12); ex(13); cv(5); ex(14); ex(15); cv(6); cv(7)
    for tt in range(8): step(tt)
    e(f'''
    v_add_u32 v{ad}, 0x4000, v{ad}
    v_add_u32 v{kvf}, 4, v{kvf}
    s_add_u32 s{sCNT}, s{sCNT}, 1
    s_cmp_lt_u32 s{sCNT}, 8
    s_cbranch_scc1 L_loop
    v_mfma_f32_32x32x16_bf16 {v(O,16)}, {v(VF+28,4)}, {v(P+4,4)}, {v(O,16)}
    s_mov_b32 s{sT0}, {f32(2.0**40)}
    s_waitcnt vmcnt(0) lgkmcnt(0)
    s_nop 9
    v_rcp_f32 v{S0}, v{O+8}
    v_cmp_nlt_f32 vcc, v{O+8}, s{sT0}
    v_mul_f32 v{S0}, v{S0}, v146
    ''')
    for i in range(8): e(f'v_mul_f32 v{O+i}, v{O+i}, v{S0}')
    e(f'''
    v_add_f32 v{S0+2}, v{O+3}, v{O+4}
    v_add_f32 v{S0+3}, v{O+5}, v{O+6}
    v_add_f32 v{S0+2}, v{S0+2}, v{O+7}
    v_add_f32 v{S0+3}, v{S0+3}, v{O}
    v_add_f32 v{S0+2}, v{S0+2}, v{O+1}
    v_add_f32 v{S0+3}, v{S0+3}, v{O+2}
    v_add_f32 v{S0+2}, v{S0+2}, v{S0+3}
    v_mov_b32 v{S0+4}, 0x207
    v_cmp_class_f32 s[{sM1}:{sM1+1}], v{S0+2}, v{S0+4}
    s_or_b64 vcc, vcc, s[{sM1}:{sM1+1}]
    s_cbranch_vccz L_att_ok
    s_cmp_lg_u32 s{sFB}, 0
    s_cbranch_scc1 L_att_ok
    s_mov_b32 s{sFB}, 1
    v_mov_b32 v{ad}, v{vL16}
    v_mov_b32 v{mx}, 0xff7fffff
    s_mov_b32 s{sCNT}, 0
    L_maxloop:
    ds_read_b128 {v(KF,4)}, v{ad}
    v_add_u32 v{ad}, 2048, v{ad}
    s_waitcnt lgkmcnt(0)
    v_mfma_f32_32x32x16_bf16 {v(S0,16)}, {v(KF,4)}, {v(vQ,4)}, 0
    ''')
    for i in range(0,16,2): e(f'v_max3_f32 v{mx}, v{mx}, v{S0+i}, v{S0+i+1}')
    e(f'''
    s_add_u32 s{sCNT}, s{sCNT}, 1
    s_cmp_lt_u32 s{sCNT}, 64
    s_cbranch_scc1 L_maxloop
    ''')
    for i in range(16): e(f'v_mov_b32 v{O+i}, 0')
    for i in range(4): e(f'v_mov_b32 v{P+4+i}, 0')
    e('s_branch L_pr')
    e('L_chk:')
    wait(0, 1, addr=kvf, sleep=1)
    e(f'''
    s_cmp_lt_u32 s{sWT}, 2
    s_cbranch_scc1 L_chk_ret
    s_lshl_b32 s{sT0}, s{sRB}, 8
    s_lshl_b32 s{sT1}, s{sRT}, 7
    s_add_u32 s{sT0}, s{sT0}, s{sT1}
    s_add_u32 s{sT0}, s{sT0}, {WS_G}
    v_and_b32 v{a}, 31, v{vL}
    v_lshlrev_b32 v{a}, 2, v{a}
    buffer_load_dword v146, v{a}, {srd(S_WS)}, s{sT0} offen sc1
    ds_read_b32 v147, v{vC} offset:{4*C_KVOK}
    ''')
    wait(C_ST, 1, sleep=4)
    e(f'''
    v_readfirstlane_b32 s{sSC}, v147
    s_setprio 0
    s_branch L_chk_ret
    L_att_ok:
    @stamp m_att1
    ''')
    e(f's_mov_b32 s{sT0}, 0xfffffffe')
    for i in range(4):
        e(f'v_cvt_pk_bf16_f32 v{P+i}, v{O+2*i}, v{O+2*i+1}')
        e(f'v_min_u32 v{P+i}, s{sT0}, v{P+i}')
    e(f'''
    s_cmp_eq_u32 s{sSC}, 1
    s_cbranch_scc1 L_oloc
    buffer_store_dwordx4 {v(P,4)}, v{vL16}, {srd(S_WS)}, s{sOB} offen sc1
    s_branch L_ost
    L_oloc:
    buffer_store_dwordx4 {v(P,4)}, v{vL16}, {srd(S_WS)}, s{sOB} offen
    L_ost:
    ''')
    e(f'''
    s_lshl_b32 s{sT0}, s{sRB}, 1
    s_and_b32 s{sT1}, s{sCB}, 1
    s_add_u32 s{sT0}, s{sT0}, s{sT1}
    s_lshl_b32 s{sT0}, s{sT0}, 15
    s_lshl_b32 s{sT1}, s{sM}, 12
    s_add_u32 s{sT0}, s{sT0}, s{sT1}
    s_add_u32 s{sT0}, s{sT0}, {WS_O}
    v_add_u32 v{a}, s{sT1}, v{vL16}
    s_lshl_b32 s{sT1}, s{sM}, 2
    v_add_u32 v{b}, s{sT1}, v{vC}
    ''')
    e('s_barrier')
    e('@stamp m_all')
    e('L_opoll:')
    for i in range(4):
        e(f'buffer_load_dwordx4 {v(S0+4*i,4)}, v{vL16}, {srd(S_WS)}, s{sT0} offen offset:{i*1024} sc1')
    e(f's_waitcnt vmcnt(0)')
    e(f'v_max3_u32 v{c}, v{S0}, v{S0+1}, v{S0+2}')
    for i in range(3,15,2): e(f'v_max3_u32 v{c}, v{c}, v{S0+i}, v{S0+i+1}')
    e(f'''
    v_max_u32 v{c}, v{c}, v{S0+15}
    v_cmp_eq_u32 vcc, -1, v{c}
    s_cbranch_vccz L_ook
    s_sub_u32 s{sTO}, s{sTO}, 16
    s_cbranch_scc0 L_opoll
    s_mov_b32 s{sTO}, 0
    L_ook:
    ''')
    for i in range(4):
        e(f'ds_write_b128 v{a}, {v(S0+4*i,4)} offset:{i*1024}')
    e('s_waitcnt lgkmcnt(0)')
    e('s_barrier')
    e('@stamp m_end')
    finish()
    e('''
    L_end:
    s_endpgm
    ''')
    return e.text()

HEAD = open('cdna_kernels/%s.s.ref' % NAME).read().split('; Override launch geometry')[0]
def full():
    body = gen()
    s = HEAD
    s += f'; @launch grid=(256,1,1) block=(768,1,1) lds={LDS_BYTES}\n'
    s += f'''.amdgcn_target "amdgcn-amd-amdhsa--gfx950"
.text
.globl {NAME}_kernel
.p2align 8
.type {NAME}_kernel,@function
{NAME}_kernel:
{body}
.section .rodata,"a"
.p2align 6
.amdhsa_kernel {NAME}_kernel
  .amdhsa_next_free_vgpr 168
  .amdhsa_next_free_sgpr 102
  .amdhsa_accum_offset 168
  .amdhsa_group_segment_fixed_size 0
  .amdhsa_kernarg_size 128
  .amdhsa_user_sgpr_count 2
  .amdhsa_user_sgpr_kernarg_segment_ptr 1
  .amdhsa_system_sgpr_workgroup_id_x 1
.end_amdhsa_kernel
'''
    return s
if __name__ == '__main__':
    if len(sys.argv) > 1 and sys.argv[1].startswith('diag'):
        DIAG = 1
        open('dev/%s.s' % sys.argv[1], 'w').write(full())
        import json; json.dump(gen.e.stamps, open('diag.json','w'))
    else:
        out = sys.argv[1] if len(sys.argv) > 1 else f'cdna_kernels/{NAME}.s'
        open(out, 'w').write(full())
```

```python
import re

TRANS = ('v_exp_f32','v_log_f32','v_rcp_f32','v_rsq_f32','v_sqrt_f32','v_sin_f32','v_cos_f32','v_exp_f16','v_rcp_iflag_f32')

def parse_regs(tok):
    tok = tok.strip()
    tok = re.sub(r'^-', '', tok)
    m = re.match(r'^abs\((.*)\)$', tok)
    if m: tok = m.group(1)
    m = re.match(r'^\|(.*)\|$', tok)
    if m: tok = m.group(1)
    m = re.match(r'^([vsa])(\d+)$', tok)
    if m: return {(m.group(1), int(m.group(2)))}
    m = re.match(r'^([vsa])\[(\d+):(\d+)\]$', tok)
    if m: return {(m.group(1), i) for i in range(int(m.group(2)), int(m.group(3))+1)}
    if tok in ('vcc','vcc_lo','vcc_hi'): return {('vcc',0)}
    if tok in ('exec','exec_lo','exec_hi'): return {('exec',0)}
    if tok == 'm0': return {('m0',0)}
    return set()

class Ins:
    def __init__(self, text):
        self.text = text
        t = text.split(';')[0].strip()
        self.is_label = t.endswith(':')
        self.is_dir = t.startswith('.')
        self.op = ''
        self.w = set(); self.r = set()
        self.kind = 'other'
        self.srcA=set(); self.srcB=set(); self.srcC=set()
        if self.is_label or self.is_dir or not t:
            return
        parts = t.split(None, 1)
        op = parts[0]; self.op = op
        rest = parts[1] if len(parts) > 1 else ''
        ops = []; depth = 0; cur = ''
        for ch in rest:
            if ch in '[(': depth += 1
            if ch in '])': depth -= 1
            if ch == ',' and depth == 0:
                ops.append(cur); cur = ''
            else: cur += ch
        ops.append(cur)
        ops = [o.strip() for o in ops]
        mods = ''
        if ops:
            sp = ops[-1].split(None, 1)
            if len(sp) > 1:
                ops[-1] = sp[0]; mods = sp[1]
        self.mods = mods
        R = [parse_regs(o) for o in ops]
        self.ops = ops
        base = re.sub(r'_(e32|e64|dpp|sdwa)$', '', op)
        self.base = base
        self.dpp = op.endswith('_dpp')
        if op.startswith('v_mfma') or op.startswith('v_smfmac'):
            self.kind = 'mfma'
            self.w = R[0]; self.srcA = R[1]; self.srcB = R[2]; self.srcC = R[3]
            self.r = R[1] | R[2] | R[3]
            self.passes = 8 if '32x32' in op else 4
        elif op.startswith('v_cmp'):
            self.kind = 'valu'; self.w = set(R[0]); self.r = set().union(*R[1:])
            if op.startswith('v_cmpx'): self.w |= {('exec',0)}
        elif base in ('v_readfirstlane_b32','v_readlane_b32'):
            self.kind = 'valu'; self.w = R[0]; self.r = set().union(*R[1:])
        elif base in ('v_permlane32_swap_b32','v_permlane16_swap_b32','v_swap_b32'):
            self.kind = 'valu'; self.w = R[0] | R[1]; self.r = R[0] | R[1]
        elif base in ('v_add_co_u32','v_sub_co_u32','v_addc_co_u32','v_subb_co_u32'):
            self.kind = 'valu'; self.w = R[0] | R[1]; self.r = set().union(*R[2:])
        elif op.startswith('v_'):
            self.kind = 'valu'; self.w = R[0]; self.r = set().union(*R[1:]) if len(R) > 1 else set()
            if base in ('v_fmac_f32','v_dot2c_f32_bf16','v_writelane_b32') or 'UNUSED_PRESERVE' in mods or self.dpp:
                self.r |= R[0]
        elif op.startswith('ds_'):
            self.kind = 'ds'
            if op.startswith('ds_read') or op.startswith('ds_bpermute') or op.startswith('ds_swizzle') or '_rtn' in op:
                self.w = R[0]; self.r = set().union(*R[1:])
                if 'd16' in op: self.r |= R[0]
            else:
                self.r = set().union(*R)
        elif op.startswith('buffer_') or op.startswith('global_'):
            self.kind = 'vmem'
            self.lds = bool(re.search(r'\blds\b', mods)) or 'load_lds' in op
            if 'load' in op and not self.lds:
                self.w = R[0]; self.r = set().union(*R[1:])
                if 'd16' in op: self.r |= R[0]
            else:
                self.r = set().union(*R) if R else set()
            if self.lds: self.r |= {('m0',0)}
            self.wide_store = set()
            if 'store' in op and ('x4' in op or 'x3' in op):
                self.wide_store = R[0] if op.startswith('buffer_') else R[1]
        elif op.startswith('s_'):
            self.kind = 'salu'
            if op in ('s_nop','s_waitcnt','s_barrier','s_endpgm','s_sleep','s_setprio') or op.startswith('s_cbranch') or op == 's_branch' or op.startswith('s_cmp'):
                self.r = set().union(*R) if R else set()
            else:
                self.w = R[0]; self.r = set().union(*R[1:]) if len(R) > 1 else set()
                if 'saveexec' in op: self.w = self.w | {('exec',0)}
    def states(self):
        if self.is_label or self.is_dir or not self.op: return 0
        if self.op == 's_nop': return int(self.ops[0], 0) + 1
        return 1

def need(prod, cons):
    n = 0
    isv = lambda s: {x for x in s if x[0] in 'va' and len(x[0]) == 1}
    iss = lambda s: {x for x in s if x[0] in ('s','vcc')}
    if prod.kind == 'valu':
        pw = isv(prod.w)
        if cons.kind == 'mfma' and pw & cons.r: n = max(n, 2)
        if cons.kind == 'valu':
            if prod.base in TRANS and cons.base not in TRANS and pw & (cons.r): n = max(n, 1)
            if cons.base in ('v_readfirstlane_b32','v_readlane_b32') and pw & cons.r: n = max(n, 1)
            if cons.base.startswith('v_permlane') and pw & cons.r: n = max(n, 2)
            if cons.dpp and pw & cons.r: n = max(n, 2)
            if ('sdwa' in prod.op or 'op_sel' in getattr(prod,'mods','')) and not prod.base.startswith('v_pk_') and pw & (cons.r | cons.w): n = max(n, 1)
        if prod.base in TRANS and cons.kind in ('ds','vmem') and pw & cons.r: n = max(n, 1)
        sw = iss(prod.w)
        if sw:
            if cons.kind == 'valu' and sw & cons.r:
                n = max(n, 4 if cons.base in ('v_readlane_b32','v_writelane_b32') else 2)
            if cons.kind == 'valu' and cons.base in ('v_cndmask_b32','v_addc_co_u32') and ('vcc',0) in sw and ('vcc',0) in cons.r: n = max(n, 2)
            if cons.kind == 'vmem' and sw & cons.r: n = max(n, 5)
            if cons.kind == 'salu' and sw & cons.r: n = max(n, 1)
            if cons.op in ('s_cbranch_vccz','s_cbranch_vccnz') and ('vcc',0) in sw: n = max(n, 1)
        if ('exec',0) in prod.w:
            if cons.kind == 'mfma': n = max(n, 4)
            if cons.kind == 'valu' and (cons.dpp): n = max(n, 5)
            if cons.kind == 'valu' and (cons.base.startswith('v_permlane') or cons.base.startswith('v_read')): n = max(n, 4)
    if prod.kind == 'mfma':
        p = prod.passes
        if cons.kind == 'mfma':
            if prod.w & (cons.srcA | cons.srcB): n = max(n, 8 if p == 4 else 12)
            if prod.w & cons.srcC:
                if not (prod.w == cons.srcC and p == cons.passes): n = max(n, 6 if p == 4 else 10)
            elif prod.w & cons.w: n = max(n, 6 if p == 4 else 10)
        elif cons.kind in ('valu','ds','vmem'):
            if prod.w & (cons.r | cons.w): n = max(n, 8 if p == 4 else 12)
            if cons.kind == 'valu' and prod.srcC & cons.w: n = max(n, 3 if p == 4 else 7)
            if cons.kind in ('ds','vmem') and prod.srcC & cons.w: n = max(n, 3 if p == 4 else 7)
    if prod.kind == 'salu':
        if ('m0',0) in prod.w and cons.kind == 'vmem' and getattr(cons,'lds',False): n = max(n, 1)
    if prod.kind == 'vmem' and getattr(prod,'wide_store',None):
        if prod.wide_store & cons.w: n = max(n, 2 if cons.kind in ('valu','mfma') else 1)
    return n

class Asm:
    def __init__(self, diag=False):
        self.ins = []
        self.diag = diag
        self.stamps = []
    def __call__(self, text):
        for line in text.split('\n'):
            line = line.strip()
            if line.startswith('@rt'):
                if self.diag:
                    for t in ('s_memrealtime s[94:95]', 's_waitcnt lgkmcnt(0)', f'v_writelane_b32 v167, s94, {line.split()[1]}'):
                        self.ins.append(Ins(t))
                continue
            if line.startswith('@stamp') and getattr(self,'probe',None):
                nm=line.split()[1]
                if nm=='start':
                    for t in ('s_memrealtime s[60:61]','s_waitcnt lgkmcnt(0)','s_mov_b32 s62, s60'): self.ins.append(Ins(t))
                elif nm==self.probe:
                    for t in ('s_memrealtime s[60:61]','s_waitcnt lgkmcnt(0)','s_sub_u32 s63, s60, s62'): self.ins.append(Ins(t))
                continue
            if line.startswith('@stamp'):
                if self.diag:
                    nm = line.split()[1]
                    if nm not in self.stamps: self.stamps.append(nm)
                    i = self.stamps.index(nm)
                    for t in ('s_memtime s[94:95]', 's_waitcnt lgkmcnt(0)', f'v_writelane_b32 v167, s94, {i}'):
                        self.ins.append(Ins(t))
                continue
            if line: self.ins.append(Ins(line))
    def label(self, name): self(f'{name}:')
    def finalize(self, window=24):
        out = []
        nins = 0
        for I in self.ins:
            if I.op:
                dist = 0; req = 0
                for P in reversed(out[-window*2:]):
                    if P.op:
                        k = need(P, I)
                        if k - dist > req: req = k - dist
                        dist += P.states()
                        if P.op in ('s_branch','s_endpgm','s_setpc_b64'): break
                        if dist > 20: break
                while req > 0:
                    k = min(req, 16)
                    out.append(Ins(f's_nop {k-1}')); req -= k; nins += 1
            out.append(I)
        self.out = out
        return out
    def text(self):
        s = ''
        for I in self.finalize():
            s += (I.text if (I.is_label or I.is_dir) else '    ' + I.text) + '\n'
        return s
```

```python
import sys, struct, math
from asmlib import Asm

NAME = 'gated_mix__grouped_kv_mqa__ssm_conv_s4d__prompt'
def f32(x): return '0x%08x' % struct.unpack('<I', struct.pack('<f', x))[0]
def f32v(x): return struct.unpack('<f', struct.pack('<f', x))[0]

WS_KV = 0x0
WS_G  = 0x20000
FST = 0x1100
WS_F1 = 0x30000
WS_F2 = 0x40000
WS_GEN = 0x50000
LDELTA = 0x80000
WS_O  = 0x100000
WS_B  = 0x400000
WS_XT = 0x600000
WS_DIAG = 0x800000
WS_SIZE = 0x900000
POOL = 131072
PA = 0; XH = 0x4000; XFL = 0xC000; WQ = 0x14000
KREV = POOL; KREV_CH = 8320; KREV_O = 4160
PB = POOL + 16640; GW = 2592
XC = PB; XC_CH = 4608
PC = POOL + 31488
PG = PC + 256
LDS_BYTES = 163840
C_ISS,C_T0,C_T1,C_QH,C_QA,C_TAB,C_T2,C_KREV,C_ST,C_KVOK,C_KISS = range(11)
C_XT=11; C_CR=13; C_CW=15; C_CONV=17; C_GH=18; C_KV=24

P_X=4; P_WQ=6; P_WK=8; P_WV=10; P_WO=12; P_LAR=16; P_AIM=18; P_CR=20; P_CI=22; P_LDT=24; P_DSK=26; P_GATE=28; P_OUT=30; P_DBG=32; P_WS=34
S_X=36; S_WQ=40; S_WKV=44; S_WS=48; S_OUT=52; S_GATE=56; S_DBG=60; S_WO=64
sW=68; sRB=69; sCB=70; sD0=71; sLDT=72; sDSK=73; sT0=74; sT1=75; sT2=76; sT3=77; sRT=78; sHD=79; sM=80; sCNT=81; sFB=82; sTO=83
sM0=84; sM1=86
sOB=88; sT4=89; sT5=90; sSC=91; sSCI=92; sWT=93
sCH=96; sHF=97; sKAP=98; sNON=99; sPOS=100; sXCD=101

def srd(n): return f's[{n}:{n+3}]'
def sp(n): return f's[{n}:{n+1}]'
def v(n, k=1): return f'v{n}' if k == 1 else f'v[{n}:{n+k-1}]'

LOG2E = 1.4426950408889634
L2E_HI = f32v(LOG2E); L2E_LO = LOG2E - L2E_HI
INV2PI = 1.0/(2*math.pi); I2P_HI = f32v(INV2PI); I2P_LO = INV2PI - I2P_HI

DIAG = False
def gen():
    e = Asm(DIAG)
    gen.e = e
    import os
    e.probe = os.environ.get('PROBE')
    PK = int(os.environ.get('PK','4'))
    vL=1; vL16=2; vC=3; vOne=166; vWT=165
    uid = [0]
    def wait(c, target, addr=vC, sleep=1):
        uid[0] += 1; u = uid[0]
        e(f'''
        L_wt{u}:
        ds_read_b32 v{vWT}, v{addr} offset:{4*c}
        s_waitcnt lgkmcnt(0)
        v_readfirstlane_b32 s{sWT}, v{vWT}
        s_cmp_ge_u32 s{sWT}, {target}
        s_cbranch_scc1 L_wd{u}
        s_sleep {sleep}
        s_sub_u32 s{sTO}, s{sTO}, 1
        s_cbranch_scc0 L_wt{u}
        s_mov_b32 s{sTO}, 0
        L_wd{u}:
        ''')
    def signal(c, addr=vC):
        e(f'''
        s_mov_b64 exec, 1
        ds_add_u32 v{addr}, v{vOne} offset:{4*c}
        s_mov_b64 exec, -1
        ''')
    def mk(S, P, nbytes):
        e(f'''
        s_mov_b32 s{S}, s{P}
        s_and_b32 s{S+1}, s{P+1}, 0xffff
        s_mov_b32 s{S+2}, {nbytes}
        s_mov_b32 s{S+3}, 0x00020000
        ''')
    def finish():
        if DIAG == 1:
            e(f'''
            @rt 63
            s_getreg_b32 s94, hwreg(HW_REG_XCC_ID)
            v_writelane_b32 v167, s94, 62
            v_writelane_b32 v167, s{sTO}, 61
            s_mul_i32 s{sT0}, s2, 3072
            s_lshl_b32 s{sT1}, s{sW}, 8
            s_add_u32 s{sT0}, s{sT0}, s{sT1}
            s_add_u32 s{sT0}, s{sT0}, {WS_DIAG}
            v_lshlrev_b32 v{vWT}, 2, v{vL}
            buffer_store_dword v167, v{vWT}, {srd(S_WS)}, s{sT0} offen
            ''')
        e('s_endpgm')
    vM15=4; vG4=5; a=6; b=7; c=8; d=9
    e(f'''
    s_cmp_ge_u32 s2, 256
    s_cbranch_scc1 L_end
    s_load_dwordx16 s[4:19], s[0:1], 0
    s_load_dwordx16 s[20:35], s[0:1], 64
    @stamp start
    @rt 60
    v_and_b32 v{vL}, 63, v0
    v_lshrrev_b32 v{a}, 6, v0
    v_lshlrev_b32 v{vL16}, 4, v{vL}
    v_readfirstlane_b32 s{sW}, v{a}
    v_mov_b32 v{vC}, {PC}
    v_lshl_add_u32 v{a}, v{vL}, 2, v{vC}
    v_mov_b32 v{b}, 0
    ds_write_b32 v{a}, v{b}
    v_mov_b32 v{vOne}, 1
    s_mov_b32 s{sTO}, 0x100000
    s_and_b32 s{sT0}, s2, 7
    s_lshr_b32 s{sT1}, s2, 3
    s_lshr_b32 s{sT2}, s{sT1}, 3
    s_lshl_b32 s{sRB}, s{sT0}, 2
    s_add_u32 s{sRB}, s{sRB}, s{sT2}
    s_and_b32 s{sCB}, s{sT1}, 7
    s_lshl_b32 s{sD0}, s{sT0}, 6
    s_lshl_b32 s{sT1}, s{sT1}, 1
    s_add_u32 s{sD0}, s{sD0}, s{sT1}
    s_lshr_b32 s{sKAP}, s{sCB}, 2
    s_mov_b32 s{sXCD}, s{sT0}
    v_and_b32 v{vM15}, 15, v{vL}
    v_lshrrev_b32 v{vG4}, 4, v{vL}
    s_bfe_u32 s{sT0}, s{sW}, 0x10001
    s_add_u32 s{sT0}, s{sD0}, s{sT0}
    s_lshl_b32 s{sT0}, s{sT0}, 8
    s_and_b32 s{sT1}, s{sW}, 1
    s_lshl_b32 s{sT1}, s{sT1}, 6
    s_add_u32 s{sT0}, s{sT0}, s{sT1}
    s_lshr_b32 s{sT1}, s{sW}, 3
    s_lshl_b32 s{sT1}, s{sT1}, 7
    s_add_u32 s{sT0}, s{sT0}, s{sT1}
    v_and_b32 v{a}, 31, v{vL}
    v_lshlrev_b32 v{a}, 1, v{a}
    v_add_u32 v{a}, s{sT0}, v{a}
    s_cmp_lt_u32 s{sW}, 4
    s_waitcnt lgkmcnt(0)
    s_cbranch_scc1 L_nopar
    global_load_ushort v14, v{a}, {sp(P_LAR)}
    global_load_ushort v15, v{a}, {sp(P_AIM)}
    global_load_ushort v16, v{a}, {sp(P_CR)}
    global_load_ushort v17, v{a}, {sp(P_CI)}
    L_nopar:
    s_barrier
    ''')
    mk(S_X, P_X, 2097152)
    mk(S_WS, P_WS, WS_SIZE)
    mk(S_WQ, P_WQ, 524288)
    mk(S_GATE, P_GATE, 1024)
    e(f'''
    s_bitcmp1_b32 s{sCB}, 0
    s_cselect_b32 s{S_WKV}, s{P_WV}, s{P_WK}
    s_cselect_b32 s{S_WKV+1}, s{P_WV+1}, s{P_WK+1}
    s_and_b32 s{S_WKV+1}, s{S_WKV+1}, 0xffff
    s_mov_b32 s{S_WKV+2}, 16384
    s_mov_b32 s{S_WKV+3}, 0x00020000
    s_lshl_b32 s{sT4}, s{sD0}, 1
    s_load_dword s{sLDT}, {sp(P_LDT)}, s{sT4}
    s_load_dword s{sDSK}, {sp(P_DSK)}, s{sT4}
    s_cmp_ge_u32 s{sW}, 4
    s_cbranch_scc1 L_main
    s_setprio 3
    v_mov_b32 v11, {WS_GEN}
    buffer_load_dword v164, v11, {srd(S_WS)}, 0 offen sc1
    s_cmp_eq_u32 s{sW}, 1
    s_cbranch_scc1 L_h1
    s_cmp_ge_u32 s{sW}, 2
    s_cbranch_scc1 L_h23
    ''')
    XF=16; WF=80; GF=112; dk=144; dg=148; xk=152
    def xrows(lbl, n):
        e(f's_mov_b32 s{sCNT}, 0')
        e(f'L_xp{lbl}:')
        for j in range(16):
            e(f'''
            s_mov_b32 m0, s{sT1}
            v_xor_b32 v{a}, {16*j}, v{vL16}
            buffer_load_dwordx4 v{a}, {srd(S_X)}, s{sT0} offen lds
            s_add_u32 s{sT1}, s{sT1}, 1024
            s_add_u32 s{sT0}, s{sT0}, 1024
            ''')
        if n > 16:
            e(f'''
            s_add_u32 s{sCNT}, s{sCNT}, 1
            s_cmp_lt_u32 s{sCNT}, 2
            s_cbranch_scc1 L_xp{lbl}
            ''')
    e(f'''
    s_lshl_b32 s{sT0}, s{sRB}, 16
    s_lshr_b32 s{sT1}, s{sCB}, 1
    s_lshl_b32 s{sT1}, s{sT1}, 14
    s_add_u32 s{sT0}, s{sT0}, s{sT1}          ; row0*1024
    s_and_b32 s{sT1}, s{sT1}, 0x4000
    s_add_u32 s{sT1}, s{sT1}, {XH}
    v_lshlrev_b32 v{xk}, 10, v{vM15}
    v_xor_b32 v{b}, v{vG4}, v{vM15}
    v_lshl_add_u32 v{xk}, v{b}, 4, v{xk}
    v_add_u32 v{xk}, s{sT1}, v{xk}
    ''')
    xrows('k', 16)
    e(f'''
    s_mov_b32 m0, {PG}
    s_mov_b32 s{sT1}, 0
    buffer_load_dwordx4 v{vL16}, {srd(S_GATE)}, 0 offen lds
    v_xor_b32 v{xk+1}, 64, v{xk}
    v_xor_b32 v{xk+2}, 0x80, v{xk}
    v_xor_b32 v{xk+3}, 0xc0, v{xk}
    ''')
    for s4 in range(4):
        e(f's_mov_b32 m0, {PA + s4*4096}')
        for i in range(4):
            e(f'buffer_load_dwordx4 v{vL16}, {srd(S_WKV)}, s{sT1} offen offset:{i*1024} lds')
        e(f's_add_u32 s{sT1}, s{sT1}, 4096')
    e(f'''
    @stamp h_issued
    v_lshlrev_b32 v{a}, 8, v{vG4}
    v_lshl_add_u32 v{a}, v{vM15}, 3, v{a}
    v_add_u32 v{a}, {PA}, v{a}                ; PA + g*256 + (l&15)*8
    v_lshlrev_b32 v{b}, 4, v{vG4}
    v_add_u32 v{b}, {PG}, v{b}
    s_lshl_b32 s{sT0}, s{sRB}, 2
    s_lshr_b32 s{sT1}, s{sCB}, 1
    s_add_u32 s{sT0}, s{sT0}, s{sT1}          ; kb
    s_lshr_b32 s{sT1}, s{sT0}, 1
    s_lshl_b32 s{sT1}, s{sT1}, 11
    s_and_b32 s{sT2}, s{sT0}, 1
    s_lshl_b32 s{sT2}, s{sT2}, 8
    s_add_u32 s{sT1}, s{sT1}, s{sT2}
    s_and_b32 s{sT2}, s{sCB}, 1
    s_lshl_b32 s{sT2}, s{sT2}, 10
    s_add_u32 s{sT1}, s{sT1}, s{sT2}
    s_lshl_b32 s{sT0}, s{sT0}, 6
    s_add_u32 s{sT0}, s{sT0}, {WS_G}
    v_and_b32 v{c}, 1, v{vG4}
    v_lshrrev_b32 v{d}, 1, v{vG4}
    s_add_u32 s{sT2}, s{sT1}, {LDELTA}
    s_mov_b32 s{sT3}, {LDELTA}
    s_mul_i32 s{sT4}, s{sXCD}, {FST}
    s_lshr_b32 s{sT5}, s2, 3
    s_lshl_b32 s{sT5}, s{sT5}, 2
    s_add_u32 s{sT4}, s{sT4}, s{sT5}
    s_add_u32 s{sT4}, s{sT4}, {WS_F1}
    v_mov_b32 v11, s{sT4}
    s_waitcnt vmcnt(33) lgkmcnt(0)
    ''')
    def nonce():
        e(f'''
        v_readfirstlane_b32 s{sNON}, v164
        s_mul_i32 s{sNON}, s{sNON}, 0x9e3779b1
        s_add_u32 s{sNON}, s{sNON}, 0x7f4a7c15
        ''')
    nonce()
    e(f'''
    s_getreg_b32 s{sT4}, hwreg(HW_REG_XCC_ID, 0, 4)
    s_xor_b32 s{sT4}, s{sT4}, s{sNON}
    v_mov_b32 v12, s{sT4}
    s_waitcnt vmcnt(17)
    ''')
    signal(C_T0)
    for s_ in range(16):
        e(f'ds_read_b128 {v(XF+4*s_,4)}, v{xk+(s_&3)} offset:{(s_>>2)*256}')
    signal(C_QH)
    e(f'''
    s_bitcmp1_b32 s{sCB}, 0
    s_cbranch_scc1 L_kv_v
    ''')
    def kvloop(isv):
        n = 2 if isv else 3
        for g in range(5):
            if g < 4:
                e(f's_waitcnt vmcnt({4*(3-g)})')
                for s in range(4*g, 4*g+4):
                    bi = s % 8
                    e(f'ds_read_b64_tr_b16 {v(WF+4*bi,2)}, v{a} offset:{s*1024}')
                    e(f'ds_read_b64_tr_b16 {v(WF+4*bi+2,2)}, v{a} offset:{s*1024+128}')
                    if not isv: e(f'ds_read_b128 {v(GF+4*bi,4)}, v{b} offset:{s*64}')
            if g >= 1:
                if g < 4: e(f's_waitcnt lgkmcnt({4*n})')
                for p in range(4*g-4, 4*g):
                    if g == 4: e(f's_waitcnt lgkmcnt({n*(15-p)})')
                    mm(p, p % 8, isv)
    def mm(p, pb, isv):
        cc = '0' if p == 0 else v(dk,4)
        if isv:
            e(f'v_mfma_f32_16x16x32_bf16 {v(dk,4)}, {v(XF+4*p,4)}, {v(WF+4*pb,4)}, {cc}')
        else:
            e(f'v_mfma_f32_16x16x32_bf16 {v(dk,4)}, {v(WF+4*pb,4)}, {v(XF+4*p,4)}, {cc}')
            e(f'v_mfma_f32_16x16x32_bf16 {v(dg,4)}, {v(GF+4*pb,4)}, {v(XF+4*p,4)}, {"0" if p==0 else v(dg,4)}')
    kvloop(False)
    e(f'''
    v_lshlrev_b32 v{a}, 9, v{d}
    v_lshl_add_u32 v{a}, v{c}, 3, v{a}        ; K: (g>>1)*512 + (g&1)*8
    v_lshl_add_u32 v{a}, v{vM15}, 4, v{a}
    v_lshlrev_b32 v{b}, 2, v{vL}
    v_cvt_pk_bf16_f32 v{dk}, v{dk}, v{dk+1}
    v_cvt_pk_bf16_f32 v{dk+1}, v{dk+2}, v{dk+3}
    buffer_store_dwordx2 {v(dk,2)}, v{a}, {srd(S_WS)}, s{sT2} offen
    buffer_store_dwordx2 {v(dk,2)}, v{a}, {srd(S_WS)}, s{sT1} offen sc1
    v_cvt_pk_bf16_f32 v{dg}, v{dg}, v{dg}
    v_lshlrev_b32 v{dg}, 16, v{dg}
    v_mul_f32 v{dg}, {f32(-LOG2E)}, v{dg}
    v_exp_f32 v{dg}, v{dg}
    v_add_f32 v{dg}, 1.0, v{dg}
    v_rcp_f32 v{dg}, v{dg}
    v_cvt_pk_bf16_f32 v{dg}, v{dg}, v{dg}
    v_lshlrev_b32 v{dg}, 16, v{dg}
    s_mov_b64 exec, 1
    s_waitcnt vmcnt(1)
    buffer_store_dword v12, v11, {srd(S_WS)}, s{sT3} offen
    s_mov_b64 exec, 0xffff
    buffer_store_dword v{dg}, v{b}, {srd(S_WS)}, s{sT0} offen sc1
    s_mov_b64 exec, -1
    s_branch L_kv_d
    L_kv_v:
    ''')
    kvloop(True)
    e(f'''
    v_lshlrev_b32 v{a}, 9, v{c}
    v_lshl_add_u32 v{a}, v{d}, 3, v{a}        ; V: (g&1)*512 + (g>>1)*8
    v_lshl_add_u32 v{a}, v{vM15}, 4, v{a}
    v_cvt_pk_bf16_f32 v{dk}, v{dk}, v{dk+1}
    v_cvt_pk_bf16_f32 v{dk+1}, v{dk+2}, v{dk+3}
    buffer_store_dwordx2 {v(dk,2)}, v{a}, {srd(S_WS)}, s{sT2} offen
    buffer_store_dwordx2 {v(dk,2)}, v{a}, {srd(S_WS)}, s{sT1} offen sc1
    s_mov_b64 exec, 1
    s_waitcnt vmcnt(1)
    buffer_store_dword v12, v11, {srd(S_WS)}, s{sT3} offen
    s_mov_b64 exec, -1
    L_kv_d:
    @stamp h_a
    ''')
    signal(C_KV+8)
    e(f'''
    s_mov_b64 exec, 1
    s_waitcnt vmcnt(0)
    buffer_store_dword v12, v11, {srd(S_WS)}, 0 offen sc1
    s_mov_b64 exec, -1
    @stamp h_b
    ''')
    def gpoll(lbl, sbase, sleep):
        e(f'''
        v_and_b32 v{a}, 31, v{vL}
        v_lshlrev_b32 v{a}, 2, v{a}
        L_poll{lbl}:
        buffer_load_dword v{b}, v{a}, {srd(S_WS)}, s{sbase} offen sc1
        s_waitcnt vmcnt(0)
        v_xor_b32 v{b}, s{sNON}, v{b}
        v_cmp_lt_u32 vcc, 15, v{b}
        s_cbranch_vccz L_polled{lbl}
        s_sleep {sleep}
        s_sub_u32 s{sTO}, s{sTO}, 16
        s_cbranch_scc0 L_poll{lbl}
        s_mov_b32 s{sTO}, 0
        L_polled{lbl}:
        ''')
    e(f's_mov_b32 s{sPOS}, 2')
    e('s_branch L_h023')
    e(f'''
    L_h1:
    s_lshl_b32 s{sT0}, s{sRB}, 16
    s_lshr_b32 s{sT1}, s{sCB}, 1
    s_xor_b32 s{sT1}, s{sT1}, 1
    s_lshl_b32 s{sT1}, s{sT1}, 14
    s_add_u32 s{sT0}, s{sT0}, s{sT1}
    s_and_b32 s{sT1}, s{sT1}, 0x4000
    s_add_u32 s{sT1}, s{sT1}, {XH}
    ''')
    xrows('h', 16)
    signal(C_ISS)
    e('@stamp h_issued')
    TR=16; T2=24
    e(f'''
    v_bfe_u32 v{a}, v{vL}, 2, 2               ; r
    v_lshl_add_u32 v{b}, v{vG4}, 3, v{a}      ; row = 8g + r
    v_and_b32 v{c}, 15, v{b}
    s_lshl_b32 s{sT4}, s{sCB}, 3
    v_bfe_u32 v{d}, v{vL}, 1, 1
    v_or_b32 v{d}, s{sT4}, v{d}               ; c16 (q = 0)
    v_xor_b32 v{d}, v{d}, v{c}
    v_lshlrev_b32 v{d}, 4, v{d}
    v_lshl_add_u32 v{d}, v{b}, 10, v{d}
    v_and_b32 v{a}, 1, v{vL}
    v_lshl_add_u32 v{d}, v{a}, 3, v{d}
    ''')
    e('s_waitcnt vmcnt(0) lgkmcnt(0)')
    e('@stamp h_a')
    signal(C_T0)
    wait(C_QH, 1, sleep=1)
    def xtr(hog):
        for q in range(4):
            e(f'v_xor_b32 v{a}, {32*q}, v{d}')
            e(f'v_xor_b32 v{b}, {(32*q) ^ 64}, v{d}')
            e(f'ds_read_b64_tr_b16 {v(T2+8*q+4*hog,2)}, v{a} offset:{XH if hog else XFL}')
            e(f'ds_read_b64_tr_b16 {v(T2+8*q+4*hog+2,2)}, v{b} offset:{(XH if hog else XFL)+4096}')
    xtr(1)
    signal(C_QH)
    wait(C_ISS, 3, sleep=1)
    wait(C_TAB, 8, sleep=1)
    e(f'''
    s_lshl_b32 s{sT0}, s{sRB}, 16
    s_xor_b32 s{sT1}, s{sKAP}, 1
    s_lshl_b32 s{sT1}, s{sT1}, 15
    s_add_u32 s{sT0}, s{sT0}, s{sT1}
    s_mov_b32 s{sT1}, {XFL}
    ''')
    xrows('f', 32)
    e('@stamp h_b')
    nonce()
    e(f'''
    v_mov_b32 v{TR}, -1
    v_mov_b32 v{TR+1}, -1
    v_mov_b32 v{TR+2}, -1
    v_mov_b32 v{TR+3}, -1
    s_lshl_b32 s{sT0}, s{sRB}, 16
    s_lshl_b32 s{sT1}, s{sCB}, 12
    s_add_u32 s{sT0}, s{sT0}, s{sT1}
    s_add_u32 s{sT0}, s{sT0}, {WS_O}
    s_add_u32 s{sT1}, s{sT0}, 32768
    s_lshl_b32 s{sT2}, s{sD0}, 12
    s_add_u32 s{sT2}, s{sT2}, {WS_B}
    s_add_u32 s{sT3}, s{sT2}, 4096
    v_lshlrev_b32 v{c}, 12, v{vM15}
    v_lshl_add_u32 v{c}, v{vG4}, 4, v{c}
    s_lshl_b32 s{sT4}, s{sKAP}, 6
    v_add_u32 v13, s{sT4}, v{c}
    v_xor_b32 v{c}, 64, v13
    s_lshl_b32 s{sT4}, s{sCB}, 18
    s_lshl_b32 s{sT5}, s{sRB}, 7
    s_add_u32 s{sT4}, s{sT4}, s{sT5}
    s_add_u32 s{sT4}, s{sT4}, {WS_XT}
    s_waitcnt vmcnt(0)
    ''')
    signal(C_T2)
    e('@stamp h_c')
    xtr(0)
    signal(C_QA)
    wait(C_KISS, 3, sleep=3)
    for q in range(8):
        e(f'buffer_store_dwordx4 {v(T2+4*q,4)}, v{13 if q&1 else c}, {srd(S_WS)}, s{sT4} offen sc1')
        if q & 1: e(f's_add_u32 s{sT4}, s{sT4}, 65536')
    for sr in (sT0, sT1, sT2, sT3):
        for j in range(4):
            e(f'buffer_store_dwordx4 {v(TR,4)}, v{vL16}, {srd(S_WS)}, s{sr} offen offset:{j*1024} sc1')
    e(f'''
    s_mul_i32 s{sT0}, s{sCB}, {FST}
    s_lshl_b32 s{sT1}, s{sRB}, 2
    s_add_u32 s{sT0}, s{sT0}, s{sT1}
    s_add_u32 s{sT0}, s{sT0}, {WS_F2}
    v_mov_b32 v11, s{sT0}
    v_mov_b32 v{a}, s{sNON}
    s_mov_b64 exec, 1
    s_waitcnt vmcnt(0)
    buffer_store_dword v{a}, v11, {srd(S_WS)}, 0 offen sc1
    s_mov_b64 exec, -1
    ''')
    signal(C_ST)
    e('s_branch L_hkvd')
    e('L_h23:')
    e(f'''
    v_lshrrev_b32 v{a}, 3, v{vL}
    v_lshlrev_b32 v{a}, 10, v{a}
    v_and_b32 v{b}, 7, v{vL}
    v_bfe_u32 v{c}, v{vL}, 4, 1
    v_lshlrev_b32 v{c}, 1, v{c}
    v_xor_b32 v{b}, v{b}, v{c}
    v_lshl_add_u32 v{c}, v{b}, 4, v{a}
    v_xor_b32 v{d}, 64, v{c}
    s_sub_u32 s{sPOS}, s{sW}, 1               ; 1 or 2
    s_lshl_b32 s{sT0}, s{sPOS}, 2
    v_add_u32 v10, s{sT0}, v{vC}
    ''')
    wait(C_ISS, f's{sPOS}', sleep=1)
    e(f'''
    s_and_b32 s{sT2}, s{sW}, 1
    s_lshl_b32 s{sT0}, s{sT2}, 18
    s_lshl_b32 s{sT1}, s{sCB}, 7
    s_add_u32 s{sT0}, s{sT0}, s{sT1}
    s_lshl_b32 s{sT1}, s{sT2}, 15
    s_add_u32 s{sT1}, s{sT1}, {WQ}
    s_mov_b32 s{sCNT}, 0
    L_wp:
    ''')
    for j in range(4):
        e(f'''
        s_mov_b32 m0, s{sT1}
        s_add_u32 s{sT1}, s{sT1}, 1024
        buffer_load_dwordx4 v{d if j&1 else c}, {srd(S_WQ)}, s{sT0} offen lds
        s_add_u32 s{sT0}, s{sT0}, 8192
        ''')
    e(f'''
    s_add_u32 s{sCNT}, s{sCNT}, 1
    s_cmp_lt_u32 s{sCNT}, 8
    s_cbranch_scc1 L_wp
    ''')
    signal(C_ISS)
    e('@stamp h_issued')
    e('s_waitcnt vmcnt(0)')
    signal(C_ISS, addr=10)
    e('@stamp h_a')
    nonce()
    e(f's_sub_u32 s{sPOS}, s{sPOS}, 1')
    e('L_h023:')
    e(f'''
    L_kvl:
    s_add_u32 s{sT1}, s{sXCD}, s{sPOS}
    s_and_b32 s{sT1}, s{sT1}, 7
    s_mul_i32 s{sT2}, s{sT1}, {FST}
    s_add_u32 s{sT2}, s{sT2}, {WS_F1}
    s_lshl_b32 s{sT1}, s{sT1}, 14
    s_cmp_ge_u32 s{sPOS}, 3
    s_cbranch_scc1 L_kvp
    s_cmp_eq_u32 s{sPOS}, 0
    s_cbranch_scc0 L_kvw1
    ''')
    wait(C_KV+8, 1, sleep=1)
    e(f'''
    s_getreg_b32 s{sT3}, hwreg(HW_REG_XCC_ID, 0, 4)
    s_xor_b32 s{sT3}, s{sT3}, s{sNON}
    s_add_u32 s{sT4}, s{sT2}, {LDELTA}
    s_mov_b32 s{sCNT}, 0
    v_and_b32 v{a}, 31, v{vL}
    v_lshlrev_b32 v{a}, 2, v{a}
    L_lpoll:
    buffer_load_dword v{b}, v{a}, {srd(S_WS)}, s{sT4} offen sc1
    s_waitcnt vmcnt(0)
    v_cmp_ne_u32 vcc, s{sT3}, v{b}
    v_xor_b32 v{b}, s{sNON}, v{b}
    s_cbranch_vccz L_lok
    s_sleep 2
    s_add_u32 s{sCNT}, s{sCNT}, 1
    s_cmp_lt_u32 s{sCNT}, 12
    s_cbranch_scc1 L_lpoll
    s_branch L_kvp
    L_lok:
    s_add_u32 s{sT1}, s{sT1}, {LDELTA}
    @stamp h_p0
    s_branch L_kvgo
    L_kvw1:
    ''')
    wait(C_KISS, 1, sleep=1)
    e('L_kvp:')
    gpoll(1, sT2, 6)
    e(f'''
    s_cmp_eq_u32 s{sPOS}, 0
    s_cbranch_scc1 L_kvgo
    s_cmp_ge_u32 s{sPOS}, 3
    s_cbranch_scc1 L_kvw2
    ''')
    wait(C_QH, 6, sleep=1)
    e('s_branch L_kvgo')
    e('L_kvw2:')
    wait(C_QA, 9, sleep=2)
    e('L_kvgo:')
    wait(C_KISS, f's{sPOS}', sleep=1)
    e(f'''
    s_lshl_b32 s{sT0}, s{sPOS}, 14
    ''')
    for j in range(4):
        e(f's_mov_b32 m0, s{sT0}')
        for i in range(4):
            e(f'buffer_load_dwordx4 v{vL16}, {srd(S_WS)}, s{sT1} offen offset:{i*1024} sc1 lds')
        e(f's_add_u32 s{sT0}, s{sT0}, 4096')
        e(f's_add_u32 s{sT1}, s{sT1}, 4096')
    signal(C_KISS)
    e(f'''
    s_lshl_b32 s{sT0}, s{sPOS}, 2
    v_add_u32 v{d}, s{sT0}, v{vC}
    s_cmp_lg_u32 s{sPOS}, 0
    s_cbranch_scc1 L_noloc
    s_getreg_b32 s{sT1}, hwreg(HW_REG_XCC_ID, 0, 4)
    v_cmp_ne_u32 vcc, s{sT1}, v{b}
    s_and_b32 s{sT0}, s{sRB}, 3
    s_lshl_b32 s{sT0}, s{sT0}, 3
    s_lshr_b32 s{sT0}, vcc_lo, s{sT0}
    s_and_b32 s{sT0}, s{sT0}, 0xff
    s_cbranch_scc1 L_noloc
    ''')
    signal(C_KVOK)
    e('L_noloc:')
    e(f'''
    s_cmp_lg_u32 s{sPOS}, 7
    s_cbranch_scc1 L_no7
    s_mul_i32 s{sT2}, s{sXCD}, {FST}
    s_add_u32 s{sT2}, s{sT2}, {WS_F1}
    ''')
    gpoll(2, sT2, 6)
    e(f'''
    L_no7:
    s_cmp_eq_u32 s{sPOS}, 7
    s_cselect_b32 s{sT0}, 2, 1
    v_mov_b32 v{a}, s{sT0}
    s_mov_b64 exec, 1
    s_waitcnt vmcnt(0)
    ds_add_u32 v{d}, v{a} offset:{4*C_KV}
    s_mov_b64 exec, -1
    ''')
    e(f'''
    s_cmp_ge_u32 s{sPOS}, 3
    s_cbranch_scc1 L_nostamp
    @stamp h_kv0
    L_nostamp:
    s_add_u32 s{sPOS}, s{sPOS}, 3
    s_cmp_lt_u32 s{sPOS}, 8
    s_cbranch_scc1 L_kvl
    L_hkvd:
    @stamp h_kvd
    ''')
    mk(S_WO, P_WO, 524288)
    mk(S_OUT, P_OUT, 2097152)
    e(f'''
    s_lshr_b32 s{sCH}, s{sW}, 1
    s_and_b32 s{sHF}, s{sW}, 1
    s_lshl_b32 s{sT0}, s{sCH}, 2
    v_add_u32 v10, s{sT0}, v{vC}
    ''')
    import os
    if os.environ.get('SKIPH'):
        e(f'v_mov_b32 v11, 0\nv_mov_b32 v{d}, 0\ns_branch L_hfin')
    wait(C_QA, 9, sleep=4)
    e(f'''
    s_cmp_eq_u32 s{sW}, 1
    s_cbranch_scc1 L_sg1
    s_cmp_eq_u32 s{sW}, 2
    s_cbranch_scc1 L_sg2
    s_cmp_eq_u32 s{sW}, 3
    s_cbranch_scc1 L_sg3
    v_mov_b32 v{a}, 0
    v_mov_b32 v{b}, 0
    v_lshlrev_b32 v11, 3, v{vL}
    v_add_u32 v{c}, {KREV+4096}, v11
    v_sub_u32 v11, {KREV+4088}, v11
    v_add_u32 v{d}, {PB+12}, v{vL16}
    s_mov_b64 exec, 0xff
    ds_write_b64 v{c}, {v(a,2)}
    ds_write_b64 v{c}, {v(a,2)} offset:{KREV_O}
    ds_write_b64 v{c}, {v(a,2)} offset:{KREV_CH}
    ds_write_b64 v{c}, {v(a,2)} offset:{KREV_CH+KREV_O}
    s_mov_b64 exec, -1
    ''')
    for ch in range(2):
        g0 = 16 + 16*ch
        for pp in range(2):
            e(f'ds_read_b128 {v(g0+6*pp,4)}, v{d} offset:{(2*ch+pp)*GW+4}')
            e(f'ds_read_b32 v{g0+6*pp+4}, v{d} offset:{(2*ch+pp)*GW}')
    for ch in range(2):
        g0 = 16 + 16*ch
        e(f's_waitcnt lgkmcnt({4 if ch==0 else 2})')
        for k in range(5): e(f'v_add_f32 v{g0+k}, v{g0+k}, v{g0+6+k}')
        e(f'''
        v_cvt_pk_bf16_f32 v{g0+12}, v{g0+3}, v{g0+2}
        v_cvt_pk_bf16_f32 v{g0+13}, v{g0+1}, v{g0}
        v_cvt_pk_bf16_f32 v{g0+14}, v{g0+2}, v{g0+1}
        v_cvt_pk_bf16_f32 v{g0+15}, v{g0}, v{g0+4}
        ds_write_b64 v11, {v(g0+12,2)} offset:{ch*KREV_CH}
        ds_write_b64 v11, {v(g0+14,2)} offset:{ch*KREV_CH+KREV_O}
        ''')
    e('s_branch L_sgd')
    def seg(sg):
        n = 2 << sg
        p0 = 128 << sg
        ta = {1:2, 2:3, 3:5}[sg]; tb = {1:3, 2:6, 3:12}[sg]
        val = lambda r: 0 if r < ta else (1 if r < tb else 2)
        e(f'''
        L_sg{sg}:
        v_lshlrev_b32 v{d}, 3, v{vL}
        v_add_u32 v{d}, {PB+16+(128+128*sg)*4-4}, v{d}
        v_lshlrev_b32 v11, {sg+2}, v{vL}
        v_sub_u32 v11, {KREV+(2047-(p0+n-1))*2}, v11
        ''')
        if sg == 1: e(f'v_cmp_eq_u32 vcc, 0, v{vL}')
        for ch in range(2):
            g0 = 16 + 32*ch
            for pp in range(2):
                e(f'ds_read_b64 {v(g0+4*pp,2)}, v{d} offset:{(2*ch+pp)*GW+4}')
                e(f'ds_read_b32 v{g0+4*pp+2}, v{d} offset:{(2*ch+pp)*GW+12}')
                if sg == 1: e(f'ds_read_b32 v{g0+4*pp+3}, v{d} offset:{(2*ch+pp)*GW}')
        e('s_waitcnt lgkmcnt(0)')
        for ch in range(2):
            g0 = 16 + 32*ch
            for k in range(4 if sg == 1 else 3): e(f'v_add_f32 v{g0+k}, v{g0+k}, v{g0+4+k}')
            if sg == 1: e(f'v_cndmask_b32 v{g0+3}, v{g0}, v{g0+3}, vcc')
            reg = lambda r: (g0+3 if sg == 1 else g0) if r < 0 else g0+val(r)
            E = g0+8; Oc = g0+16
            for i in range(n//2):
                r = n-1-2*i
                e(f'v_cvt_pk_bf16_f32 v{E+i}, v{reg(r)}, v{reg(r-1)}')
                e(f'v_cvt_pk_bf16_f32 v{Oc+i}, v{reg(r-1)}, v{reg(r-2)}')
            for (X, off) in ((E, 0), (Oc, KREV_O)):
                if sg == 1: e(f'ds_write_b64 v11, {v(X,2)} offset:{ch*KREV_CH+off}')
                else:
                    for hh in range(n//8): e(f'ds_write_b128 v11, {v(X+4*hh,4)} offset:{ch*KREV_CH+off+16*hh}')
        if sg < 3: e('s_branch L_sgd')
    for sg in (1,2,3): seg(sg)
    e('L_sgd:')
    signal(C_KREV)
    e('@stamp h_krev')
    e(f'''
    s_mul_i32 s{sT2}, s{sXCD}, {FST}
    s_add_u32 s{sT2}, s{sT2}, {WS_F2}
    s_cmp_eq_u32 s{sHF}, 1
    s_cbranch_scc1 L_polled3
    ''')
    gpoll(3, sT2, 8)
    e('@stamp h_f2')
    wait(C_KREV, 4, sleep=4)
    e(f'''
    s_mul_i32 s{sT1}, s{sCH}, {XC_CH}
    s_add_u32 s{sT1}, s{sT1}, {XC}
    s_cmp_eq_u32 s{sHF}, 1
    s_cbranch_scc1 L_xpad
    s_add_u32 s{sT1}, s{sT1}, 512
    s_mov_b32 m0, s{sT1}
    s_add_u32 s{sT0}, s{sD0}, s{sCH}
    s_lshl_b32 s{sT0}, s{sT0}, 12
    s_add_u32 s{sT0}, s{sT0}, {WS_XT}
    ''')
    for i in range(4):
        e(f'buffer_load_dwordx4 v{vL16}, {srd(S_WS)}, s{sT0} offen offset:{i*1024} sc1 lds')
    e(f'''
    s_branch L_xpad_d
    L_xpad:
    v_mov_b32 v{a}, 0
    v_mov_b32 v{b}, 0
    v_lshlrev_b32 v{c}, 3, v{vL}
    v_add_u32 v{c}, s{sT1}, v{c}
    ds_write_b64 v{c}, {v(a,2)}
    L_xpad_d:
    s_waitcnt vmcnt(0)
    ''')
    signal(C_XT, addr=10)
    e('@stamp h_kv1')
    aA=12; aB=20; CA=24; CB=56; CACC=120
    e(f'''
    v_lshrrev_b32 v{a}, 1, v{vG4}
    v_lshlrev_b32 v{a}, 4, v{a}
    v_add_u32 v{a}, v{a}, v{vM15}
    v_and_b32 v{b}, 1, v{vG4}
    v_lshlrev_b32 v{c}, 3, v{b}
    v_sub_u32 v{a}, v{a}, v{c}
    v_sub_u32 v{a}, 2047, v{a}                 ; r00
    v_and_b32 v{c}, 1, v{a}
    v_sub_u32 v{a}, v{a}, v{c}
    v_lshlrev_b32 v{a}, 1, v{a}
    v_mul_u32_u24 v{c}, {KREV_O}, v{c}
    v_add_u32 v{a}, v{a}, v{c}
    s_mul_i32 s{sT0}, s{sCH}, {KREV_CH}
    s_add_u32 s{sT0}, s{sT0}, {KREV - 192}
    s_lshl_b32 s{sT1}, s{sHF}, 8
    s_sub_u32 s{sT0}, s{sT0}, s{sT1}
    v_add_u32 v{aA}, s{sT0}, v{a}
    ''')
    for u in range(1,8):
        e(f'v_subrev_u32 v{aA+u}, {512*u}, v{aA}')
    e(f'''
    v_lshrrev_b32 v{a}, 1, v{vG4}
    v_sub_u32 v{a}, v{vM15}, v{a}
    v_lshlrev_b32 v{a}, 5, v{a}
    v_lshl_add_u32 v{a}, v{b}, 4, v{a}
    s_mul_i32 s{sT0}, s{sCH}, {XC_CH}
    s_add_u32 s{sT0}, s{sT0}, {XC + 512 - 192}
    s_sub_u32 s{sT0}, s{sT0}, s{sT1}
    v_add_u32 v{aB}, s{sT0}, v{a}
    ''')
    def rdA(wq, u):
        o = 16*(3-wq)
        e(f'ds_read2_b32 {v(CA+4*u,2)}, v{aA+u} offset0:{o} offset1:{o+1}')
        e(f'ds_read2_b32 {v(CA+4*u+2,2)}, v{aA+u} offset0:{o+2} offset1:{o+3}')
    def rdB(wq, s):
        e(f'ds_read_b128 {v(CB+32*(wq&1)+4*s,4)}, v{aB} offset:{s*512+(3-wq)*64}')
    for u in range(8): rdA(0, u)
    wait(C_XT, 2, addr=10, sleep=4)
    e('s_setprio 2')
    for s in range(8): rdB(0, s)
    for wq in range(4):
        e('s_waitcnt lgkmcnt(0)')
        B = CB + 32*(wq&1)
        for u in range(7,-1,-1):
            for nt in range(u, 8):
                e(f'v_mfma_f32_16x16x32_bf16 {v(CACC+4*nt,4)}, {v(CA+4*u,4)}, {v(B+4*(nt-u),4)}, {"0" if (wq==0 and nt==u) else v(CACC+4*nt,4)}')
            if wq < 3:
                rdA(wq+1, u)
                rdB(wq+1, u)
    e('s_setprio 3')
    signal(C_CR, addr=10)
    e(f'''
    @stamp h_conv
    s_cmp_eq_u32 s{sHF}, 0
    s_cbranch_scc1 L_noswap
    s_nop 7
    ''')
    for i in range(16): e(f'v_swap_b32 v{CACC+i}, v{CACC+16+i}')
    e(f'''
    L_noswap:
    s_mul_i32 s{sT0}, s{sCH}, {KREV_CH}
    s_add_u32 s{sT0}, s{sT0}, {KREV}
    s_lshl_b32 s{sT1}, s{sHF}, 12
    s_add_u32 s{sT2}, s{sT0}, s{sT1}
    s_xor_b32 s{sT1}, s{sT1}, 4096
    s_add_u32 s{sT0}, s{sT0}, s{sT1}
    v_add_u32 v{a}, s{sT2}, v{vL16}
    v_add_u32 v{b}, s{sT0}, v{vL16}
    ''')
    wait(C_CR, 2, addr=10, sleep=3)
    for q in range(4):
        e(f'ds_write_b128 v{a}, {v(CACC+16+4*q,4)} offset:{q*1024}')
    signal(C_CW, addr=10)
    e(f'''
    v_lshlrev_b32 v{c}, 5, v{vM15}
    v_lshl_add_u32 v{c}, v{vG4}, 3, v{c}
    s_lshl_b32 s{sT1}, s{sHF}, 11
    v_add_u32 v{c}, s{sT1}, v{c}
    s_mul_i32 s{sT0}, s{sCH}, {XC_CH}
    s_add_u32 s{sT0}, s{sT0}, {XC+512}
    v_add_u32 v{d}, s{sT0}, v{c}
    s_add_u32 s{sT0}, s{sD0}, s{sCH}
    s_lshl_b32 s{sT0}, s{sT0}, 12
    s_add_u32 s{sT0}, s{sT0}, {WS_B}
    s_lshl_b32 s{sT1}, s{sCH}, 4
    s_lshr_b32 s{sT1}, s{sDSK}, s{sT1}
    s_lshl_b32 s{sT1}, s{sT1}, 16
    s_mov_b32 s{sT2}, 0xfffefffe
    ''')
    wait(C_ST, 1, sleep=1)
    wait(C_CW, 2, addr=10, sleep=3)
    XV=24; T=40
    for q in range(4):
        e(f'ds_read_b128 {v(CACC+16+4*q,4)}, v{b} offset:{q*1024}')
        e(f'ds_read_b64 {v(XV+2*q,2)}, v{d} offset:{q*512}')
    signal(C_CONV)
    for q in range(4):
        y=CACC+4*q
        e(f's_waitcnt lgkmcnt({7-2*q})')
        for r in range(4): e(f'v_add_f32 v{y+r}, v{y+r}, v{y+16+r}')
        for hh in range(2):
            x=XV+2*q+hh
            e(f'''
            v_lshlrev_b32 v{T+1}, 16, v{x}
            v_and_b32 v{T+2}, 0xffff0000, v{x}
            v_fmac_f32 v{y+2*hh}, s{sT1}, v{T+1}
            v_fmac_f32 v{y+2*hh+1}, s{sT1}, v{T+2}
            v_cvt_pk_bf16_f32 v{x}, v{y+2*hh}, v{y+2*hh+1}
            v_pk_min_u16 v{x}, v{x}, s{sT2}
            ''')
        e(f'buffer_store_dwordx2 {v(XV+2*q,2)}, v{c}, {srd(S_WS)}, s{sT0} offen offset:{q*512} sc1')
    e('@stamp h_bout')
    WOF=36; ACC=12; BP=28; GV=10; OA=11
    NS=6
    e(f'''
    v_lshrrev_b32 v{a}, 2, v{vL}
    v_lshlrev_b32 v{a}, 10, v{a}
    v_and_b32 v{b}, 3, v{vL}
    v_lshl_add_u32 v{a}, v{b}, 4, v{a}
    s_lshr_b32 s{sT0}, s{sCB}, 1
    s_lshl_b32 s{sT0}, s{sT0}, 8
    s_lshl_b32 s{sT1}, s{sW}, 6
    s_add_u32 s{sT0}, s{sT0}, s{sT1}
    s_mul_i32 s{sT2}, s{sW}, {NS*1024}
    s_add_u32 s{sT2}, s{sT2}, {POOL}
    v_bfe_u32 v{c}, v{vL}, 2, 2
    v_lshrrev_b32 v{d}, 5, v{vL}
    v_lshl_add_u32 v{c}, v{d}, 2, v{c}         ; 4h + r
    v_lshlrev_b32 v{c}, 6, v{c}
    v_bfe_u32 v{d}, v{vL}, 4, 1
    v_lshl_add_u32 v{c}, v{d}, 5, v{c}
    v_lshl_add_u32 v{c}, v{b}, 3, v{c}
    v_add_u32 v{c}, s{sT2}, v{c}
    s_waitcnt vmcnt(0)
    ''')
    wait(C_CONV, 4, sleep=4)
    def wodma(k):
        e(f'''
        s_add_u32 s{sT3}, s{sT2}, {(k%NS)*1024}
        s_mov_b32 m0, s{sT3}
        s_nop 0
        buffer_load_dwordx4 v{a}, {srd(S_WO)}, s{sT0} offen lds
        s_add_u32 s{sT0}, s{sT0}, 16384
        ''')
    for k in range(NS): wodma(k)
    for k in range(28):
        e(f's_waitcnt vmcnt({min(NS-1, 31-k)})')
        e(f'ds_read_b64_tr_b16 {v(WOF+4*k,2)}, v{c} offset:{(k%NS)*1024}')
        e(f'ds_read_b64_tr_b16 {v(WOF+4*k+2,2)}, v{c} offset:{(k%NS)*1024+512}')
        if k+NS < 32:
            e('s_waitcnt lgkmcnt(0)')
            wodma(k+NS)
    e(f'v_mov_b32 v{d}, v{c}')
    e('@stamp h_wo')
    e(f'''
    s_mov_b32 s{sT0}, {WS_F2}
    v_lshrrev_b32 v{a}, 3, v{vL}
    v_mul_u32_u24 v{a}, {FST}, v{a}
    v_and_b32 v{b}, 7, v{vL}
    v_lshl_add_u32 v{a}, v{b}, 4, v{a}
    L_pollA:
    buffer_load_dwordx4 {v(ACC,4)}, v{a}, {srd(S_WS)}, s{sT0} offen sc1
    s_waitcnt vmcnt(0)
    v_xor_b32 v{ACC}, s{sNON}, v{ACC}
    v_xor_b32 v{ACC+1}, s{sNON}, v{ACC+1}
    v_xor_b32 v{ACC+2}, s{sNON}, v{ACC+2}
    v_xor_b32 v{ACC+3}, s{sNON}, v{ACC+3}
    v_or3_b32 v{ACC}, v{ACC}, v{ACC+1}, v{ACC+2}
    v_or_b32 v{ACC}, v{ACC}, v{ACC+3}
    v_cmp_ne_u32 vcc, 0, v{ACC}
    s_cbranch_vccz L_polledA
    s_sleep 8
    s_sub_u32 s{sTO}, s{sTO}, 16
    s_cbranch_scc0 L_pollA
    s_mov_b32 s{sTO}, 0
    L_polledA:
    s_or_b32 s{sT0}, s2, s{sW}
    s_cmp_lg_u32 s{sT0}, 0
    s_cbranch_scc1 L_nogen
    v_mov_b32 v{a}, {WS_GEN}
    v_mov_b32 v{b}, s{sNON}
    s_mov_b64 exec, 1
    buffer_store_dword v{b}, v{a}, {srd(S_WS)}, 0 offen sc1
    s_mov_b64 exec, -1
    L_nogen:
    ''')
    e(f'''
    s_lshl_b32 s{sT0}, s{sRB}, 6
    s_and_b32 s{sT1}, s{sCB}, 1
    s_lshl_b32 s{sT1}, s{sT1}, 5
    s_add_u32 s{sT0}, s{sT0}, s{sT1}
    v_and_b32 v{a}, 31, v{vL}
    v_add_u32 v{a}, s{sT0}, v{a}               ; row
    s_lshr_b32 s{sT0}, s{sCB}, 1
    s_lshl_b32 s{sT0}, s{sT0}, 7
    s_lshl_b32 s{sT1}, s{sW}, 5
    s_add_u32 s{sT0}, s{sT0}, s{sT1}
    v_lshrrev_b32 v{b}, 5, v{vL}
    v_lshlrev_b32 v{b}, 2, v{b}
    v_add_u32 v{b}, s{sT0}, v{b}
    v_lshlrev_b32 v{OA}, 10, v{a}
    v_lshl_add_u32 v{OA}, v{b}, 1, v{OA}
    v_lshlrev_b32 v{b}, 12, v{b}
    v_lshl_add_u32 v{b}, v{a}, 1, v{b}
    v_add_u32 v{b}, {WS_B}, v{b}
    v_lshlrev_b32 v{a}, 2, v{a}
    s_mov_b32 s{sT0}, {WS_G}
    buffer_load_dword v{GV}, v{a}, {srd(S_WS)}, s{sT0} offen sc1
    L_bpoll:
    ''')
    for i in range(16):
        col = (i>>2)*8 + (i&3)
        e(f's_mov_b32 s{sT0}, {col*4096}')
        e(f'buffer_load_ushort v{ACC+i}, v{b}, {srd(S_WS)}, s{sT0} offen sc1')
    e(f's_waitcnt vmcnt(0)')
    e(f'v_max3_u32 v{c}, v{ACC}, v{ACC+1}, v{ACC+2}')
    for i in range(3,15,2): e(f'v_max3_u32 v{c}, v{c}, v{ACC+i}, v{ACC+i+1}')
    e(f'''
    v_max_u32 v{c}, v{c}, v{ACC+15}
    v_cmp_eq_u32 vcc, 0xffff, v{c}
    s_cbranch_vccz L_bok
    s_sleep 8
    s_sub_u32 s{sTO}, s{sTO}, 16
    s_cbranch_scc0 L_bpoll
    s_mov_b32 s{sTO}, 0
    L_bok:
    v_sub_f32 v{c}, 1.0, v{GV}
    ''')
    for i in range(16):
        e(f'v_lshlrev_b32 v{ACC+i}, 16, v{ACC+i}')
        e(f'v_mul_f32 v{ACC+i}, v{ACC+i}, v{c}')
    e('@stamp h_bok')
    OF0=4
    e('L_hfin:')
    e('s_barrier')
    e('s_barrier')
    e('@stamp h_o0')
    OB=148
    q=[]
    def ds(tag, txt): e(txt); q.append(tag)
    def need_(tags):
        idx=max(i for i,t in enumerate(q) if t in tags) if any(t in tags for t in q) else -1
        if idx >= 0:
            e(f's_waitcnt lgkmcnt({len(q)-1-idx})')
            del q[:idx+1]
    for k in range(4): ds(('o',k), f'ds_read_b128 {v(OB+4*k,4)}, v{vL16} offset:{k*1024}')
    for k in range(32):
        need_({('o',k),('w',k)})
        W = WOF+4*k if k < 28 else WOF+4*(k-28)
        e(f'v_mfma_f32_32x32x16_bf16 {v(ACC,16)}, {v(W,4)}, {v(OB+4*(k%4),4)}, {v(ACC,16)}')
        if k+4 < 32: ds(('o',k+4), f'ds_read_b128 {v(OB+4*(k%4),4)}, v{vL16} offset:{(k+4)*1024}')
        if k < 4:
            kk=28+k
            ds(('w',kk), f'ds_read_b64_tr_b16 {v(WOF+4*k,2)}, v{d} offset:{(kk%NS)*1024}')
            ds(('w',kk), f'ds_read_b64_tr_b16 {v(WOF+4*k+2,2)}, v{d} offset:{(kk%NS)*1024+512}')
    e('@stamp h_mm')
    T=WOF+16
    for i in range(8):
        e(f'v_cvt_pk_bf16_f32 v{T+i}, v{ACC+2*i}, v{ACC+2*i+1}')
        if i & 1:
            e(f'buffer_store_dwordx2 {v(T+i-1,2)}, v{OA}, {srd(S_OUT)}, 0 offen offset:{(i>>1)*16}')
    e('@stamp h_end')
    finish()
    vQ=10
    PR=14
    R=24; s1=40; s2=42; mu=44; tt=46; pk=48; wa=18; ra=20; FA=96; FB=146; vG=24
    al=66; bh=67; bl=68; dt=21; p1=22; p2=23; ee=69
    NM=16; S0=40; S1=56; P=72; O=80; KF=96; VF=112; ad=14; mx=15; kvf=144; fl=145
    e(f'''
    L_main:
    s_sub_u32 s{sM}, s{sW}, 4
    s_lshr_b32 s{sRT}, s{sM}, 2
    s_and_b32 s{sHD}, s{sM}, 3
    s_lshr_b32 s{sCH}, s{sHD}, 1
    s_setprio 1
    s_cmp_eq_u32 s{sRT}, 0
    s_cbranch_scc1 L_np
    s_setprio 3
    L_np:
    ''')
    e(f'''
    v_and_b32 v{a}, 27, v{vL}
    v_cmp_eq_u32 vcc, 16, v{a}
    v_mov_b32 v{b}, 0x3f803f80
    v_cndmask_b32 v{VF}, 0, v{b}, vcc
    ''')
    for i in range(1,32): e(f'v_mov_b32 v{VF+i}, v{VF}')
    for i in range(16): e(f'v_mov_b32 v{O+i}, 0')
    for i in range(4): e(f'v_mov_b32 v{P+4+i}, 0')
    def exp_acc(dst, x, t, u):
        e(f'''
        v_mul_f32 v{t}, {f32(L2E_HI)}, v{x}
        v_fma_f32 v{u}, v{x}, s{sT4}, -v{t}
        v_fmac_f32 v{u}, {f32(L2E_LO)}, v{x}
        v_exp_f32 v{dst}, v{t}
        v_mul_f32 v{u}, {f32(math.log(2.0))}, v{u}
        v_fma_f32 v{dst}, v{dst}, v{u}, v{dst}
        v_cvt_pk_bf16_f32 v{dst}, v{dst}, v{dst}
        v_lshlrev_b32 v{dst}, 16, v{dst}
        ''')
    def cmul(D, X, Y, T=None):
        T = D if T is None else T
        e(f'''
        v_pk_mul_f32 {v(T,2)}, {v(X,2)}, {v(Y,2)} op_sel:[0,0] op_sel_hi:[0,1]
        v_pk_fma_f32 {v(D,2)}, {v(X,2)}, {v(Y,2)}, {v(T,2)} op_sel:[1,1,0] op_sel_hi:[1,0,1] neg_lo:[1,0,0]
        ''')
    def cmul_inplace(idxs, Y):
        for k,i in enumerate(idxs):
            e(f'v_pk_mul_f32 {v(56+2*(k%4),2)}, {v(R+2*i,2)}, {v(Y,2)} op_sel:[0,0] op_sel_hi:[0,1]')
            if k >= 1:
                j = idxs[k-1]
                e(f'v_pk_fma_f32 {v(R+2*j,2)}, {v(R+2*j,2)}, {v(Y,2)}, {v(56+2*((k-1)%4),2)} op_sel:[1,1,0] op_sel_hi:[1,0,1] neg_lo:[1,0,0]')
        k = len(idxs)-1; j = idxs[k]
        e(f'v_pk_fma_f32 {v(R+2*j,2)}, {v(R+2*j,2)}, {v(Y,2)}, {v(56+2*(k%4),2)} op_sel:[1,1,0] op_sel_hi:[1,0,1] neg_lo:[1,0,0]')
    e(f'''
    s_mov_b32 s{sT4}, {f32(L2E_HI)}
    s_mov_b32 s{sT5}, {f32(I2P_HI)}
    v_cmp_lt_u32 s[{sM0}:{sM0+1}], 31, v{vL}
    v_mov_b32 v{b}, {f32(8.0)}
    v_cndmask_b32 v{p1}, v{b}, 1.0, s[{sM0}:{sM0+1}]
    v_mov_b32 v{b}, {f32(64.0)}
    v_mov_b32 v{c}, {f32(256.0)}
    v_cndmask_b32 v{p2}, v{b}, v{c}, s[{sM0}:{sM0+1}]
    s_lshl_b32 s{sT0}, s{sM}, 12
    s_add_u32 s{sT3}, s{sT0}, {XFL}
    v_lshrrev_b32 v{a}, 5, v{vL}
    v_lshlrev_b32 v{a}, 11, v{a}
    v_and_b32 v{b}, 31, v{vL}
    v_lshl_add_u32 v{a}, v{b}, 4, v{a}
    v_add_u32 v{wa}, s{sT3}, v{a}
    v_xor_b32 v{wa+1}, 0x80, v{wa}
    v_lshrrev_b32 v{a}, 2, v{vL}              ; 4g + r
    v_lshlrev_b32 v{a}, 4, v{a}
    v_bfe_u32 v{b}, v{vL}, 1, 1               ; gh
    v_mul_u32_u24 v{b}, 0x280, v{b}
    v_xor_b32 v{a}, v{a}, v{b}
    v_and_b32 v{b}, 1, v{vL}
    v_lshl_add_u32 v{a}, v{b}, 3, v{a}
    v_add_u32 v{ra}, s{sT3}, v{a}
    s_waitcnt lgkmcnt(0)
    s_lshl_b32 s{sT0}, s{sCH}, 4
    s_lshr_b32 s{sT1}, s{sLDT}, s{sT0}
    s_lshl_b32 s{sT1}, s{sT1}, 16
    v_mov_b32 v{a}, s{sT1}
    ''')
    exp_acc(dt, a, b, c)
    e(f'''
    s_waitcnt vmcnt(0)
    @stamp m_par
    v_and_b32 v{a}, 0x7fff, v{PR+2}
    v_and_b32 v{b}, 0x7fff, v{PR+3}
    v_max_u32 v{a}, v{a}, v{b}
    v_max_u32_dpp v{a}, v{a}, v{a} row_shr:1 row_mask:0xf bank_mask:0xf
    v_max_u32_dpp v{a}, v{a}, v{a} row_shr:2 row_mask:0xf bank_mask:0xf
    v_max_u32_dpp v{a}, v{a}, v{a} row_shr:4 row_mask:0xf bank_mask:0xf
    v_max_u32_dpp v{a}, v{a}, v{a} row_shr:8 row_mask:0xf bank_mask:0xf
    v_readlane_b32 s{sT0}, v{a}, 15
    v_readlane_b32 s{sT1}, v{a}, 31
    s_max_u32 s{sT0}, s{sT0}, s{sT1}
    s_lshr_b32 s{sT0}, s{sT0}, 7
    s_max_u32 s{sT0}, s{sT0}, 1
    s_min_u32 s{sT0}, s{sT0}, 253
    s_lshl_b32 s{sSC}, s{sT0}, 23
    s_sub_u32 s{sT0}, 254, s{sT0}
    s_lshl_b32 s{sSCI}, s{sT0}, 23
    v_lshlrev_b32 v{a}, 16, v{PR}
    ''')
    exp_acc(al, a, b, c)
    e(f'''
    v_mul_f32 v{al}, v{al}, v{dt}
    v_mul_f32 v{al}, {f32(-LOG2E)}, v{al}
    v_lshlrev_b32 v{a}, 16, v{PR+1}
    v_mul_f32 v{a}, v{a}, v{dt}
    v_cndmask_b32 v{a}, v{a}, -v{a}, s[{sM0}:{sM0+1}]
    v_mul_f32 v{bh}, {f32(I2P_HI)}, v{a}
    v_fma_f32 v{bl}, v{a}, s{sT5}, -v{bh}
    v_fmac_f32 v{bl}, {f32(I2P_LO)}, v{a}
    ''')
    for (S, p) in ((s1,p1),(s2,p2)):
        e(f'''
        v_mul_f32 v{a}, v{al}, v{p}
        v_mul_f32 v{b}, v{bh}, v{p}
        v_exp_f32 v{ee}, v{a}
        v_fract_f32 v{b}, v{b}
        v_fmac_f32 v{b}, v{bl}, v{p}
        v_cos_f32 v{c}, v{b}
        v_sin_f32 v{d}, v{b}
        v_mul_f32 v{S}, v{ee}, v{c}
        v_mul_f32 v{S+1}, v{ee}, v{d}
        ''')
    e(f'''
    v_lshlrev_b32 v{a}, 16, v{PR+2}
    v_lshlrev_b32 v{b}, 16, v{PR+3}
    v_mul_f32 v{a}, s{sSCI}, v{a}
    v_mul_f32 v{b}, s{sSCI}, v{b}
    v_cndmask_b32 v{R}, 1.0, v{a}, s[{sM0}:{sM0+1}]
    v_cndmask_b32 v{R+1}, 0, -v{b}, s[{sM0}:{sM0+1}]
    ''')
    cmul(tt, s1, s1)
    cmul(R+2, R, s1)
    cmul(mu, s2, s2)
    cmul(R+4, R, tt)
    cmul(R+6, R+2, tt)
    cmul(64, tt, tt)
    e(f'''
    v_cndmask_b32 v{mu}, v{s1}, v{mu}, s[{sM0}:{sM0+1}]
    v_cndmask_b32 v{mu+1}, v{s1+1}, v{mu+1}, s[{sM0}:{sM0+1}]
    ''')
    for i in range(4): cmul(R+8+2*i, R+2*i, 64)
    def flush(rnd):
        for i in range(4): e(f'v_cvt_pk_f16_f32 v{pk+i}, v{R+4*i}, v{R+4*i+2}')
        e(f'ds_write_b128 v{wa+(rnd&1)}, {v(pk,4)} offset:{512*(rnd&1)}')
        for i in range(4): e(f'v_cvt_pk_f16_f32 v{pk+4+i}, v{R+4*i+1}, v{R+4*i+3}')
        e(f'ds_write_b128 v{wa+(rnd&1)}, {v(pk+4,4)} offset:{512*(rnd&1)+1024}')
        if rnd & 1:
            rho = rnd >> 1
            for (F, part) in ((FB,0),(FA,1)):
                for s_ in range(2):
                    e(f'ds_read_b64_tr_b16 {v(F+8*rho+4*s_,2)}, v{ra} offset:{part*2048+s_*256}')
                    e(f'ds_read_b64_tr_b16 {v(F+8*rho+4*s_+2,2)}, v{ra} offset:{part*2048+s_*256+1024}')
    flush(0)
    cmul_inplace(list(range(8)), s2)
    flush(1)
    for rnd in (2,3):
        cmul_inplace([0,4,5], s2)
        cmul(R+2, R, mu)
        cmul_inplace([6,7], s2)
        cmul(R+4, R+2, mu)
        cmul(R+6, R+4, mu)
        flush(rnd)
    e(f'''
    v_add_f32 v{dt}, v{dt}, v{dt}
    v_mul_f32 v{dt}, s{sSC}, v{dt}
    s_lshl_b32 s{sT0}, s{sHD}, 2
    v_add_u32 v{d}, s{sT0}, v{vC}
    s_mul_i32 s{sT0}, s{sHD}, {GW}
    s_add_u32 s{sT0}, s{sT0}, {PB+16}
    v_and_b32 v{a}, 1, v{vG4}
    v_lshrrev_b32 v{c}, 1, v{vG4}
    v_lshlrev_b32 v40, 5, v{vM15}
    v_lshl_add_u32 v40, v{a}, 4, v40           ; n*32 + (g&1)*16
    v_lshrrev_b32 v41, 1, v40
    v_add_u32 v41, 1024, v41
    v_cndmask_b32 v40, v40, v41, s[{sM0}:{sM0+1}]
    v_add_u32 v40, s{sT0}, v40
    v_lshlrev_b32 v41, 3, v{vM15}
    v_lshl_add_u32 v41, v{a}, 2, v41
    v_lshl_add_u32 v41, v{c}, 8, v41
    v_add_u32 v41, s{sT0}, v41
    v_lshlrev_b32 v42, 2, v{vM15}
    v_lshl_add_u32 v42, v{c}, 7, v42
    v_add_u32 v42, s{sT0}, v42
    v_subrev_u32 v{c}, 4, v42
    v_mov_b32 v{a}, 0
    ''')
    signal(C_TAB)
    e('s_waitcnt lgkmcnt(1)')
    A1=40; A3=41; A4=42
    for s_ in range(2):
        for ra_ in range(2):
            for rb_ in range(2):
                D = vG + 8*ra_ + 4*rb_
                e(f'v_mfma_f32_16x16x32_f16 {v(D,4)}, {v(FA+8*ra_+4*s_,4)}, {v(FB+8*rb_+4*s_,4)}, {"0" if s_==0 else v(D,4)}')
    for r in range(15): e(f'v_mul_f32 v{vG+r}, v{vG+r}, v{dt}')
    e(f'''
    @stamp m_kg1
    s_cmp_eq_u32 s{sRT}, 1
    s_cbranch_scc1 L_kgw
    ''')
    wait(C_GH, 1, addr=d, sleep=1)
    H=FA
    e(f'''
    s_mov_b32 exec_hi, 0
    ds_read_b128 {v(H,4)}, v{A1}
    ds_read_b128 {v(H+4,4)}, v{A1} offset:512
    s_mov_b64 exec, s[{sM0}:{sM0+1}]
    ds_read_b32 v{H}, v{A1}
    ds_read_b32 v{H+2}, v{A1} offset:4
    ds_read_b32 v{H+4}, v{A1} offset:256
    ds_read_b32 v{H+6}, v{A1} offset:260
    s_mov_b64 exec, -1
    ds_read_b32 v{H+8}, v{A3} offset:1536
    ds_read_b32 v{H+12}, v{A3} offset:{1536+128}
    ds_read_b32 v{H+9}, v{A4} offset:2048
    ds_read_b32 v{H+13}, v{A4} offset:{2048+64}
    ds_read_b32 v{H+10}, v{A4} offset:{2048+256}
    ds_read_b32 v{H+14}, v{A4} offset:{2048+256+64}
    ds_read_b32 v{H+11}, v{A4} offset:{2048+512}
    s_waitcnt lgkmcnt(0)
    ''')
    for r in range(15): e(f'v_add_f32 v{vG+r}, v{vG+r}, v{H+r}')
    e(f'''
    L_kgw:
    ds_write_b32 v{A3}, v{vG+8} offset:1536
    ds_write_b32 v{A3}, v{vG+12} offset:{1536+128}
    s_mov_b32 exec_hi, 0
    ds_write_b128 v{A1}, {v(vG,4)}
    ds_write_b128 v{A1}, {v(vG+4,4)} offset:512
    s_mov_b64 exec, s[{sM0}:{sM0+1}]
    ds_write2_b32 v{A1}, v{vG}, v{vG+2} offset0:0 offset1:1
    ds_write2_b32 v{A1}, v{vG+4}, v{vG+6} offset0:64 offset1:65
    s_mov_b32 exec_lo, 0xffff
    s_mov_b32 exec_hi, 0xffff
    ds_write_b32 v{A4}, v{vG+9} offset:2048
    ds_write_b32 v{A4}, v{vG+13} offset:{2048+64}
    ds_write_b32 v{A4}, v{vG+10} offset:{2048+256}
    ds_write_b32 v{A4}, v{vG+14} offset:{2048+256+64}
    s_mov_b64 exec, 1
    ds_write_b32 v{A4}, v{vG+11} offset:{2048+512}
    ds_write_b32 v{c}, v{a}
    ds_add_u32 v{d}, v{vOne} offset:{4*C_GH}
    s_mov_b64 exec, -1
    ''')
    e('@stamp m_kgen')
    xa=146; wadr=150; acc=152; QX=16; QW=48
    e(f'''
    L_q:
    s_mul_i32 s{sT0}, s{sRT}, {XH-XFL}
    s_add_u32 s{sT0}, s{sT0}, {XFL}
    v_lshlrev_b32 v{a}, 10, v{vM15}
    v_xor_b32 v{b}, v{vG4}, v{vM15}
    v_lshl_add_u32 v{a}, v{b}, 4, v{a}
    v_add_u32 v{xa}, s{sT0}, v{a}
    v_xor_b32 v{xa+1}, 64, v{xa}
    v_xor_b32 v{xa+2}, 0x80, v{xa}
    v_xor_b32 v{xa+3}, 0xc0, v{xa}
    v_bfe_u32 v{a}, v{vL}, 2, 2                ; r
    v_lshrrev_b32 v{b}, 1, v{a}
    v_and_b32 v{c}, 1, v{vG4}
    v_lshl_add_u32 v{b}, v{c}, 1, v{b}         ; swz
    v_xor_b32 v{b}, s{sHD}, v{b}
    v_lshl_add_u32 v{a}, v{vG4}, 3, v{a}       ; 8g + r
    v_lshlrev_b32 v{a}, 7, v{a}
    v_lshl_add_u32 v{a}, v{b}, 5, v{a}
    v_and_b32 v{b}, 3, v{vL}
    v_lshl_add_u32 v{a}, v{b}, 3, v{a}
    v_add_u32 v{wadr}, {WQ}, v{a}
    ''')
    def qchunk(ck):
        def rd(s):
            S = 8*ck + s
            e(f'ds_read_b64_tr_b16 {v(QW+4*(s&3),2)}, v{wadr} offset:{S*4096}')
            e(f'ds_read_b64_tr_b16 {v(QW+4*(s&3)+2,2)}, v{wadr} offset:{S*4096+512}')
            e(f'ds_read_b128 {v(QX+8*(s&3),4)}, v{xa+(s&3)} offset:{(S>>2)*256}')
            e(f'ds_read_b128 {v(QX+8*(s&3)+4,4)}, v{xa+(s&3)} offset:{(S>>2)*256+16384}')
        for s in range(3): rd(s)
        for s in range(8):
            if s+3 < 8:
                rd(s+3); e('s_waitcnt lgkmcnt(12)')
            else:
                x = 0
                if ck == 1:
                    x = 2
                    if s == 5:
                        signal(C_QA); signal(C_QH, addr=d)
                e(f's_waitcnt lgkmcnt({4*(7-s)+x})')
            z = ck == 0 and s == 0
            e(f'v_mfma_f32_16x16x32_bf16 {v(acc,4)}, {v(QW+4*(s&3),4)}, {v(QX+8*(s&3),4)}, {"0" if z else v(acc,4)}')
            e(f'v_mfma_f32_16x16x32_bf16 {v(acc+4,4)}, {v(QW+4*(s&3),4)}, {v(QX+8*(s&3)+4,4)}, {"0" if z else v(acc+4,4)}')
    e(f'''
    s_xor_b32 s{sT0}, s{sRT}, 1
    s_mul_i32 s{sT0}, s{sT0}, {4*(40-C_QH)}
    v_add_u32 v{d}, s{sT0}, v{vC}
    s_cmp_eq_u32 s{sRT}, 1
    s_cbranch_scc1 L_qh
    ''')
    wait(C_T2, 1)
    wait(C_QH, 6)
    e('s_setprio 3')
    e('L_qh:')
    wait(C_T0, 3, sleep=1)
    e('@stamp m_t0')
    qchunk(0)
    e('@stamp m_q0')
    wait(C_T1, 1, sleep=1)
    e('@stamp m_t1')
    qchunk(1)
    e(f'''
    s_mov_b32 s{sT0}, {f32(0.25*LOG2E)}
    s_mov_b32 s{sFB}, 0
    s_mov_b32 s{sM0}, 0xffff
    s_mov_b32 s{sM0+1}, 0xffff
    s_xor_b32 s{sRT}, s{sRT}, s{sKAP}
    s_xor_b32 s{sRT}, s{sRT}, 1
    s_lshl_b32 s{sT1}, s{sRB}, 1
    s_add_u32 s{sT1}, s{sT1}, s{sRT}
    s_lshl_b32 s{sT1}, s{sT1}, 5
    s_lshl_b32 s{sT2}, s{sCB}, 2
    s_add_u32 s{sT1}, s{sT1}, s{sT2}
    s_add_u32 s{sT1}, s{sT1}, s{sHD}
    s_lshl_b32 s{sT1}, s{sT1}, 10
    s_add_u32 s{sOB}, s{sT1}, {WS_O}
    ''')
    for r in range(8): e(f'v_mul_f32 v{acc+r}, s{sT0}, v{acc+r}')
    e(f'''
    v_cvt_pk_bf16_f32 v{vQ}, v{acc}, v{acc+1}
    v_cvt_pk_bf16_f32 v{vQ+1}, v{acc+2}, v{acc+3}
    v_cvt_pk_bf16_f32 v{vQ+2}, v{acc+4}, v{acc+5}
    v_cvt_pk_bf16_f32 v{vQ+3}, v{acc+6}, v{acc+7}
    v_permlane16_swap_b32 v{vQ}, v{vQ+2}
    v_permlane16_swap_b32 v{vQ+1}, v{vQ+3}
    ''')
    e('@stamp m_q1')
    wait(C_KV, 1, sleep=1)
    e(f'''
    @stamp m_att0
    s_setprio 1
    s_cmp_lt_u32 s{sM}, 4
    s_cbranch_scc1 L_pr
    s_setprio 3
    L_pr:
    s_mov_b32 s{sCNT}, 0
    v_mov_b32 v{ad}, v{vL16}
    v_add_u32 v{kvf}, {4*(C_KV+1)}, v{vC}
    ds_read_b128 {v(KF+8,4)}, v{ad}
    ds_read_b128 {v(KF,4)}, v{ad} offset:2048
    ds_read_b128 {v(KF+4,4)}, v{ad} offset:4096
    s_mov_b64 exec, s[{sM0}:{sM0+1}]
    ds_read_b128 {v(VF,4)}, v{ad} offset:1024
    ds_read_b128 {v(VF+4,4)}, v{ad} offset:1280
    ds_read_b128 {v(VF+8,4)}, v{ad} offset:3072
    ds_read_b128 {v(VF+12,4)}, v{ad} offset:3328
    s_mov_b64 exec, -1
    s_cmp_lg_u32 s{sFB}, 0
    s_waitcnt lgkmcnt(6)
    s_cbranch_scc1 L_setm
    v_mfma_f32_32x32x16_bf16 {v(S0,16)}, {v(KF+8,4)}, {v(vQ,4)}, 0
    v_max3_f32 v{mx}, v{S0}, v{S0+1}, v{S0+2}
    ''')
    for i in range(3,15,2): e(f'v_max3_f32 v{mx}, v{mx}, v{S0+i}, v{S0+i+1}')
    e(f'''
    v_max_f32 v{mx}, v{mx}, v{S0+15}
    L_setm:
    v_mov_b32 v{a}, v{mx}
    v_permlane32_swap_b32 v{a}, v{mx}
    v_max_f32 v{mx}, v{mx}, v{a}
    ''')
    for i in range(16): e(f'v_sub_f32 v{NM+i}, 0, v{mx}')
    e(f'''
    v_mfma_f32_32x32x16_bf16 {v(S0,16)}, {v(KF+8,4)}, {v(vQ,4)}, {v(NM,16)}
    s_nop 9
    .p2align 6
    L_loop:
    ''')
    def step(tt):
        par = tt & 1; pr = tt >> 1; st = pr & 1
        Sc = S0 if par == 0 else S1
        Sn = S1 if par == 0 else S0
        Kn = KF + 8*st + 4*par
        Vc = VF + 16*st + 8*par
        Vp = (VF + 16*st + 4) if par == 1 else (VF + 16*(1-st) + 12)
        ex = lambda i: e(f'v_exp_f32 v{Sc+i}, v{Sc+i}')
        cv = lambda i: e(f'v_cvt_pk_bf16_f32 v{P+i}, v{Sc+2*i}, v{Sc+2*i+1}')
        if par == 0: e('s_waitcnt lgkmcnt(0)')
        e(f'v_mfma_f32_32x32x16_bf16 {v(Sn,16)}, {v(Kn,4)}, {v(vQ,4)}, {v(NM,16)}')
        ex(0); ex(1); ex(2); ex(3)
        e(f'v_mfma_f32_32x32x16_bf16 {v(O,16)}, {v(Vp,4)}, {v(P+4,4)}, {v(O,16)}')
        if tt == 4:
            e(f's_cmp_lg_u32 s{sWT}, 1')
            e(f's_cbranch_scc1 L_chk')
            e(f'L_chk_ret:')
        if par == 0:
            o = 1-st
            e(f'ds_read_b128 {v(KF+8*o,4)}, v{ad} offset:{(tt+3)*2048}')
            e(f'ds_read_b128 {v(KF+8*o+4,4)}, v{ad} offset:{(tt+4)*2048}')
            e(f's_mov_b64 exec, s[{sM0}:{sM0+1}]')
            e(f'ds_read_b128 {v(VF+16*o,4)}, v{ad} offset:{(tt+2)*2048+1024}')
            e(f'ds_read_b128 {v(VF+16*o+4,4)}, v{ad} offset:{(tt+2)*2048+1280}')
            e(f'ds_read_b128 {v(VF+16*o+8,4)}, v{ad} offset:{(tt+3)*2048+1024}')
            e(f'ds_read_b128 {v(VF+16*o+12,4)}, v{ad} offset:{(tt+3)*2048+1280}')
            e(f's_mov_b64 exec, -1')
            if tt == 0: e(f'ds_read_b32 v{fl}, v{kvf}')
        if tt == 3: e(f'v_readfirstlane_b32 s{sWT}, v{fl}')
        cv(0); ex(4); ex(5); cv(1); ex(6); ex(7); cv(2); ex(8); cv(3); ex(9); ex(10)
        e(f'v_mfma_f32_32x32x16_bf16 {v(O,16)}, {v(Vc,4)}, {v(P,4)}, {v(O,16)}')
        ex(11); cv(4); ex(12); ex(13); cv(5); ex(14); ex(15); cv(6); cv(7)
    for tt in range(8): step(tt)
    e(f'''
    v_add_u32 v{ad}, 0x4000, v{ad}
    v_add_u32 v{kvf}, 4, v{kvf}
    ''')
    if DIAG:
        e(f'''
        s_memtime s[94:95]
        s_add_u32 s{sT5}, s{sCNT}, 48
        s_waitcnt lgkmcnt(0)
        s_mov_b32 m0, s{sT5}
        v_writelane_b32 v167, s94, m0
        ''')
    e(f'''
    s_add_u32 s{sCNT}, s{sCNT}, 1
    s_cmp_lt_u32 s{sCNT}, 8
    s_cbranch_scc1 L_loop
    v_mfma_f32_32x32x16_bf16 {v(O,16)}, {v(VF+28,4)}, {v(P+4,4)}, {v(O,16)}
    s_mov_b32 s{sT0}, {f32(2.0**40)}
    s_waitcnt vmcnt(0) lgkmcnt(0)
    s_nop 9
    v_rcp_f32 v{S0}, v{O+8}
    v_cmp_nlt_f32 vcc, v{O+8}, s{sT0}
    v_mul_f32 v{S0}, v{S0}, v146
    ''')
    for i in range(8): e(f'v_mul_f32 v{O+i}, v{O+i}, v{S0}')
    e(f'''
    v_add_f32 v{S0+2}, v{O+3}, v{O+4}
    v_add_f32 v{S0+3}, v{O+5}, v{O+6}
    v_add_f32 v{S0+2}, v{S0+2}, v{O+7}
    v_add_f32 v{S0+3}, v{S0+3}, v{O}
    v_add_f32 v{S0+2}, v{S0+2}, v{O+1}
    v_add_f32 v{S0+3}, v{S0+3}, v{O+2}
    v_add_f32 v{S0+2}, v{S0+2}, v{S0+3}
    v_mov_b32 v{S0+4}, 0x207
    v_cmp_class_f32 s[{sM1}:{sM1+1}], v{S0+2}, v{S0+4}
    s_or_b64 vcc, vcc, s[{sM1}:{sM1+1}]
    s_cbranch_vccz L_att_ok
    s_cmp_lg_u32 s{sFB}, 0
    s_cbranch_scc1 L_att_ok
    s_mov_b32 s{sFB}, 1
    v_mov_b32 v{ad}, v{vL16}
    v_mov_b32 v{mx}, 0xff7fffff
    s_mov_b32 s{sCNT}, 0
    L_maxloop:
    ds_read_b128 {v(KF,4)}, v{ad}
    v_add_u32 v{ad}, 2048, v{ad}
    s_waitcnt lgkmcnt(0)
    v_mfma_f32_32x32x16_bf16 {v(S0,16)}, {v(KF,4)}, {v(vQ,4)}, 0
    ''')
    for i in range(0,16,2): e(f'v_max3_f32 v{mx}, v{mx}, v{S0+i}, v{S0+i+1}')
    e(f'''
    s_add_u32 s{sCNT}, s{sCNT}, 1
    s_cmp_lt_u32 s{sCNT}, 64
    s_cbranch_scc1 L_maxloop
    ''')
    for i in range(16): e(f'v_mov_b32 v{O+i}, 0')
    for i in range(4): e(f'v_mov_b32 v{P+4+i}, 0')
    e('s_branch L_pr')
    e('L_chk:')
    wait(0, 1, addr=kvf, sleep=1)
    e(f'''
    s_cmp_lt_u32 s{sWT}, 2
    s_cbranch_scc1 L_chk_ret
    s_lshl_b32 s{sT0}, s{sRB}, 8
    s_lshl_b32 s{sT1}, s{sRT}, 7
    s_add_u32 s{sT0}, s{sT0}, s{sT1}
    s_add_u32 s{sT0}, s{sT0}, {WS_G}
    v_and_b32 v{a}, 31, v{vL}
    v_lshlrev_b32 v{a}, 2, v{a}
    buffer_load_dword v146, v{a}, {srd(S_WS)}, s{sT0} offen sc1
    ds_read_b32 v147, v{vC} offset:{4*C_KVOK}
    ''')
    wait(C_ST, 1, sleep=4)
    e(f'''
    v_readfirstlane_b32 s{sSC}, v147
    s_setprio 0
    s_branch L_chk_ret
    L_att_ok:
    @stamp m_att1
    ''')
    e(f's_mov_b32 s{sT0}, 0xfffffffe')
    for i in range(4):
        e(f'v_cvt_pk_bf16_f32 v{P+i}, v{O+2*i}, v{O+2*i+1}')
        e(f'v_min_u32 v{P+i}, s{sT0}, v{P+i}')
    e(f'''
    s_cmp_eq_u32 s{sSC}, 1
    s_cbranch_scc1 L_oloc
    buffer_store_dwordx4 {v(P,4)}, v{vL16}, {srd(S_WS)}, s{sOB} offen sc1
    s_branch L_ost
    L_oloc:
    buffer_store_dwordx4 {v(P,4)}, v{vL16}, {srd(S_WS)}, s{sOB} offen
    L_ost:
    ''')
    e(f'''
    s_lshl_b32 s{sT0}, s{sRB}, 1
    s_and_b32 s{sT1}, s{sCB}, 1
    s_add_u32 s{sT0}, s{sT0}, s{sT1}
    s_lshl_b32 s{sT0}, s{sT0}, 15
    s_lshl_b32 s{sT1}, s{sM}, 12
    s_add_u32 s{sT0}, s{sT0}, s{sT1}
    s_add_u32 s{sT0}, s{sT0}, {WS_O}
    v_add_u32 v{a}, s{sT1}, v{vL16}
    s_lshl_b32 s{sT1}, s{sM}, 2
    v_add_u32 v{b}, s{sT1}, v{vC}
    ''')
    e('s_barrier')
    e('@stamp m_all')
    e('L_opoll:')
    for i in range(4):
        e(f'buffer_load_dwordx4 {v(S0+4*i,4)}, v{vL16}, {srd(S_WS)}, s{sT0} offen offset:{i*1024} sc1')
    e(f's_waitcnt vmcnt(0)')
    e(f'v_max3_u32 v{c}, v{S0}, v{S0+1}, v{S0+2}')
    for i in range(3,15,2): e(f'v_max3_u32 v{c}, v{c}, v{S0+i}, v{S0+i+1}')
    e(f'''
    v_max_u32 v{c}, v{c}, v{S0+15}
    v_cmp_eq_u32 vcc, -1, v{c}
    s_cbranch_vccz L_ook
    s_sub_u32 s{sTO}, s{sTO}, 16
    s_cbranch_scc0 L_opoll
    s_mov_b32 s{sTO}, 0
    L_ook:
    ''')
    for i in range(4):
        e(f'ds_write_b128 v{a}, {v(S0+4*i,4)} offset:{i*1024}')
    e('s_waitcnt lgkmcnt(0)')
    e('s_barrier')
    e('@stamp m_end')
    if e.probe:
        e(f'''
        s_cmp_lt_u32 s{sM}, 4
        s_cbranch_scc1 L_end
        s_memrealtime s[60:61]
        s_waitcnt lgkmcnt(0)
        s_mul_i32 s63, s63, {PK}
        s_min_u32 s63, s63, 20000
        s_mov_b32 s62, s60
        L_probe:
        s_memrealtime s[60:61]
        s_waitcnt lgkmcnt(0)
        s_sub_u32 s60, s60, s62
        s_cmp_lt_u32 s60, s63
        s_cbranch_scc1 L_probe
        ''')
    finish()
    e('''
    L_end:
    s_endpgm
    ''')
    return e.text()

HEAD = open('cdna_kernels/%s.s.ref' % NAME).read().split('; Override launch geometry')[0]
def full():
    body = gen()
    s = HEAD
    s += f'; @launch grid=(256,1,1) block=(768,1,1) lds={LDS_BYTES}\n'
    s += f'''.amdgcn_target "amdgcn-amd-amdhsa--gfx950"
.text
.globl {NAME}_kernel
.p2align 8
.type {NAME}_kernel,@function
{NAME}_kernel:
{body}
.section .rodata,"a"
.p2align 6
.amdhsa_kernel {NAME}_kernel
  .amdhsa_next_free_vgpr 168
  .amdhsa_next_free_sgpr 102
  .amdhsa_accum_offset 168
  .amdhsa_group_segment_fixed_size 0
  .amdhsa_kernarg_size 128
  .amdhsa_user_sgpr_count 2
  .amdhsa_user_sgpr_kernarg_segment_ptr 1
  .amdhsa_system_sgpr_workgroup_id_x 1
.end_amdhsa_kernel
'''
    return s
if __name__ == '__main__':
    if len(sys.argv) > 1 and sys.argv[1].startswith('diag'):
        DIAG = 1
        open('dev/%s.s' % sys.argv[1], 'w').write(full())
        import json; json.dump(gen.e.stamps, open('diag.json','w'))
    else:
        out = sys.argv[1] if len(sys.argv) > 1 else f'cdna_kernels/{NAME}.s'
        open(out, 'w').write(full())
```

```python
import sys, struct, math
from asmlib import Asm

NAME = 'gated_mix__grouped_kv_mqa__ssm_conv_s4d__prompt'
def f32(x): return '0x%08x' % struct.unpack('<I', struct.pack('<f', x))[0]
def f32v(x): return struct.unpack('<f', struct.pack('<f', x))[0]

WS_KV = 0x0
WS_G  = 0x20000
FST = 0x1100
WS_F1 = 0x30000
WS_F2 = 0x40000
WS_GEN = 0x50000
LDELTA = 0x80000
WS_O  = 0x100000
WS_B  = 0x400000
WS_XT = 0x600000
WS_DIAG = 0x800000
WS_SIZE = 0x900000
POOL = 131072
PA = 0; XH = 0x4000; XFL = 0xC000; WQ = 0x14000
KREV = POOL; KREV_CH = 8320; KREV_O = 4160
PB = POOL + 16640; GW = 2592
XC = PB; XC_CH = 4608
PC = POOL + 31488
PG = PC + 256
LDS_BYTES = 163840
C_ISS,C_T0,C_T1,C_QH,C_QA,C_TAB,C_T2,C_KREV,C_ST,C_KVOK,C_KISS = range(11)
C_XT=11; C_CR=13; C_CW=15; C_CONV=17; C_GH=18; C_KV=24

P_X=4; P_WQ=6; P_WK=8; P_WV=10; P_WO=12; P_LAR=16; P_AIM=18; P_CR=20; P_CI=22; P_LDT=24; P_DSK=26; P_GATE=28; P_OUT=30; P_DBG=32; P_WS=34
S_X=36; S_WQ=40; S_WKV=44; S_WS=48; S_OUT=52; S_GATE=56; S_DBG=60; S_WO=64
sW=68; sRB=69; sCB=70; sD0=71; sLDT=72; sDSK=73; sT0=74; sT1=75; sT2=76; sT3=77; sRT=78; sHD=79; sM=80; sCNT=81; sFB=82; sTO=83
sM0=84; sM1=86
sOB=88; sT4=89; sT5=90; sSC=91; sSCI=92; sWT=93
sCH=96; sHF=97; sKAP=98; sNON=99; sPOS=100; sXCD=101

def srd(n): return f's[{n}:{n+3}]'
def sp(n): return f's[{n}:{n+1}]'
def v(n, k=1): return f'v{n}' if k == 1 else f'v[{n}:{n+k-1}]'

LOG2E = 1.4426950408889634
L2E_HI = f32v(LOG2E); L2E_LO = LOG2E - L2E_HI
INV2PI = 1.0/(2*math.pi); I2P_HI = f32v(INV2PI); I2P_LO = INV2PI - I2P_HI

DIAG = False
def gen():
    e = Asm(DIAG)
    gen.e = e
    import os
    e.probe = os.environ.get('PROBE')
    PK = int(os.environ.get('PK','4'))
    vL=1; vL16=2; vC=3; vOne=166; vWT=165
    uid = [0]
    def wait(c, target, addr=vC, sleep=1):
        uid[0] += 1; u = uid[0]
        e(f'''
        L_wt{u}:
        ds_read_b32 v{vWT}, v{addr} offset:{4*c}
        s_waitcnt lgkmcnt(0)
        v_readfirstlane_b32 s{sWT}, v{vWT}
        s_cmp_ge_u32 s{sWT}, {target}
        s_cbranch_scc1 L_wd{u}
        s_sleep {sleep}
        s_sub_u32 s{sTO}, s{sTO}, 1
        s_cbranch_scc0 L_wt{u}
        s_mov_b32 s{sTO}, 0
        L_wd{u}:
        ''')
    def signal(c, addr=vC):
        e(f'''
        s_mov_b64 exec, 1
        ds_add_u32 v{addr}, v{vOne} offset:{4*c}
        s_mov_b64 exec, -1
        ''')
    def mk(S, P, nbytes):
        e(f'''
        s_mov_b32 s{S}, s{P}
        s_and_b32 s{S+1}, s{P+1}, 0xffff
        s_mov_b32 s{S+2}, {nbytes}
        s_mov_b32 s{S+3}, 0x00020000
        ''')
    def finish():
        if DIAG == 1:
            e(f'''
            @rt 63
            s_getreg_b32 s94, hwreg(HW_REG_XCC_ID)
            v_writelane_b32 v167, s94, 62
            v_writelane_b32 v167, s{sTO}, 61
            s_mul_i32 s{sT0}, s2, 3072
            s_lshl_b32 s{sT1}, s{sW}, 8
            s_add_u32 s{sT0}, s{sT0}, s{sT1}
            s_add_u32 s{sT0}, s{sT0}, {WS_DIAG}
            v_lshlrev_b32 v{vWT}, 2, v{vL}
            buffer_store_dword v167, v{vWT}, {srd(S_WS)}, s{sT0} offen
            ''')
        e('s_endpgm')
    vM15=4; vG4=5; a=6; b=7; c=8; d=9
    e(f'''
    s_cmp_ge_u32 s2, 256
    s_cbranch_scc1 L_end
    s_load_dwordx16 s[4:19], s[0:1], 0
    s_load_dwordx16 s[20:35], s[0:1], 64
    @stamp start
    @rt 60
    v_and_b32 v{vL}, 63, v0
    v_lshrrev_b32 v{a}, 6, v0
    v_lshlrev_b32 v{vL16}, 4, v{vL}
    v_readfirstlane_b32 s{sW}, v{a}
    v_mov_b32 v{vC}, {PC}
    v_lshl_add_u32 v{a}, v{vL}, 2, v{vC}
    v_mov_b32 v{b}, 0
    ds_write_b32 v{a}, v{b}
    v_mov_b32 v{vOne}, 1
    s_mov_b32 s{sTO}, 0x100000
    s_and_b32 s{sT0}, s2, 7
    s_lshr_b32 s{sT1}, s2, 3
    s_lshr_b32 s{sT2}, s{sT1}, 3
    s_lshl_b32 s{sRB}, s{sT0}, 2
    s_add_u32 s{sRB}, s{sRB}, s{sT2}
    s_and_b32 s{sCB}, s{sT1}, 7
    s_lshl_b32 s{sD0}, s{sT0}, 6
    s_lshl_b32 s{sT1}, s{sT1}, 1
    s_add_u32 s{sD0}, s{sD0}, s{sT1}
    s_lshr_b32 s{sKAP}, s{sCB}, 2
    s_mov_b32 s{sXCD}, s{sT0}
    v_and_b32 v{vM15}, 15, v{vL}
    v_lshrrev_b32 v{vG4}, 4, v{vL}
    s_bfe_u32 s{sT0}, s{sW}, 0x10001
    s_add_u32 s{sT0}, s{sD0}, s{sT0}
    s_lshl_b32 s{sT0}, s{sT0}, 8
    s_and_b32 s{sT1}, s{sW}, 1
    s_lshl_b32 s{sT1}, s{sT1}, 6
    s_add_u32 s{sT0}, s{sT0}, s{sT1}
    s_lshr_b32 s{sT1}, s{sW}, 3
    s_lshl_b32 s{sT1}, s{sT1}, 7
    s_add_u32 s{sT0}, s{sT0}, s{sT1}
    v_and_b32 v{a}, 31, v{vL}
    v_lshlrev_b32 v{a}, 1, v{a}
    v_add_u32 v{a}, s{sT0}, v{a}
    s_cmp_lt_u32 s{sW}, 4
    s_waitcnt lgkmcnt(0)
    s_cbranch_scc1 L_nopar
    global_load_ushort v14, v{a}, {sp(P_LAR)}
    global_load_ushort v15, v{a}, {sp(P_AIM)}
    global_load_ushort v16, v{a}, {sp(P_CR)}
    global_load_ushort v17, v{a}, {sp(P_CI)}
    L_nopar:
    s_barrier
    ''')
    mk(S_X, P_X, 2097152)
    mk(S_WS, P_WS, WS_SIZE)
    mk(S_WQ, P_WQ, 524288)
    mk(S_GATE, P_GATE, 1024)
    e(f'''
    s_bitcmp1_b32 s{sCB}, 0
    s_cselect_b32 s{S_WKV}, s{P_WV}, s{P_WK}
    s_cselect_b32 s{S_WKV+1}, s{P_WV+1}, s{P_WK+1}
    s_and_b32 s{S_WKV+1}, s{S_WKV+1}, 0xffff
    s_mov_b32 s{S_WKV+2}, 16384
    s_mov_b32 s{S_WKV+3}, 0x00020000
    s_lshl_b32 s{sT4}, s{sD0}, 1
    s_load_dword s{sLDT}, {sp(P_LDT)}, s{sT4}
    s_load_dword s{sDSK}, {sp(P_DSK)}, s{sT4}
    s_cmp_ge_u32 s{sW}, 4
    s_cbranch_scc1 L_main
    s_setprio 3
    v_mov_b32 v11, {WS_GEN}
    buffer_load_dword v164, v11, {srd(S_WS)}, 0 offen sc1
    s_cmp_eq_u32 s{sW}, 1
    s_cbranch_scc1 L_h1
    s_cmp_ge_u32 s{sW}, 2
    s_cbranch_scc1 L_h23
    ''')
    XF=16; WF=80; GF=112; dk=144; dg=148; xk=152
    def xrows(lbl, n):
        e(f's_mov_b32 s{sCNT}, 0')
        e(f'L_xp{lbl}:')
        for j in range(16):
            e(f'''
            s_mov_b32 m0, s{sT1}
            v_xor_b32 v{a}, {16*j}, v{vL16}
            buffer_load_dwordx4 v{a}, {srd(S_X)}, s{sT0} offen lds
            s_add_u32 s{sT1}, s{sT1}, 1024
            s_add_u32 s{sT0}, s{sT0}, 1024
            ''')
        if n > 16:
            e(f'''
            s_add_u32 s{sCNT}, s{sCNT}, 1
            s_cmp_lt_u32 s{sCNT}, 2
            s_cbranch_scc1 L_xp{lbl}
            ''')
    e(f'''
    s_lshl_b32 s{sT0}, s{sRB}, 16
    s_lshr_b32 s{sT1}, s{sCB}, 1
    s_lshl_b32 s{sT1}, s{sT1}, 14
    s_add_u32 s{sT0}, s{sT0}, s{sT1}          ; row0*1024
    s_and_b32 s{sT1}, s{sT1}, 0x4000
    s_add_u32 s{sT1}, s{sT1}, {XH}
    v_lshlrev_b32 v{xk}, 10, v{vM15}
    v_xor_b32 v{b}, v{vG4}, v{vM15}
    v_lshl_add_u32 v{xk}, v{b}, 4, v{xk}
    v_add_u32 v{xk}, s{sT1}, v{xk}
    ''')
    xrows('k', 16)
    e(f'''
    s_mov_b32 m0, {PG}
    s_mov_b32 s{sT1}, 0
    buffer_load_dwordx4 v{vL16}, {srd(S_GATE)}, 0 offen lds
    v_xor_b32 v{xk+1}, 64, v{xk}
    v_xor_b32 v{xk+2}, 0x80, v{xk}
    v_xor_b32 v{xk+3}, 0xc0, v{xk}
    ''')
    for s4 in range(4):
        e(f's_mov_b32 m0, {PA + s4*4096}')
        for i in range(4):
            e(f'buffer_load_dwordx4 v{vL16}, {srd(S_WKV)}, s{sT1} offen offset:{i*1024} lds')
        e(f's_add_u32 s{sT1}, s{sT1}, 4096')
    e(f'''
    @stamp h_issued
    v_lshlrev_b32 v{a}, 8, v{vG4}
    v_lshl_add_u32 v{a}, v{vM15}, 3, v{a}
    v_add_u32 v{a}, {PA}, v{a}                ; PA + g*256 + (l&15)*8
    v_lshlrev_b32 v{b}, 4, v{vG4}
    v_add_u32 v{b}, {PG}, v{b}
    s_lshl_b32 s{sT0}, s{sRB}, 2
    s_lshr_b32 s{sT1}, s{sCB}, 1
    s_add_u32 s{sT0}, s{sT0}, s{sT1}          ; kb
    s_lshr_b32 s{sT1}, s{sT0}, 1
    s_lshl_b32 s{sT1}, s{sT1}, 11
    s_and_b32 s{sT2}, s{sT0}, 1
    s_lshl_b32 s{sT2}, s{sT2}, 8
    s_add_u32 s{sT1}, s{sT1}, s{sT2}
    s_and_b32 s{sT2}, s{sCB}, 1
    s_lshl_b32 s{sT2}, s{sT2}, 10
    s_add_u32 s{sT1}, s{sT1}, s{sT2}
    s_lshl_b32 s{sT0}, s{sT0}, 6
    s_add_u32 s{sT0}, s{sT0}, {WS_G}
    v_and_b32 v{c}, 1, v{vG4}
    v_lshrrev_b32 v{d}, 1, v{vG4}
    s_add_u32 s{sT2}, s{sT1}, {LDELTA}
    s_mov_b32 s{sT3}, {LDELTA}
    s_mul_i32 s{sT4}, s{sXCD}, {FST}
    s_lshr_b32 s{sT5}, s2, 3
    s_lshl_b32 s{sT5}, s{sT5}, 2
    s_add_u32 s{sT4}, s{sT4}, s{sT5}
    s_add_u32 s{sT4}, s{sT4}, {WS_F1}
    v_mov_b32 v11, s{sT4}
    s_waitcnt vmcnt(33) lgkmcnt(0)
    ''')
    def nonce():
        e(f'''
        v_readfirstlane_b32 s{sNON}, v164
        s_mul_i32 s{sNON}, s{sNON}, 0x9e3779b1
        s_add_u32 s{sNON}, s{sNON}, 0x7f4a7c15
        ''')
    nonce()
    e(f'''
    s_getreg_b32 s{sT4}, hwreg(HW_REG_XCC_ID, 0, 4)
    s_xor_b32 s{sT4}, s{sT4}, s{sNON}
    v_mov_b32 v12, s{sT4}
    s_waitcnt vmcnt(17)
    ''')
    signal(C_T0)
    for s_ in range(16):
        e(f'ds_read_b128 {v(XF+4*s_,4)}, v{xk+(s_&3)} offset:{(s_>>2)*256}')
    signal(C_QH)
    e(f'''
    s_bitcmp1_b32 s{sCB}, 0
    s_cbranch_scc1 L_kv_v
    ''')
    def kvloop(isv):
        n = 2 if isv else 3
        for g in range(5):
            if g < 4:
                e(f's_waitcnt vmcnt({4*(3-g)})')
                for s in range(4*g, 4*g+4):
                    bi = s % 8
                    e(f'ds_read_b64_tr_b16 {v(WF+4*bi,2)}, v{a} offset:{s*1024}')
                    e(f'ds_read_b64_tr_b16 {v(WF+4*bi+2,2)}, v{a} offset:{s*1024+128}')
                    if not isv: e(f'ds_read_b128 {v(GF+4*bi,4)}, v{b} offset:{s*64}')
            if g >= 1:
                if g < 4: e(f's_waitcnt lgkmcnt({4*n})')
                for p in range(4*g-4, 4*g):
                    if g == 4: e(f's_waitcnt lgkmcnt({n*(15-p)})')
                    mm(p, p % 8, isv)
    def mm(p, pb, isv):
        cc = '0' if p == 0 else v(dk,4)
        if isv:
            e(f'v_mfma_f32_16x16x32_bf16 {v(dk,4)}, {v(XF+4*p,4)}, {v(WF+4*pb,4)}, {cc}')
        else:
            e(f'v_mfma_f32_16x16x32_bf16 {v(dk,4)}, {v(WF+4*pb,4)}, {v(XF+4*p,4)}, {cc}')
            e(f'v_mfma_f32_16x16x32_bf16 {v(dg,4)}, {v(GF+4*pb,4)}, {v(XF+4*p,4)}, {"0" if p==0 else v(dg,4)}')
    kvloop(False)
    e(f'''
    v_lshlrev_b32 v{a}, 9, v{d}
    v_lshl_add_u32 v{a}, v{c}, 3, v{a}        ; K: (g>>1)*512 + (g&1)*8
    v_lshl_add_u32 v{a}, v{vM15}, 4, v{a}
    v_lshlrev_b32 v{b}, 2, v{vL}
    v_cvt_pk_bf16_f32 v{dk}, v{dk}, v{dk+1}
    v_cvt_pk_bf16_f32 v{dk+1}, v{dk+2}, v{dk+3}
    buffer_store_dwordx2 {v(dk,2)}, v{a}, {srd(S_WS)}, s{sT2} offen
    buffer_store_dwordx2 {v(dk,2)}, v{a}, {srd(S_WS)}, s{sT1} offen sc1
    v_cvt_pk_bf16_f32 v{dg}, v{dg}, v{dg}
    v_lshlrev_b32 v{dg}, 16, v{dg}
    v_mul_f32 v{dg}, {f32(-LOG2E)}, v{dg}
    v_exp_f32 v{dg}, v{dg}
    v_add_f32 v{dg}, 1.0, v{dg}
    v_rcp_f32 v{dg}, v{dg}
    v_cvt_pk_bf16_f32 v{dg}, v{dg}, v{dg}
    v_lshlrev_b32 v{dg}, 16, v{dg}
    s_mov_b64 exec, 1
    s_waitcnt vmcnt(1)
    buffer_store_dword v12, v11, {srd(S_WS)}, s{sT3} offen
    s_mov_b64 exec, 0xffff
    buffer_store_dword v{dg}, v{b}, {srd(S_WS)}, s{sT0} offen sc1
    s_mov_b64 exec, -1
    s_branch L_kv_d
    L_kv_v:
    ''')
    kvloop(True)
    e(f'''
    v_lshlrev_b32 v{a}, 9, v{c}
    v_lshl_add_u32 v{a}, v{d}, 3, v{a}        ; V: (g&1)*512 + (g>>1)*8
    v_lshl_add_u32 v{a}, v{vM15}, 4, v{a}
    v_cvt_pk_bf16_f32 v{dk}, v{dk}, v{dk+1}
    v_cvt_pk_bf16_f32 v{dk+1}, v{dk+2}, v{dk+3}
    buffer_store_dwordx2 {v(dk,2)}, v{a}, {srd(S_WS)}, s{sT2} offen
    buffer_store_dwordx2 {v(dk,2)}, v{a}, {srd(S_WS)}, s{sT1} offen sc1
    s_mov_b64 exec, 1
    s_waitcnt vmcnt(1)
    buffer_store_dword v12, v11, {srd(S_WS)}, s{sT3} offen
    s_mov_b64 exec, -1
    L_kv_d:
    @stamp h_a
    ''')
    signal(C_KV+8)
    e(f'''
    s_mov_b64 exec, 1
    s_waitcnt vmcnt(0)
    buffer_store_dword v12, v11, {srd(S_WS)}, 0 offen sc1
    s_mov_b64 exec, -1
    @stamp h_b
    ''')
    def gpoll(lbl, sbase, sleep):
        e(f'''
        v_and_b32 v{a}, 31, v{vL}
        v_lshlrev_b32 v{a}, 2, v{a}
        L_poll{lbl}:
        buffer_load_dword v{b}, v{a}, {srd(S_WS)}, s{sbase} offen sc1
        s_waitcnt vmcnt(0)
        v_xor_b32 v{b}, s{sNON}, v{b}
        v_cmp_lt_u32 vcc, 15, v{b}
        s_cbranch_vccz L_polled{lbl}
        s_sleep {sleep}
        s_sub_u32 s{sTO}, s{sTO}, 16
        s_cbranch_scc0 L_poll{lbl}
        s_mov_b32 s{sTO}, 0
        L_polled{lbl}:
        ''')
    e(f's_mov_b32 s{sPOS}, 2')
    e('s_branch L_h023')
    e(f'''
    L_h1:
    s_lshl_b32 s{sT0}, s{sRB}, 16
    s_lshr_b32 s{sT1}, s{sCB}, 1
    s_xor_b32 s{sT1}, s{sT1}, 1
    s_lshl_b32 s{sT1}, s{sT1}, 14
    s_add_u32 s{sT0}, s{sT0}, s{sT1}
    s_and_b32 s{sT1}, s{sT1}, 0x4000
    s_add_u32 s{sT1}, s{sT1}, {XH}
    ''')
    xrows('h', 16)
    signal(C_ISS)
    e('@stamp h_issued')
    TR=16; T2=24
    e(f'''
    v_bfe_u32 v{a}, v{vL}, 2, 2               ; r
    v_lshl_add_u32 v{b}, v{vG4}, 3, v{a}      ; row = 8g + r
    v_and_b32 v{c}, 15, v{b}
    s_lshl_b32 s{sT4}, s{sCB}, 3
    v_bfe_u32 v{d}, v{vL}, 1, 1
    v_or_b32 v{d}, s{sT4}, v{d}               ; c16 (q = 0)
    v_xor_b32 v{d}, v{d}, v{c}
    v_lshlrev_b32 v{d}, 4, v{d}
    v_lshl_add_u32 v{d}, v{b}, 10, v{d}
    v_and_b32 v{a}, 1, v{vL}
    v_lshl_add_u32 v{d}, v{a}, 3, v{d}
    ''')
    e('s_waitcnt vmcnt(0) lgkmcnt(0)')
    e('@stamp h_a')
    signal(C_T0)
    wait(C_QH, 1, sleep=1)
    def xtr(hog):
        for q in range(4):
            e(f'v_xor_b32 v{a}, {32*q}, v{d}')
            e(f'v_xor_b32 v{b}, {(32*q) ^ 64}, v{d}')
            e(f'ds_read_b64_tr_b16 {v(T2+8*q+4*hog,2)}, v{a} offset:{XH if hog else XFL}')
            e(f'ds_read_b64_tr_b16 {v(T2+8*q+4*hog+2,2)}, v{b} offset:{(XH if hog else XFL)+4096}')
    xtr(1)
    signal(C_QH)
    wait(C_ISS, 3, sleep=1)
    wait(C_TAB, 8, sleep=1)
    e(f'''
    s_lshl_b32 s{sT0}, s{sRB}, 16
    s_xor_b32 s{sT1}, s{sKAP}, 1
    s_lshl_b32 s{sT1}, s{sT1}, 15
    s_add_u32 s{sT0}, s{sT0}, s{sT1}
    s_mov_b32 s{sT1}, {XFL}
    ''')
    xrows('f', 32)
    e('@stamp h_b')
    nonce()
    e(f'''
    v_mov_b32 v{TR}, -1
    v_mov_b32 v{TR+1}, -1
    v_mov_b32 v{TR+2}, -1
    v_mov_b32 v{TR+3}, -1
    s_lshl_b32 s{sT0}, s{sRB}, 16
    s_lshl_b32 s{sT1}, s{sCB}, 12
    s_add_u32 s{sT0}, s{sT0}, s{sT1}
    s_add_u32 s{sT0}, s{sT0}, {WS_O}
    s_add_u32 s{sT1}, s{sT0}, 32768
    s_lshl_b32 s{sT2}, s{sD0}, 12
    s_add_u32 s{sT2}, s{sT2}, {WS_B}
    s_add_u32 s{sT3}, s{sT2}, 4096
    v_lshlrev_b32 v{c}, 12, v{vM15}
    v_lshl_add_u32 v{c}, v{vG4}, 4, v{c}
    s_lshl_b32 s{sT4}, s{sKAP}, 6
    v_add_u32 v13, s{sT4}, v{c}
    v_xor_b32 v{c}, 64, v13
    s_lshl_b32 s{sT4}, s{sCB}, 18
    s_lshl_b32 s{sT5}, s{sRB}, 7
    s_add_u32 s{sT4}, s{sT4}, s{sT5}
    s_add_u32 s{sT4}, s{sT4}, {WS_XT}
    s_waitcnt vmcnt(0)
    ''')
    signal(C_T2)
    e('@stamp h_c')
    xtr(0)
    signal(C_QA)
    wait(C_KISS, 3, sleep=3)
    for q in range(8):
        e(f'buffer_store_dwordx4 {v(T2+4*q,4)}, v{13 if q&1 else c}, {srd(S_WS)}, s{sT4} offen sc1')
        if q & 1: e(f's_add_u32 s{sT4}, s{sT4}, 65536')
    for sr in (sT0, sT1, sT2, sT3):
        for j in range(4):
            e(f'buffer_store_dwordx4 {v(TR,4)}, v{vL16}, {srd(S_WS)}, s{sr} offen offset:{j*1024} sc1')
    e(f'''
    s_mul_i32 s{sT0}, s{sCB}, {FST}
    s_lshl_b32 s{sT1}, s{sRB}, 2
    s_add_u32 s{sT0}, s{sT0}, s{sT1}
    s_add_u32 s{sT0}, s{sT0}, {WS_F2}
    v_mov_b32 v11, s{sT0}
    v_mov_b32 v{a}, s{sNON}
    s_mov_b64 exec, 1
    s_waitcnt vmcnt(0)
    buffer_store_dword v{a}, v11, {srd(S_WS)}, 0 offen sc1
    s_mov_b64 exec, -1
    ''')
    signal(C_ST)
    e('s_branch L_hkvd')
    e('L_h23:')
    e(f'''
    v_lshrrev_b32 v{a}, 3, v{vL}
    v_lshlrev_b32 v{a}, 10, v{a}
    v_and_b32 v{b}, 7, v{vL}
    v_bfe_u32 v{c}, v{vL}, 4, 1
    v_lshlrev_b32 v{c}, 1, v{c}
    v_xor_b32 v{b}, v{b}, v{c}
    v_lshl_add_u32 v{c}, v{b}, 4, v{a}
    v_xor_b32 v{d}, 64, v{c}
    s_sub_u32 s{sPOS}, s{sW}, 1               ; 1 or 2
    s_lshl_b32 s{sT0}, s{sPOS}, 2
    v_add_u32 v10, s{sT0}, v{vC}
    ''')
    wait(C_ISS, f's{sPOS}', sleep=1)
    e(f'''
    s_and_b32 s{sT2}, s{sW}, 1
    s_lshl_b32 s{sT0}, s{sT2}, 18
    s_lshl_b32 s{sT1}, s{sCB}, 7
    s_add_u32 s{sT0}, s{sT0}, s{sT1}
    s_lshl_b32 s{sT1}, s{sT2}, 15
    s_add_u32 s{sT1}, s{sT1}, {WQ}
    s_mov_b32 s{sCNT}, 0
    L_wp:
    ''')
    for j in range(4):
        e(f'''
        s_mov_b32 m0, s{sT1}
        s_add_u32 s{sT1}, s{sT1}, 1024
        buffer_load_dwordx4 v{d if j&1 else c}, {srd(S_WQ)}, s{sT0} offen lds
        s_add_u32 s{sT0}, s{sT0}, 8192
        ''')
    e(f'''
    s_add_u32 s{sCNT}, s{sCNT}, 1
    s_cmp_lt_u32 s{sCNT}, 8
    s_cbranch_scc1 L_wp
    ''')
    signal(C_ISS)
    e('@stamp h_issued')
    e('s_waitcnt vmcnt(0)')
    signal(C_ISS, addr=10)
    e('@stamp h_a')
    nonce()
    e(f's_sub_u32 s{sPOS}, s{sPOS}, 1')
    e('L_h023:')
    e(f'''
    L_kvl:
    s_add_u32 s{sT1}, s{sXCD}, s{sPOS}
    s_and_b32 s{sT1}, s{sT1}, 7
    s_mul_i32 s{sT2}, s{sT1}, {FST}
    s_add_u32 s{sT2}, s{sT2}, {WS_F1}
    s_lshl_b32 s{sT1}, s{sT1}, 14
    s_cmp_ge_u32 s{sPOS}, 3
    s_cbranch_scc1 L_kvp
    s_cmp_eq_u32 s{sPOS}, 0
    s_cbranch_scc0 L_kvw1
    ''')
    wait(C_KV+8, 1, sleep=1)
    e(f'''
    s_getreg_b32 s{sT3}, hwreg(HW_REG_XCC_ID, 0, 4)
    s_xor_b32 s{sT3}, s{sT3}, s{sNON}
    s_add_u32 s{sT4}, s{sT2}, {LDELTA}
    s_mov_b32 s{sCNT}, 0
    v_and_b32 v{a}, 31, v{vL}
    v_lshlrev_b32 v{a}, 2, v{a}
    L_lpoll:
    buffer_load_dword v{b}, v{a}, {srd(S_WS)}, s{sT4} offen sc1
    s_waitcnt vmcnt(0)
    v_cmp_ne_u32 vcc, s{sT3}, v{b}
    v_xor_b32 v{b}, s{sNON}, v{b}
    s_cbranch_vccz L_lok
    s_sleep 2
    s_add_u32 s{sCNT}, s{sCNT}, 1
    s_cmp_lt_u32 s{sCNT}, 12
    s_cbranch_scc1 L_lpoll
    s_branch L_kvp
    L_lok:
    s_add_u32 s{sT1}, s{sT1}, {LDELTA}
    @stamp h_p0
    s_branch L_kvgo
    L_kvw1:
    ''')
    wait(C_KISS, 1, sleep=1)
    e('L_kvp:')
    gpoll(1, sT2, 6)
    e(f'''
    s_cmp_eq_u32 s{sPOS}, 0
    s_cbranch_scc1 L_kvgo
    s_cmp_ge_u32 s{sPOS}, 3
    s_cbranch_scc1 L_kvw2
    ''')
    wait(C_QH, 6, sleep=1)
    e('s_branch L_kvgo')
    e('L_kvw2:')
    wait(C_QA, 9, sleep=2)
    e('L_kvgo:')
    wait(C_KISS, f's{sPOS}', sleep=1)
    e(f'''
    s_lshl_b32 s{sT0}, s{sPOS}, 14
    ''')
    for j in range(4):
        e(f's_mov_b32 m0, s{sT0}')
        for i in range(4):
            e(f'buffer_load_dwordx4 v{vL16}, {srd(S_WS)}, s{sT1} offen offset:{i*1024} sc1 lds')
        e(f's_add_u32 s{sT0}, s{sT0}, 4096')
        e(f's_add_u32 s{sT1}, s{sT1}, 4096')
    signal(C_KISS)
    e(f'''
    s_lshl_b32 s{sT0}, s{sPOS}, 2
    v_add_u32 v{d}, s{sT0}, v{vC}
    s_cmp_lg_u32 s{sPOS}, 0
    s_cbranch_scc1 L_noloc
    s_getreg_b32 s{sT1}, hwreg(HW_REG_XCC_ID, 0, 4)
    v_cmp_ne_u32 vcc, s{sT1}, v{b}
    s_and_b32 s{sT0}, s{sRB}, 3
    s_lshl_b32 s{sT0}, s{sT0}, 3
    s_lshr_b32 s{sT0}, vcc_lo, s{sT0}
    s_and_b32 s{sT0}, s{sT0}, 0xff
    s_cbranch_scc1 L_noloc
    ''')
    signal(C_KVOK)
    e('L_noloc:')
    e(f'''
    s_cmp_lg_u32 s{sPOS}, 7
    s_cbranch_scc1 L_no7
    s_mul_i32 s{sT2}, s{sXCD}, {FST}
    s_add_u32 s{sT2}, s{sT2}, {WS_F1}
    ''')
    gpoll(2, sT2, 6)
    e(f'''
    L_no7:
    s_cmp_eq_u32 s{sPOS}, 7
    s_cselect_b32 s{sT0}, 2, 1
    v_mov_b32 v{a}, s{sT0}
    s_mov_b64 exec, 1
    s_waitcnt vmcnt(0)
    ds_add_u32 v{d}, v{a} offset:{4*C_KV}
    s_mov_b64 exec, -1
    ''')
    e(f'''
    s_cmp_ge_u32 s{sPOS}, 3
    s_cbranch_scc1 L_nostamp
    @stamp h_kv0
    L_nostamp:
    s_add_u32 s{sPOS}, s{sPOS}, 3
    s_cmp_lt_u32 s{sPOS}, 8
    s_cbranch_scc1 L_kvl
    L_hkvd:
    @stamp h_kvd
    ''')
    mk(S_WO, P_WO, 524288)
    mk(S_OUT, P_OUT, 2097152)
    e(f'''
    s_lshr_b32 s{sCH}, s{sW}, 1
    s_and_b32 s{sHF}, s{sW}, 1
    s_lshl_b32 s{sT0}, s{sCH}, 2
    v_add_u32 v10, s{sT0}, v{vC}
    ''')
    import os
    if os.environ.get('SKIPH'):
        e(f'v_mov_b32 v11, 0\nv_mov_b32 v{d}, 0\ns_branch L_hfin')
    wait(C_QA, 9, sleep=4)
    e(f'''
    s_cmp_eq_u32 s{sW}, 1
    s_cbranch_scc1 L_sg1
    s_cmp_eq_u32 s{sW}, 2
    s_cbranch_scc1 L_sg2
    s_cmp_eq_u32 s{sW}, 3
    s_cbranch_scc1 L_sg3
    v_mov_b32 v{a}, 0
    v_mov_b32 v{b}, 0
    v_lshlrev_b32 v11, 3, v{vL}
    v_add_u32 v{c}, {KREV+4096}, v11
    v_sub_u32 v11, {KREV+4088}, v11
    v_add_u32 v{d}, {PB+12}, v{vL16}
    s_mov_b64 exec, 0xff
    ds_write_b64 v{c}, {v(a,2)}
    ds_write_b64 v{c}, {v(a,2)} offset:{KREV_O}
    ds_write_b64 v{c}, {v(a,2)} offset:{KREV_CH}
    ds_write_b64 v{c}, {v(a,2)} offset:{KREV_CH+KREV_O}
    s_mov_b64 exec, -1
    ''')
    for ch in range(2):
        g0 = 16 + 16*ch
        for pp in range(2):
            e(f'ds_read_b128 {v(g0+6*pp,4)}, v{d} offset:{(2*ch+pp)*GW+4}')
            e(f'ds_read_b32 v{g0+6*pp+4}, v{d} offset:{(2*ch+pp)*GW}')
    for ch in range(2):
        g0 = 16 + 16*ch
        e(f's_waitcnt lgkmcnt({4 if ch==0 else 2})')
        for k in range(5): e(f'v_add_f32 v{g0+k}, v{g0+k}, v{g0+6+k}')
        e(f'''
        v_cvt_pk_bf16_f32 v{g0+12}, v{g0+3}, v{g0+2}
        v_cvt_pk_bf16_f32 v{g0+13}, v{g0+1}, v{g0}
        v_cvt_pk_bf16_f32 v{g0+14}, v{g0+2}, v{g0+1}
        v_cvt_pk_bf16_f32 v{g0+15}, v{g0}, v{g0+4}
        ds_write_b64 v11, {v(g0+12,2)} offset:{ch*KREV_CH}
        ds_write_b64 v11, {v(g0+14,2)} offset:{ch*KREV_CH+KREV_O}
        ''')
    e('s_branch L_sgd')
    def seg(sg):
        n = 2 << sg
        p0 = 128 << sg
        ta = {1:2, 2:3, 3:5}[sg]; tb = {1:3, 2:6, 3:12}[sg]
        val = lambda r: 0 if r < ta else (1 if r < tb else 2)
        e(f'''
        L_sg{sg}:
        v_lshlrev_b32 v{d}, 3, v{vL}
        v_add_u32 v{d}, {PB+16+(128+128*sg)*4-4}, v{d}
        v_lshlrev_b32 v11, {sg+2}, v{vL}
        v_sub_u32 v11, {KREV+(2047-(p0+n-1))*2}, v11
        ''')
        if sg == 1: e(f'v_cmp_eq_u32 vcc, 0, v{vL}')
        for ch in range(2):
            g0 = 16 + 32*ch
            for pp in range(2):
                e(f'ds_read_b64 {v(g0+4*pp,2)}, v{d} offset:{(2*ch+pp)*GW+4}')
                e(f'ds_read_b32 v{g0+4*pp+2}, v{d} offset:{(2*ch+pp)*GW+12}')
                if sg == 1: e(f'ds_read_b32 v{g0+4*pp+3}, v{d} offset:{(2*ch+pp)*GW}')
        e('s_waitcnt lgkmcnt(0)')
        for ch in range(2):
            g0 = 16 + 32*ch
            for k in range(4 if sg == 1 else 3): e(f'v_add_f32 v{g0+k}, v{g0+k}, v{g0+4+k}')
            if sg == 1: e(f'v_cndmask_b32 v{g0+3}, v{g0}, v{g0+3}, vcc')
            reg = lambda r: (g0+3 if sg == 1 else g0) if r < 0 else g0+val(r)
            E = g0+8; Oc = g0+16
            for i in range(n//2):
                r = n-1-2*i
                e(f'v_cvt_pk_bf16_f32 v{E+i}, v{reg(r)}, v{reg(r-1)}')
                e(f'v_cvt_pk_bf16_f32 v{Oc+i}, v{reg(r-1)}, v{reg(r-2)}')
            for (X, off) in ((E, 0), (Oc, KREV_O)):
                if sg == 1: e(f'ds_write_b64 v11, {v(X,2)} offset:{ch*KREV_CH+off}')
                else:
                    for hh in range(n//8): e(f'ds_write_b128 v11, {v(X+4*hh,4)} offset:{ch*KREV_CH+off+16*hh}')
        if sg < 3: e('s_branch L_sgd')
    for sg in (1,2,3): seg(sg)
    e('L_sgd:')
    signal(C_KREV)
    e('@stamp h_krev')
    e(f'''
    s_mul_i32 s{sT2}, s{sXCD}, {FST}
    s_add_u32 s{sT2}, s{sT2}, {WS_F2}
    s_cmp_eq_u32 s{sHF}, 1
    s_cbranch_scc1 L_polled3
    ''')
    gpoll(3, sT2, 8)
    e('@stamp h_f2')
    wait(C_KREV, 4, sleep=4)
    e(f'''
    s_mul_i32 s{sT1}, s{sCH}, {XC_CH}
    s_add_u32 s{sT1}, s{sT1}, {XC}
    s_cmp_eq_u32 s{sHF}, 1
    s_cbranch_scc1 L_xpad
    s_add_u32 s{sT1}, s{sT1}, 512
    s_mov_b32 m0, s{sT1}
    s_add_u32 s{sT0}, s{sD0}, s{sCH}
    s_lshl_b32 s{sT0}, s{sT0}, 12
    s_add_u32 s{sT0}, s{sT0}, {WS_XT}
    ''')
    for i in range(4):
        e(f'buffer_load_dwordx4 v{vL16}, {srd(S_WS)}, s{sT0} offen offset:{i*1024} sc1 lds')
    e(f'''
    s_branch L_xpad_d
    L_xpad:
    v_mov_b32 v{a}, 0
    v_mov_b32 v{b}, 0
    v_lshlrev_b32 v{c}, 3, v{vL}
    v_add_u32 v{c}, s{sT1}, v{c}
    ds_write_b64 v{c}, {v(a,2)}
    L_xpad_d:
    s_waitcnt vmcnt(0)
    ''')
    signal(C_XT, addr=10)
    e('@stamp h_kv1')
    aA=12; aB=20; CA=24; CB=56; CACC=120
    e(f'''
    v_lshrrev_b32 v{a}, 1, v{vG4}
    v_lshlrev_b32 v{a}, 4, v{a}
    v_add_u32 v{a}, v{a}, v{vM15}
    v_and_b32 v{b}, 1, v{vG4}
    v_lshlrev_b32 v{c}, 3, v{b}
    v_sub_u32 v{a}, v{a}, v{c}
    v_sub_u32 v{a}, 2047, v{a}                 ; r00
    v_and_b32 v{c}, 1, v{a}
    v_sub_u32 v{a}, v{a}, v{c}
    v_lshlrev_b32 v{a}, 1, v{a}
    v_mul_u32_u24 v{c}, {KREV_O}, v{c}
    v_add_u32 v{a}, v{a}, v{c}
    s_mul_i32 s{sT0}, s{sCH}, {KREV_CH}
    s_add_u32 s{sT0}, s{sT0}, {KREV - 192}
    s_lshl_b32 s{sT1}, s{sHF}, 8
    s_sub_u32 s{sT0}, s{sT0}, s{sT1}
    v_add_u32 v{aA}, s{sT0}, v{a}
    ''')
    for u in range(1,8):
        e(f'v_subrev_u32 v{aA+u}, {512*u}, v{aA}')
    e(f'''
    v_lshrrev_b32 v{a}, 1, v{vG4}
    v_sub_u32 v{a}, v{vM15}, v{a}
    v_lshlrev_b32 v{a}, 5, v{a}
    v_lshl_add_u32 v{a}, v{b}, 4, v{a}
    s_mul_i32 s{sT0}, s{sCH}, {XC_CH}
    s_add_u32 s{sT0}, s{sT0}, {XC + 512 - 192}
    s_sub_u32 s{sT0}, s{sT0}, s{sT1}
    v_add_u32 v{aB}, s{sT0}, v{a}
    ''')
    def rdA(wq, u):
        o = 16*(3-wq)
        e(f'ds_read2_b32 {v(CA+4*u,2)}, v{aA+u} offset0:{o} offset1:{o+1}')
        e(f'ds_read2_b32 {v(CA+4*u+2,2)}, v{aA+u} offset0:{o+2} offset1:{o+3}')
    def rdB(wq, s):
        e(f'ds_read_b128 {v(CB+32*(wq&1)+4*s,4)}, v{aB} offset:{s*512+(3-wq)*64}')
    for u in range(8): rdA(0, u)
    wait(C_XT, 2, addr=10, sleep=4)
    e('s_setprio 2')
    for s in range(8): rdB(0, s)
    for wq in range(4):
        e('s_waitcnt lgkmcnt(0)')
        B = CB + 32*(wq&1)
        for u in range(7,-1,-1):
            for nt in range(u, 8):
                e(f'v_mfma_f32_16x16x32_bf16 {v(CACC+4*nt,4)}, {v(CA+4*u,4)}, {v(B+4*(nt-u),4)}, {"0" if (wq==0 and nt==u) else v(CACC+4*nt,4)}')
            if wq < 3:
                rdA(wq+1, u)
                rdB(wq+1, u)
    e('s_setprio 3')
    signal(C_CR, addr=10)
    e(f'''
    @stamp h_conv
    s_cmp_eq_u32 s{sHF}, 0
    s_cbranch_scc1 L_noswap
    s_nop 7
    ''')
    for i in range(16): e(f'v_swap_b32 v{CACC+i}, v{CACC+16+i}')
    e(f'''
    L_noswap:
    s_mul_i32 s{sT0}, s{sCH}, {KREV_CH}
    s_add_u32 s{sT0}, s{sT0}, {KREV}
    s_lshl_b32 s{sT1}, s{sHF}, 12
    s_add_u32 s{sT2}, s{sT0}, s{sT1}
    s_xor_b32 s{sT1}, s{sT1}, 4096
    s_add_u32 s{sT0}, s{sT0}, s{sT1}
    v_add_u32 v{a}, s{sT2}, v{vL16}
    v_add_u32 v{b}, s{sT0}, v{vL16}
    ''')
    wait(C_CR, 2, addr=10, sleep=3)
    for q in range(4):
        e(f'ds_write_b128 v{a}, {v(CACC+16+4*q,4)} offset:{q*1024}')
    signal(C_CW, addr=10)
    e(f'''
    v_lshlrev_b32 v{c}, 5, v{vM15}
    v_lshl_add_u32 v{c}, v{vG4}, 3, v{c}
    s_lshl_b32 s{sT1}, s{sHF}, 11
    v_add_u32 v{c}, s{sT1}, v{c}
    s_mul_i32 s{sT0}, s{sCH}, {XC_CH}
    s_add_u32 s{sT0}, s{sT0}, {XC+512}
    v_add_u32 v{d}, s{sT0}, v{c}
    s_add_u32 s{sT0}, s{sD0}, s{sCH}
    s_lshl_b32 s{sT0}, s{sT0}, 12
    s_add_u32 s{sT0}, s{sT0}, {WS_B}
    s_lshl_b32 s{sT1}, s{sCH}, 4
    s_lshr_b32 s{sT1}, s{sDSK}, s{sT1}
    s_lshl_b32 s{sT1}, s{sT1}, 16
    s_mov_b32 s{sT2}, 0xfffefffe
    ''')
    wait(C_ST, 1, sleep=1)
    wait(C_CW, 2, addr=10, sleep=3)
    XV=24; T=40
    for q in range(4):
        e(f'ds_read_b128 {v(CACC+16+4*q,4)}, v{b} offset:{q*1024}')
        e(f'ds_read_b64 {v(XV+2*q,2)}, v{d} offset:{q*512}')
    signal(C_CONV)
    for q in range(4):
        y=CACC+4*q
        e(f's_waitcnt lgkmcnt({7-2*q})')
        for r in range(4): e(f'v_add_f32 v{y+r}, v{y+r}, v{y+16+r}')
        for hh in range(2):
            x=XV+2*q+hh
            e(f'''
            v_lshlrev_b32 v{T+1}, 16, v{x}
            v_and_b32 v{T+2}, 0xffff0000, v{x}
            v_fmac_f32 v{y+2*hh}, s{sT1}, v{T+1}
            v_fmac_f32 v{y+2*hh+1}, s{sT1}, v{T+2}
            v_cvt_pk_bf16_f32 v{x}, v{y+2*hh}, v{y+2*hh+1}
            v_pk_min_u16 v{x}, v{x}, s{sT2}
            ''')
        e(f'buffer_store_dwordx2 {v(XV+2*q,2)}, v{c}, {srd(S_WS)}, s{sT0} offen offset:{q*512} sc1')
    e('@stamp h_bout')
    WOF=36; ACC=12; BP=28; GV=10; OA=11
    NS=6
    e(f'''
    v_lshrrev_b32 v{a}, 2, v{vL}
    v_lshlrev_b32 v{a}, 10, v{a}
    v_and_b32 v{b}, 3, v{vL}
    v_lshl_add_u32 v{a}, v{b}, 4, v{a}
    s_lshr_b32 s{sT0}, s{sCB}, 1
    s_lshl_b32 s{sT0}, s{sT0}, 8
    s_lshl_b32 s{sT1}, s{sW}, 6
    s_add_u32 s{sT0}, s{sT0}, s{sT1}
    s_mul_i32 s{sT2}, s{sW}, {NS*1024}
    s_add_u32 s{sT2}, s{sT2}, {POOL}
    v_bfe_u32 v{c}, v{vL}, 2, 2
    v_lshrrev_b32 v{d}, 5, v{vL}
    v_lshl_add_u32 v{c}, v{d}, 2, v{c}         ; 4h + r
    v_lshlrev_b32 v{c}, 6, v{c}
    v_bfe_u32 v{d}, v{vL}, 4, 1
    v_lshl_add_u32 v{c}, v{d}, 5, v{c}
    v_lshl_add_u32 v{c}, v{b}, 3, v{c}
    v_add_u32 v{c}, s{sT2}, v{c}
    s_waitcnt vmcnt(0)
    ''')
    wait(C_CONV, 4, sleep=4)
    def wodma(k):
        e(f'''
        s_add_u32 s{sT3}, s{sT2}, {(k%NS)*1024}
        s_mov_b32 m0, s{sT3}
        s_nop 0
        buffer_load_dwordx4 v{a}, {srd(S_WO)}, s{sT0} offen lds
        s_add_u32 s{sT0}, s{sT0}, 16384
        ''')
    for k in range(NS): wodma(k)
    for k in range(28):
        e(f's_waitcnt vmcnt({min(NS-1, 31-k)})')
        e(f'ds_read_b64_tr_b16 {v(WOF+4*k,2)}, v{c} offset:{(k%NS)*1024}')
        e(f'ds_read_b64_tr_b16 {v(WOF+4*k+2,2)}, v{c} offset:{(k%NS)*1024+512}')
        if k+NS < 32:
            e('s_waitcnt lgkmcnt(0)')
            wodma(k+NS)
    e(f'v_mov_b32 v{d}, v{c}')
    e('@stamp h_wo')
    e(f'''
    s_mov_b32 s{sT0}, {WS_F2}
    v_lshrrev_b32 v{a}, 3, v{vL}
    v_mul_u32_u24 v{a}, {FST}, v{a}
    v_and_b32 v{b}, 7, v{vL}
    v_lshl_add_u32 v{a}, v{b}, 4, v{a}
    L_pollA:
    buffer_load_dwordx4 {v(ACC,4)}, v{a}, {srd(S_WS)}, s{sT0} offen sc1
    s_waitcnt vmcnt(0)
    v_xor_b32 v{ACC}, s{sNON}, v{ACC}
    v_xor_b32 v{ACC+1}, s{sNON}, v{ACC+1}
    v_xor_b32 v{ACC+2}, s{sNON}, v{ACC+2}
    v_xor_b32 v{ACC+3}, s{sNON}, v{ACC+3}
    v_or3_b32 v{ACC}, v{ACC}, v{ACC+1}, v{ACC+2}
    v_or_b32 v{ACC}, v{ACC}, v{ACC+3}
    v_cmp_ne_u32 vcc, 0, v{ACC}
    s_cbranch_vccz L_polledA
    s_sleep 8
    s_sub_u32 s{sTO}, s{sTO}, 16
    s_cbranch_scc0 L_pollA
    s_mov_b32 s{sTO}, 0
    L_polledA:
    s_or_b32 s{sT0}, s2, s{sW}
    s_cmp_lg_u32 s{sT0}, 0
    s_cbranch_scc1 L_nogen
    v_mov_b32 v{a}, {WS_GEN}
    v_mov_b32 v{b}, s{sNON}
    s_mov_b64 exec, 1
    buffer_store_dword v{b}, v{a}, {srd(S_WS)}, 0 offen sc1
    s_mov_b64 exec, -1
    L_nogen:
    ''')
    e(f'''
    s_lshl_b32 s{sT0}, s{sRB}, 6
    s_and_b32 s{sT1}, s{sCB}, 1
    s_lshl_b32 s{sT1}, s{sT1}, 5
    s_add_u32 s{sT0}, s{sT0}, s{sT1}
    v_and_b32 v{a}, 31, v{vL}
    v_add_u32 v{a}, s{sT0}, v{a}               ; row
    s_lshr_b32 s{sT0}, s{sCB}, 1
    s_lshl_b32 s{sT0}, s{sT0}, 7
    s_lshl_b32 s{sT1}, s{sW}, 5
    s_add_u32 s{sT0}, s{sT0}, s{sT1}
    v_lshrrev_b32 v{b}, 5, v{vL}
    v_lshlrev_b32 v{b}, 2, v{b}
    v_add_u32 v{b}, s{sT0}, v{b}
    v_lshlrev_b32 v{OA}, 10, v{a}
    v_lshl_add_u32 v{OA}, v{b}, 1, v{OA}
    v_lshrrev_b32 v{c}, 5, v{vL}
    v_lshl_add_u32 v{OA}, v{c}, 3, v{OA}
    v_lshlrev_b32 v{b}, 12, v{b}
    v_lshl_add_u32 v{b}, v{a}, 1, v{b}
    v_add_u32 v{b}, {WS_B}, v{b}
    v_lshlrev_b32 v{a}, 2, v{a}
    s_mov_b32 s{sT0}, {WS_G}
    buffer_load_dword v{GV}, v{a}, {srd(S_WS)}, s{sT0} offen sc1
    L_bpoll:
    ''')
    for i in range(16):
        col = (i>>2)*8 + (i&3)
        e(f's_mov_b32 s{sT0}, {col*4096}')
        e(f'buffer_load_ushort v{ACC+i}, v{b}, {srd(S_WS)}, s{sT0} offen sc1')
    e(f's_waitcnt vmcnt(0)')
    e(f'v_max3_u32 v{c}, v{ACC}, v{ACC+1}, v{ACC+2}')
    for i in range(3,15,2): e(f'v_max3_u32 v{c}, v{c}, v{ACC+i}, v{ACC+i+1}')
    e(f'''
    v_max_u32 v{c}, v{c}, v{ACC+15}
    v_cmp_eq_u32 vcc, 0xffff, v{c}
    s_cbranch_vccz L_bok
    s_sleep 8
    s_sub_u32 s{sTO}, s{sTO}, 16
    s_cbranch_scc0 L_bpoll
    s_mov_b32 s{sTO}, 0
    L_bok:
    v_sub_f32 v{c}, 1.0, v{GV}
    ''')
    for i in range(16):
        e(f'v_lshlrev_b32 v{ACC+i}, 16, v{ACC+i}')
        e(f'v_mul_f32 v{ACC+i}, v{ACC+i}, v{c}')
    e('@stamp h_bok')
    OF0=4
    e('L_hfin:')
    e('s_barrier')
    e('s_barrier')
    e('@stamp h_o0')
    OB=148
    q=[]
    def ds(tag, txt): e(txt); q.append(tag)
    def need_(tags):
        idx=max(i for i,t in enumerate(q) if t in tags) if any(t in tags for t in q) else -1
        if idx >= 0:
            e(f's_waitcnt lgkmcnt({len(q)-1-idx})')
            del q[:idx+1]
    for k in range(4): ds(('o',k), f'ds_read_b128 {v(OB+4*k,4)}, v{vL16} offset:{k*1024}')
    for k in range(32):
        need_({('o',k),('w',k)})
        W = WOF+4*k if k < 28 else WOF+4*(k-28)
        e(f'v_mfma_f32_32x32x16_bf16 {v(ACC,16)}, {v(W,4)}, {v(OB+4*(k%4),4)}, {v(ACC,16)}')
        if k+4 < 32: ds(('o',k+4), f'ds_read_b128 {v(OB+4*(k%4),4)}, v{vL16} offset:{(k+4)*1024}')
        if k < 4:
            kk=28+k
            ds(('w',kk), f'ds_read_b64_tr_b16 {v(WOF+4*k,2)}, v{d} offset:{(kk%NS)*1024}')
            ds(('w',kk), f'ds_read_b64_tr_b16 {v(WOF+4*k+2,2)}, v{d} offset:{(kk%NS)*1024+512}')
    e('@stamp h_mm')
    T=WOF+16
    for i in range(8):
        e(f'v_cvt_pk_bf16_f32 v{T+i}, v{ACC+2*i}, v{ACC+2*i+1}')
    for hh in range(2):
        e(f'v_permlane32_swap_b32 v{T+4*hh}, v{T+4*hh+2}')
        e(f'v_permlane32_swap_b32 v{T+4*hh+1}, v{T+4*hh+3}')
        e(f'buffer_store_dwordx4 {v(T+4*hh,4)}, v{OA}, {srd(S_OUT)}, 0 offen offset:{hh*32}')
    e('@stamp h_end')
    finish()
    vQ=10
    PR=14
    R=24; s1=40; s2=42; mu=44; tt=46; pk=48; wa=18; ra=20; FA=96; FB=146; vG=24
    al=66; bh=67; bl=68; dt=21; p1=22; p2=23; ee=69
    NM=16; S0=40; S1=56; P=72; O=80; KF=96; VF=112; ad=14; mx=15; kvf=144; fl=145
    e(f'''
    L_main:
    s_sub_u32 s{sM}, s{sW}, 4
    s_lshr_b32 s{sRT}, s{sM}, 2
    s_and_b32 s{sHD}, s{sM}, 3
    s_lshr_b32 s{sCH}, s{sHD}, 1
    s_setprio 1
    s_cmp_eq_u32 s{sRT}, 0
    s_cbranch_scc1 L_np
    s_setprio 3
    L_np:
    ''')
    e(f'''
    v_and_b32 v{a}, 27, v{vL}
    v_cmp_eq_u32 vcc, 16, v{a}
    v_mov_b32 v{b}, 0x3f803f80
    v_cndmask_b32 v{VF}, 0, v{b}, vcc
    ''')
    for i in range(1,32): e(f'v_mov_b32 v{VF+i}, v{VF}')
    for i in range(16): e(f'v_mov_b32 v{O+i}, 0')
    for i in range(4): e(f'v_mov_b32 v{P+4+i}, 0')
    def exp_acc(dst, x, t, u):
        e(f'''
        v_mul_f32 v{t}, {f32(L2E_HI)}, v{x}
        v_fma_f32 v{u}, v{x}, s{sT4}, -v{t}
        v_fmac_f32 v{u}, {f32(L2E_LO)}, v{x}
        v_exp_f32 v{dst}, v{t}
        v_mul_f32 v{u}, {f32(math.log(2.0))}, v{u}
        v_fma_f32 v{dst}, v{dst}, v{u}, v{dst}
        v_cvt_pk_bf16_f32 v{dst}, v{dst}, v{dst}
        v_lshlrev_b32 v{dst}, 16, v{dst}
        ''')
    def cmul(D, X, Y, T=None):
        T = D if T is None else T
        e(f'''
        v_pk_mul_f32 {v(T,2)}, {v(X,2)}, {v(Y,2)} op_sel:[0,0] op_sel_hi:[0,1]
        v_pk_fma_f32 {v(D,2)}, {v(X,2)}, {v(Y,2)}, {v(T,2)} op_sel:[1,1,0] op_sel_hi:[1,0,1] neg_lo:[1,0,0]
        ''')
    def cmul_inplace(idxs, Y):
        for k,i in enumerate(idxs):
            e(f'v_pk_mul_f32 {v(56+2*(k%4),2)}, {v(R+2*i,2)}, {v(Y,2)} op_sel:[0,0] op_sel_hi:[0,1]')
            if k >= 1:
                j = idxs[k-1]
                e(f'v_pk_fma_f32 {v(R+2*j,2)}, {v(R+2*j,2)}, {v(Y,2)}, {v(56+2*((k-1)%4),2)} op_sel:[1,1,0] op_sel_hi:[1,0,1] neg_lo:[1,0,0]')
        k = len(idxs)-1; j = idxs[k]
        e(f'v_pk_fma_f32 {v(R+2*j,2)}, {v(R+2*j,2)}, {v(Y,2)}, {v(56+2*(k%4),2)} op_sel:[1,1,0] op_sel_hi:[1,0,1] neg_lo:[1,0,0]')
    e(f'''
    s_mov_b32 s{sT4}, {f32(L2E_HI)}
    s_mov_b32 s{sT5}, {f32(I2P_HI)}
    v_cmp_lt_u32 s[{sM0}:{sM0+1}], 31, v{vL}
    v_mov_b32 v{b}, {f32(8.0)}
    v_cndmask_b32 v{p1}, v{b}, 1.0, s[{sM0}:{sM0+1}]
    v_mov_b32 v{b}, {f32(64.0)}
    v_mov_b32 v{c}, {f32(256.0)}
    v_cndmask_b32 v{p2}, v{b}, v{c}, s[{sM0}:{sM0+1}]
    s_lshl_b32 s{sT0}, s{sM}, 12
    s_add_u32 s{sT3}, s{sT0}, {XFL}
    v_lshrrev_b32 v{a}, 5, v{vL}
    v_lshlrev_b32 v{a}, 11, v{a}
    v_and_b32 v{b}, 31, v{vL}
    v_lshl_add_u32 v{a}, v{b}, 4, v{a}
    v_add_u32 v{wa}, s{sT3}, v{a}
    v_xor_b32 v{wa+1}, 0x80, v{wa}
    v_lshrrev_b32 v{a}, 2, v{vL}              ; 4g + r
    v_lshlrev_b32 v{a}, 4, v{a}
    v_bfe_u32 v{b}, v{vL}, 1, 1               ; gh
    v_mul_u32_u24 v{b}, 0x280, v{b}
    v_xor_b32 v{a}, v{a}, v{b}
    v_and_b32 v{b}, 1, v{vL}
    v_lshl_add_u32 v{a}, v{b}, 3, v{a}
    v_add_u32 v{ra}, s{sT3}, v{a}
    s_waitcnt lgkmcnt(0)
    s_lshl_b32 s{sT0}, s{sCH}, 4
    s_lshr_b32 s{sT1}, s{sLDT}, s{sT0}
    s_lshl_b32 s{sT1}, s{sT1}, 16
    v_mov_b32 v{a}, s{sT1}
    ''')
    exp_acc(dt, a, b, c)
    e(f'''
    s_waitcnt vmcnt(0)
    @stamp m_par
    v_and_b32 v{a}, 0x7fff, v{PR+2}
    v_and_b32 v{b}, 0x7fff, v{PR+3}
    v_max_u32 v{a}, v{a}, v{b}
    v_max_u32_dpp v{a}, v{a}, v{a} row_shr:1 row_mask:0xf bank_mask:0xf
    v_max_u32_dpp v{a}, v{a}, v{a} row_shr:2 row_mask:0xf bank_mask:0xf
    v_max_u32_dpp v{a}, v{a}, v{a} row_shr:4 row_mask:0xf bank_mask:0xf
    v_max_u32_dpp v{a}, v{a}, v{a} row_shr:8 row_mask:0xf bank_mask:0xf
    v_readlane_b32 s{sT0}, v{a}, 15
    v_readlane_b32 s{sT1}, v{a}, 31
    s_max_u32 s{sT0}, s{sT0}, s{sT1}
    s_lshr_b32 s{sT0}, s{sT0}, 7
    s_max_u32 s{sT0}, s{sT0}, 1
    s_min_u32 s{sT0}, s{sT0}, 253
    s_lshl_b32 s{sSC}, s{sT0}, 23
    s_sub_u32 s{sT0}, 254, s{sT0}
    s_lshl_b32 s{sSCI}, s{sT0}, 23
    v_lshlrev_b32 v{a}, 16, v{PR}
    ''')
    exp_acc(al, a, b, c)
    e(f'''
    v_mul_f32 v{al}, v{al}, v{dt}
    v_mul_f32 v{al}, {f32(-LOG2E)}, v{al}
    v_lshlrev_b32 v{a}, 16, v{PR+1}
    v_mul_f32 v{a}, v{a}, v{dt}
    v_cndmask_b32 v{a}, v{a}, -v{a}, s[{sM0}:{sM0+1}]
    v_mul_f32 v{bh}, {f32(I2P_HI)}, v{a}
    v_fma_f32 v{bl}, v{a}, s{sT5}, -v{bh}
    v_fmac_f32 v{bl}, {f32(I2P_LO)}, v{a}
    ''')
    for (S, p) in ((s1,p1),(s2,p2)):
        e(f'''
        v_mul_f32 v{a}, v{al}, v{p}
        v_mul_f32 v{b}, v{bh}, v{p}
        v_exp_f32 v{ee}, v{a}
        v_fract_f32 v{b}, v{b}
        v_fmac_f32 v{b}, v{bl}, v{p}
        v_cos_f32 v{c}, v{b}
        v_sin_f32 v{d}, v{b}
        v_mul_f32 v{S}, v{ee}, v{c}
        v_mul_f32 v{S+1}, v{ee}, v{d}
        ''')
    e(f'''
    v_lshlrev_b32 v{a}, 16, v{PR+2}
    v_lshlrev_b32 v{b}, 16, v{PR+3}
    v_mul_f32 v{a}, s{sSCI}, v{a}
    v_mul_f32 v{b}, s{sSCI}, v{b}
    v_cndmask_b32 v{R}, 1.0, v{a}, s[{sM0}:{sM0+1}]
    v_cndmask_b32 v{R+1}, 0, -v{b}, s[{sM0}:{sM0+1}]
    ''')
    cmul(tt, s1, s1)
    cmul(R+2, R, s1)
    cmul(mu, s2, s2)
    cmul(R+4, R, tt)
    cmul(R+6, R+2, tt)
    cmul(64, tt, tt)
    e(f'''
    v_cndmask_b32 v{mu}, v{s1}, v{mu}, s[{sM0}:{sM0+1}]
    v_cndmask_b32 v{mu+1}, v{s1+1}, v{mu+1}, s[{sM0}:{sM0+1}]
    ''')
    for i in range(4): cmul(R+8+2*i, R+2*i, 64)
    def flush(rnd):
        for i in range(4): e(f'v_cvt_pk_f16_f32 v{pk+i}, v{R+4*i}, v{R+4*i+2}')
        e(f'ds_write_b128 v{wa+(rnd&1)}, {v(pk,4)} offset:{512*(rnd&1)}')
        for i in range(4): e(f'v_cvt_pk_f16_f32 v{pk+4+i}, v{R+4*i+1}, v{R+4*i+3}')
        e(f'ds_write_b128 v{wa+(rnd&1)}, {v(pk+4,4)} offset:{512*(rnd&1)+1024}')
        if rnd & 1:
            rho = rnd >> 1
            for (F, part) in ((FB,0),(FA,1)):
                for s_ in range(2):
                    e(f'ds_read_b64_tr_b16 {v(F+8*rho+4*s_,2)}, v{ra} offset:{part*2048+s_*256}')
                    e(f'ds_read_b64_tr_b16 {v(F+8*rho+4*s_+2,2)}, v{ra} offset:{part*2048+s_*256+1024}')
    flush(0)
    cmul_inplace(list(range(8)), s2)
    flush(1)
    for rnd in (2,3):
        cmul_inplace([0,4,5], s2)
        cmul(R+2, R, mu)
        cmul_inplace([6,7], s2)
        cmul(R+4, R+2, mu)
        cmul(R+6, R+4, mu)
        flush(rnd)
    e(f'''
    v_add_f32 v{dt}, v{dt}, v{dt}
    v_mul_f32 v{dt}, s{sSC}, v{dt}
    s_lshl_b32 s{sT0}, s{sHD}, 2
    v_add_u32 v{d}, s{sT0}, v{vC}
    s_mul_i32 s{sT0}, s{sHD}, {GW}
    s_add_u32 s{sT0}, s{sT0}, {PB+16}
    v_and_b32 v{a}, 1, v{vG4}
    v_lshrrev_b32 v{c}, 1, v{vG4}
    v_lshlrev_b32 v40, 5, v{vM15}
    v_lshl_add_u32 v40, v{a}, 4, v40           ; n*32 + (g&1)*16
    v_lshrrev_b32 v41, 1, v40
    v_add_u32 v41, 1024, v41
    v_cndmask_b32 v40, v40, v41, s[{sM0}:{sM0+1}]
    v_add_u32 v40, s{sT0}, v40
    v_lshlrev_b32 v41, 3, v{vM15}
    v_lshl_add_u32 v41, v{a}, 2, v41
    v_lshl_add_u32 v41, v{c}, 8, v41
    v_add_u32 v41, s{sT0}, v41
    v_lshlrev_b32 v42, 2, v{vM15}
    v_lshl_add_u32 v42, v{c}, 7, v42
    v_add_u32 v42, s{sT0}, v42
    v_subrev_u32 v{c}, 4, v42
    v_mov_b32 v{a}, 0
    ''')
    signal(C_TAB)
    e('s_waitcnt lgkmcnt(1)')
    A1=40; A3=41; A4=42
    for s_ in range(2):
        for ra_ in range(2):
            for rb_ in range(2):
                D = vG + 8*ra_ + 4*rb_
                e(f'v_mfma_f32_16x16x32_f16 {v(D,4)}, {v(FA+8*ra_+4*s_,4)}, {v(FB+8*rb_+4*s_,4)}, {"0" if s_==0 else v(D,4)}')
    for r in range(15): e(f'v_mul_f32 v{vG+r}, v{vG+r}, v{dt}')
    e(f'''
    @stamp m_kg1
    s_cmp_eq_u32 s{sRT}, 1
    s_cbranch_scc1 L_kgw
    ''')
    wait(C_GH, 1, addr=d, sleep=1)
    H=FA
    e(f'''
    s_mov_b32 exec_hi, 0
    ds_read_b128 {v(H,4)}, v{A1}
    ds_read_b128 {v(H+4,4)}, v{A1} offset:512
    s_mov_b64 exec, s[{sM0}:{sM0+1}]
    ds_read_b32 v{H}, v{A1}
    ds_read_b32 v{H+2}, v{A1} offset:4
    ds_read_b32 v{H+4}, v{A1} offset:256
    ds_read_b32 v{H+6}, v{A1} offset:260
    s_mov_b64 exec, -1
    ds_read_b32 v{H+8}, v{A3} offset:1536
    ds_read_b32 v{H+12}, v{A3} offset:{1536+128}
    ds_read_b32 v{H+9}, v{A4} offset:2048
    ds_read_b32 v{H+13}, v{A4} offset:{2048+64}
    ds_read_b32 v{H+10}, v{A4} offset:{2048+256}
    ds_read_b32 v{H+14}, v{A4} offset:{2048+256+64}
    ds_read_b32 v{H+11}, v{A4} offset:{2048+512}
    s_waitcnt lgkmcnt(0)
    ''')
    for r in range(15): e(f'v_add_f32 v{vG+r}, v{vG+r}, v{H+r}')
    e(f'''
    L_kgw:
    ds_write_b32 v{A3}, v{vG+8} offset:1536
    ds_write_b32 v{A3}, v{vG+12} offset:{1536+128}
    s_mov_b32 exec_hi, 0
    ds_write_b128 v{A1}, {v(vG,4)}
    ds_write_b128 v{A1}, {v(vG+4,4)} offset:512
    s_mov_b64 exec, s[{sM0}:{sM0+1}]
    ds_write2_b32 v{A1}, v{vG}, v{vG+2} offset0:0 offset1:1
    ds_write2_b32 v{A1}, v{vG+4}, v{vG+6} offset0:64 offset1:65
    s_mov_b32 exec_lo, 0xffff
    s_mov_b32 exec_hi, 0xffff
    ds_write_b32 v{A4}, v{vG+9} offset:2048
    ds_write_b32 v{A4}, v{vG+13} offset:{2048+64}
    ds_write_b32 v{A4}, v{vG+10} offset:{2048+256}
    ds_write_b32 v{A4}, v{vG+14} offset:{2048+256+64}
    s_mov_b64 exec, 1
    ds_write_b32 v{A4}, v{vG+11} offset:{2048+512}
    ds_write_b32 v{c}, v{a}
    ds_add_u32 v{d}, v{vOne} offset:{4*C_GH}
    s_mov_b64 exec, -1
    ''')
    e('@stamp m_kgen')
    xa=146; wadr=150; acc=152; QX=16; QW=48
    e(f'''
    L_q:
    s_mul_i32 s{sT0}, s{sRT}, {XH-XFL}
    s_add_u32 s{sT0}, s{sT0}, {XFL}
    v_lshlrev_b32 v{a}, 10, v{vM15}
    v_xor_b32 v{b}, v{vG4}, v{vM15}
    v_lshl_add_u32 v{a}, v{b}, 4, v{a}
    v_add_u32 v{xa}, s{sT0}, v{a}
    v_xor_b32 v{xa+1}, 64, v{xa}
    v_xor_b32 v{xa+2}, 0x80, v{xa}
    v_xor_b32 v{xa+3}, 0xc0, v{xa}
    v_bfe_u32 v{a}, v{vL}, 2, 2                ; r
    v_lshrrev_b32 v{b}, 1, v{a}
    v_and_b32 v{c}, 1, v{vG4}
    v_lshl_add_u32 v{b}, v{c}, 1, v{b}         ; swz
    v_xor_b32 v{b}, s{sHD}, v{b}
    v_lshl_add_u32 v{a}, v{vG4}, 3, v{a}       ; 8g + r
    v_lshlrev_b32 v{a}, 7, v{a}
    v_lshl_add_u32 v{a}, v{b}, 5, v{a}
    v_and_b32 v{b}, 3, v{vL}
    v_lshl_add_u32 v{a}, v{b}, 3, v{a}
    v_add_u32 v{wadr}, {WQ}, v{a}
    ''')
    def qchunk(ck):
        def rd(s):
            S = 8*ck + s
            e(f'ds_read_b64_tr_b16 {v(QW+4*(s&3),2)}, v{wadr} offset:{S*4096}')
            e(f'ds_read_b64_tr_b16 {v(QW+4*(s&3)+2,2)}, v{wadr} offset:{S*4096+512}')
            e(f'ds_read_b128 {v(QX+8*(s&3),4)}, v{xa+(s&3)} offset:{(S>>2)*256}')
            e(f'ds_read_b128 {v(QX+8*(s&3)+4,4)}, v{xa+(s&3)} offset:{(S>>2)*256+16384}')
        for s in range(3): rd(s)
        for s in range(8):
            if s+3 < 8:
                rd(s+3); e('s_waitcnt lgkmcnt(12)')
            else:
                x = 0
                if ck == 1:
                    x = 2
                    if s == 5:
                        signal(C_QA); signal(C_QH, addr=d)
                e(f's_waitcnt lgkmcnt({4*(7-s)+x})')
            z = ck == 0 and s == 0
            e(f'v_mfma_f32_16x16x32_bf16 {v(acc,4)}, {v(QW+4*(s&3),4)}, {v(QX+8*(s&3),4)}, {"0" if z else v(acc,4)}')
            e(f'v_mfma_f32_16x16x32_bf16 {v(acc+4,4)}, {v(QW+4*(s&3),4)}, {v(QX+8*(s&3)+4,4)}, {"0" if z else v(acc+4,4)}')
    e(f'''
    s_xor_b32 s{sT0}, s{sRT}, 1
    s_mul_i32 s{sT0}, s{sT0}, {4*(40-C_QH)}
    v_add_u32 v{d}, s{sT0}, v{vC}
    s_cmp_eq_u32 s{sRT}, 1
    s_cbranch_scc1 L_qh
    ''')
    wait(C_T2, 1)
    wait(C_QH, 6)
    e('s_setprio 3')
    e('L_qh:')
    wait(C_T0, 3, sleep=1)
    e('@stamp m_t0')
    qchunk(0)
    e('@stamp m_q0')
    wait(C_T1, 1, sleep=1)
    e('@stamp m_t1')
    qchunk(1)
    e(f'''
    s_mov_b32 s{sT0}, {f32(0.25*LOG2E)}
    s_mov_b32 s{sFB}, 0
    s_mov_b32 s{sM0}, 0xffff
    s_mov_b32 s{sM0+1}, 0xffff
    s_xor_b32 s{sRT}, s{sRT}, s{sKAP}
    s_xor_b32 s{sRT}, s{sRT}, 1
    s_lshl_b32 s{sT1}, s{sRB}, 1
    s_add_u32 s{sT1}, s{sT1}, s{sRT}
    s_lshl_b32 s{sT1}, s{sT1}, 5
    s_lshl_b32 s{sT2}, s{sCB}, 2
    s_add_u32 s{sT1}, s{sT1}, s{sT2}
    s_add_u32 s{sT1}, s{sT1}, s{sHD}
    s_lshl_b32 s{sT1}, s{sT1}, 10
    s_add_u32 s{sOB}, s{sT1}, {WS_O}
    ''')
    for r in range(8): e(f'v_mul_f32 v{acc+r}, s{sT0}, v{acc+r}')
    e(f'''
    v_cvt_pk_bf16_f32 v{vQ}, v{acc}, v{acc+1}
    v_cvt_pk_bf16_f32 v{vQ+1}, v{acc+2}, v{acc+3}
    v_cvt_pk_bf16_f32 v{vQ+2}, v{acc+4}, v{acc+5}
    v_cvt_pk_bf16_f32 v{vQ+3}, v{acc+6}, v{acc+7}
    v_permlane16_swap_b32 v{vQ}, v{vQ+2}
    v_permlane16_swap_b32 v{vQ+1}, v{vQ+3}
    ''')
    e('@stamp m_q1')
    wait(C_KV, 1, sleep=1)
    e(f'''
    @stamp m_att0
    s_setprio 1
    s_cmp_lt_u32 s{sM}, 4
    s_cbranch_scc1 L_pr
    s_setprio 3
    L_pr:
    s_mov_b32 s{sCNT}, 0
    v_mov_b32 v{ad}, v{vL16}
    v_add_u32 v{kvf}, {4*(C_KV+1)}, v{vC}
    ds_read_b128 {v(KF+8,4)}, v{ad}
    ds_read_b128 {v(KF,4)}, v{ad} offset:2048
    ds_read_b128 {v(KF+4,4)}, v{ad} offset:4096
    s_mov_b64 exec, s[{sM0}:{sM0+1}]
    ds_read_b128 {v(VF,4)}, v{ad} offset:1024
    ds_read_b128 {v(VF+4,4)}, v{ad} offset:1280
    ds_read_b128 {v(VF+8,4)}, v{ad} offset:3072
    ds_read_b128 {v(VF+12,4)}, v{ad} offset:3328
    s_mov_b64 exec, -1
    s_cmp_lg_u32 s{sFB}, 0
    s_waitcnt lgkmcnt(6)
    s_cbranch_scc1 L_setm
    v_mfma_f32_32x32x16_bf16 {v(S0,16)}, {v(KF+8,4)}, {v(vQ,4)}, 0
    v_max3_f32 v{mx}, v{S0}, v{S0+1}, v{S0+2}
    ''')
    for i in range(3,15,2): e(f'v_max3_f32 v{mx}, v{mx}, v{S0+i}, v{S0+i+1}')
    e(f'''
    v_max_f32 v{mx}, v{mx}, v{S0+15}
    L_setm:
    v_mov_b32 v{a}, v{mx}
    v_permlane32_swap_b32 v{a}, v{mx}
    v_max_f32 v{mx}, v{mx}, v{a}
    ''')
    for i in range(16): e(f'v_sub_f32 v{NM+i}, 0, v{mx}')
    e(f'''
    v_mfma_f32_32x32x16_bf16 {v(S0,16)}, {v(KF+8,4)}, {v(vQ,4)}, {v(NM,16)}
    s_nop 9
    .p2align 6
    L_loop:
    ''')
    def step(tt):
        par = tt & 1; pr = tt >> 1; st = pr & 1
        Sc = S0 if par == 0 else S1
        Sn = S1 if par == 0 else S0
        Kn = KF + 8*st + 4*par
        Vc = VF + 16*st + 8*par
        Vp = (VF + 16*st + 4) if par == 1 else (VF + 16*(1-st) + 12)
        ex = lambda i: e(f'v_exp_f32 v{Sc+i}, v{Sc+i}')
        cv = lambda i: e(f'v_cvt_pk_bf16_f32 v{P+i}, v{Sc+2*i}, v{Sc+2*i+1}')
        if par == 0: e('s_waitcnt lgkmcnt(0)')
        e(f'v_mfma_f32_32x32x16_bf16 {v(Sn,16)}, {v(Kn,4)}, {v(vQ,4)}, {v(NM,16)}')
        ex(0); ex(1); ex(2); ex(3)
        e(f'v_mfma_f32_32x32x16_bf16 {v(O,16)}, {v(Vp,4)}, {v(P+4,4)}, {v(O,16)}')
        if tt == 4:
            e(f's_cmp_lg_u32 s{sWT}, 1')
            e(f's_cbranch_scc1 L_chk')
            e(f'L_chk_ret:')
        if par == 0:
            o = 1-st
            e(f'ds_read_b128 {v(KF+8*o,4)}, v{ad} offset:{(tt+3)*2048}')
            e(f'ds_read_b128 {v(KF+8*o+4,4)}, v{ad} offset:{(tt+4)*2048}')
            e(f's_mov_b64 exec, s[{sM0}:{sM0+1}]')
            e(f'ds_read_b128 {v(VF+16*o,4)}, v{ad} offset:{(tt+2)*2048+1024}')
            e(f'ds_read_b128 {v(VF+16*o+4,4)}, v{ad} offset:{(tt+2)*2048+1280}')
            e(f'ds_read_b128 {v(VF+16*o+8,4)}, v{ad} offset:{(tt+3)*2048+1024}')
            e(f'ds_read_b128 {v(VF+16*o+12,4)}, v{ad} offset:{(tt+3)*2048+1280}')
            e(f's_mov_b64 exec, -1')
            if tt == 0: e(f'ds_read_b32 v{fl}, v{kvf}')
        if tt == 3: e(f'v_readfirstlane_b32 s{sWT}, v{fl}')
        cv(0); ex(4); ex(5); cv(1); ex(6); ex(7); cv(2); ex(8); cv(3); ex(9); ex(10)
        e(f'v_mfma_f32_32x32x16_bf16 {v(O,16)}, {v(Vc,4)}, {v(P,4)}, {v(O,16)}')
        ex(11); cv(4); ex(12); ex(13); cv(5); ex(14); ex(15); cv(6); cv(7)
    for tt in range(8): step(tt)
    e(f'''
    v_add_u32 v{ad}, 0x4000, v{ad}
    v_add_u32 v{kvf}, 4, v{kvf}
    ''')
    if DIAG:
        e(f'''
        s_memtime s[94:95]
        s_add_u32 s{sT5}, s{sCNT}, 48
        s_waitcnt lgkmcnt(0)
        s_mov_b32 m0, s{sT5}
        v_writelane_b32 v167, s94, m0
        ''')
    e(f'''
    s_add_u32 s{sCNT}, s{sCNT}, 1
    s_cmp_lt_u32 s{sCNT}, 8
    s_cbranch_scc1 L_loop
    v_mfma_f32_32x32x16_bf16 {v(O,16)}, {v(VF+28,4)}, {v(P+4,4)}, {v(O,16)}
    s_mov_b32 s{sT0}, {f32(2.0**40)}
    s_waitcnt vmcnt(0) lgkmcnt(0)
    s_nop 9
    v_rcp_f32 v{S0}, v{O+8}
    v_cmp_nlt_f32 vcc, v{O+8}, s{sT0}
    v_mul_f32 v{S0}, v{S0}, v146
    ''')
    for i in range(8): e(f'v_mul_f32 v{O+i}, v{O+i}, v{S0}')
    e(f'''
    v_add_f32 v{S0+2}, v{O+3}, v{O+4}
    v_add_f32 v{S0+3}, v{O+5}, v{O+6}
    v_add_f32 v{S0+2}, v{S0+2}, v{O+7}
    v_add_f32 v{S0+3}, v{S0+3}, v{O}
    v_add_f32 v{S0+2}, v{S0+2}, v{O+1}
    v_add_f32 v{S0+3}, v{S0+3}, v{O+2}
    v_add_f32 v{S0+2}, v{S0+2}, v{S0+3}
    v_mov_b32 v{S0+4}, 0x207
    v_cmp_class_f32 s[{sM1}:{sM1+1}], v{S0+2}, v{S0+4}
    s_or_b64 vcc, vcc, s[{sM1}:{sM1+1}]
    s_cbranch_vccz L_att_ok
    s_cmp_lg_u32 s{sFB}, 0
    s_cbranch_scc1 L_att_ok
    s_mov_b32 s{sFB}, 1
    v_mov_b32 v{ad}, v{vL16}
    v_mov_b32 v{mx}, 0xff7fffff
    s_mov_b32 s{sCNT}, 0
    L_maxloop:
    ds_read_b128 {v(KF,4)}, v{ad}
    v_add_u32 v{ad}, 2048, v{ad}
    s_waitcnt lgkmcnt(0)
    v_mfma_f32_32x32x16_bf16 {v(S0,16)}, {v(KF,4)}, {v(vQ,4)}, 0
    ''')
    for i in range(0,16,2): e(f'v_max3_f32 v{mx}, v{mx}, v{S0+i}, v{S0+i+1}')
    e(f'''
    s_add_u32 s{sCNT}, s{sCNT}, 1
    s_cmp_lt_u32 s{sCNT}, 64
    s_cbranch_scc1 L_maxloop
    ''')
    for i in range(16): e(f'v_mov_b32 v{O+i}, 0')
    for i in range(4): e(f'v_mov_b32 v{P+4+i}, 0')
    e('s_branch L_pr')
    e('L_chk:')
    wait(0, 1, addr=kvf, sleep=1)
    e(f'''
    s_cmp_lt_u32 s{sWT}, 2
    s_cbranch_scc1 L_chk_ret
    s_lshl_b32 s{sT0}, s{sRB}, 8
    s_lshl_b32 s{sT1}, s{sRT}, 7
    s_add_u32 s{sT0}, s{sT0}, s{sT1}
    s_add_u32 s{sT0}, s{sT0}, {WS_G}
    v_and_b32 v{a}, 31, v{vL}
    v_lshlrev_b32 v{a}, 2, v{a}
    buffer_load_dword v146, v{a}, {srd(S_WS)}, s{sT0} offen sc1
    ds_read_b32 v147, v{vC} offset:{4*C_KVOK}
    ''')
    wait(C_ST, 1, sleep=4)
    e(f'''
    v_readfirstlane_b32 s{sSC}, v147
    s_setprio 0
    s_branch L_chk_ret
    L_att_ok:
    @stamp m_att1
    ''')
    e(f's_mov_b32 s{sT0}, 0xfffffffe')
    for i in range(4):
        e(f'v_cvt_pk_bf16_f32 v{P+i}, v{O+2*i}, v{O+2*i+1}')
        e(f'v_min_u32 v{P+i}, s{sT0}, v{P+i}')
    e(f'''
    s_cmp_eq_u32 s{sSC}, 1
    s_cbranch_scc1 L_oloc
    buffer_store_dwordx4 {v(P,4)}, v{vL16}, {srd(S_WS)}, s{sOB} offen sc1
    s_branch L_ost
    L_oloc:
    buffer_store_dwordx4 {v(P,4)}, v{vL16}, {srd(S_WS)}, s{sOB} offen
    L_ost:
    ''')
    e(f'''
    s_lshl_b32 s{sT0}, s{sRB}, 1
    s_and_b32 s{sT1}, s{sCB}, 1
    s_add_u32 s{sT0}, s{sT0}, s{sT1}
    s_lshl_b32 s{sT0}, s{sT0}, 15
    s_lshl_b32 s{sT1}, s{sM}, 12
    s_add_u32 s{sT0}, s{sT0}, s{sT1}
    s_add_u32 s{sT0}, s{sT0}, {WS_O}
    v_add_u32 v{a}, s{sT1}, v{vL16}
    s_lshl_b32 s{sT1}, s{sM}, 2
    v_add_u32 v{b}, s{sT1}, v{vC}
    ''')
    e('s_barrier')
    e('@stamp m_all')
    e('L_opoll:')
    for i in range(4):
        e(f'buffer_load_dwordx4 {v(S0+4*i,4)}, v{vL16}, {srd(S_WS)}, s{sT0} offen offset:{i*1024} sc1')
    e(f's_waitcnt vmcnt(0)')
    e(f'v_max3_u32 v{c}, v{S0}, v{S0+1}, v{S0+2}')
    for i in range(3,15,2): e(f'v_max3_u32 v{c}, v{c}, v{S0+i}, v{S0+i+1}')
    e(f'''
    v_max_u32 v{c}, v{c}, v{S0+15}
    v_cmp_eq_u32 vcc, -1, v{c}
    s_cbranch_vccz L_ook
    s_sub_u32 s{sTO}, s{sTO}, 16
    s_cbranch_scc0 L_opoll
    s_mov_b32 s{sTO}, 0
    L_ook:
    ''')
    for i in range(4):
        e(f'ds_write_b128 v{a}, {v(S0+4*i,4)} offset:{i*1024}')
    e('s_waitcnt lgkmcnt(0)')
    e('s_barrier')
    e('@stamp m_end')
    if e.probe:
        e(f'''
        s_cmp_lt_u32 s{sM}, 4
        s_cbranch_scc1 L_end
        s_memrealtime s[60:61]
        s_waitcnt lgkmcnt(0)
        s_mul_i32 s63, s63, {PK}
        s_min_u32 s63, s63, 20000
        s_mov_b32 s62, s60
        L_probe:
        s_memrealtime s[60:61]
        s_waitcnt lgkmcnt(0)
        s_sub_u32 s60, s60, s62
        s_cmp_lt_u32 s60, s63
        s_cbranch_scc1 L_probe
        ''')
    finish()
    e('''
    L_end:
    s_endpgm
    ''')
    return e.text()

HEAD = open('cdna_kernels/%s.s.ref' % NAME).read().split('; Override launch geometry')[0]
def full():
    body = gen()
    s = HEAD
    s += f'; @launch grid=(256,1,1) block=(768,1,1) lds={LDS_BYTES}\n'
    s += f'''.amdgcn_target "amdgcn-amd-amdhsa--gfx950"
.text
.globl {NAME}_kernel
.p2align 8
.type {NAME}_kernel,@function
{NAME}_kernel:
{body}
.section .rodata,"a"
.p2align 6
.amdhsa_kernel {NAME}_kernel
  .amdhsa_next_free_vgpr 168
  .amdhsa_next_free_sgpr 102
  .amdhsa_accum_offset 168
  .amdhsa_group_segment_fixed_size 0
  .amdhsa_kernarg_size 128
  .amdhsa_user_sgpr_count 2
  .amdhsa_user_sgpr_kernarg_segment_ptr 1
  .amdhsa_system_sgpr_workgroup_id_x 1
.end_amdhsa_kernel
'''
    return s
if __name__ == '__main__':
    if len(sys.argv) > 1 and sys.argv[1].startswith('diag'):
        DIAG = 1
        open('dev/%s.s' % sys.argv[1], 'w').write(full())
        import json; json.dump(gen.e.stamps, open('diag.json','w'))
    else:
        out = sys.argv[1] if len(sys.argv) > 1 else f'cdna_kernels/{NAME}.s'
        open(out, 'w').write(full())
```

```python
import sys, struct, math
from asmlib import Asm

NAME = 'gated_mix__grouped_kv_mqa__ssm_conv_s4d__prompt'
def f32(x): return '0x%08x' % struct.unpack('<I', struct.pack('<f', x))[0]
def f32v(x): return struct.unpack('<f', struct.pack('<f', x))[0]

WS_KV = 0x0
WS_G  = 0x20000
FST = 0x1100
WS_F1 = 0x30000
WS_F2 = 0x40000
WS_GEN = 0x50000
LDELTA = 0x80000
WS_O  = 0x100000
WS_B  = 0x400000
WS_XT = 0x600000
WS_DIAG = 0x800000
WS_SIZE = 0x900000
POOL = 131072
PA = 0; XH = 0x4000; XFL = 0xC000; WQ = 0x14000
KREV = POOL; KREV_CH = 8320; KREV_O = 4160
PB = POOL + 16640; GW = 2592
XC = PB; XC_CH = 4608
PC = POOL + 31488
PG = PC + 256
LDS_BYTES = 163840
C_ISS,C_T0,C_T1,C_QH,C_QA,C_TAB,C_T2,C_KREV,C_ST,C_KVOK,C_KISS = range(11)
C_XT=11; C_CR=13; C_CW=15; C_CONV=17; C_GH=18; C_KV=24

P_X=4; P_WQ=6; P_WK=8; P_WV=10; P_WO=12; P_LAR=16; P_AIM=18; P_CR=20; P_CI=22; P_LDT=24; P_DSK=26; P_GATE=28; P_OUT=30; P_DBG=32; P_WS=34
S_X=36; S_WQ=40; S_WKV=44; S_WS=48; S_OUT=52; S_GATE=56; S_DBG=60; S_WO=64
sW=68; sRB=69; sCB=70; sD0=71; sLDT=72; sDSK=73; sT0=74; sT1=75; sT2=76; sT3=77; sRT=78; sHD=79; sM=80; sCNT=81; sFB=82; sTO=83
sM0=84; sM1=86
sOB=88; sT4=89; sT5=90; sSC=91; sSCI=92; sWT=93
sCH=96; sHF=97; sKAP=98; sNON=99; sPOS=100; sXCD=101

def srd(n): return f's[{n}:{n+3}]'
def sp(n): return f's[{n}:{n+1}]'
def v(n, k=1): return f'v{n}' if k == 1 else f'v[{n}:{n+k-1}]'

LOG2E = 1.4426950408889634
L2E_HI = f32v(LOG2E); L2E_LO = LOG2E - L2E_HI
INV2PI = 1.0/(2*math.pi); I2P_HI = f32v(INV2PI); I2P_LO = INV2PI - I2P_HI

DIAG = False
def gen():
    e = Asm(DIAG)
    gen.e = e
    import os
    e.probe = os.environ.get('PROBE')
    PK = int(os.environ.get('PK','4'))
    vL=1; vL16=2; vC=3; vOne=166; vWT=165
    uid = [0]
    def wait(c, target, addr=vC, sleep=1):
        uid[0] += 1; u = uid[0]
        e(f'''
        L_wt{u}:
        ds_read_b32 v{vWT}, v{addr} offset:{4*c}
        s_waitcnt lgkmcnt(0)
        v_readfirstlane_b32 s{sWT}, v{vWT}
        s_cmp_ge_u32 s{sWT}, {target}
        s_cbranch_scc1 L_wd{u}
        s_sleep {sleep}
        s_sub_u32 s{sTO}, s{sTO}, 1
        s_cbranch_scc0 L_wt{u}
        s_mov_b32 s{sTO}, 0
        L_wd{u}:
        ''')
    def signal(c, addr=vC):
        e(f'''
        s_mov_b64 exec, 1
        ds_add_u32 v{addr}, v{vOne} offset:{4*c}
        s_mov_b64 exec, -1
        ''')
    def mk(S, P, nbytes):
        e(f'''
        s_mov_b32 s{S}, s{P}
        s_and_b32 s{S+1}, s{P+1}, 0xffff
        s_mov_b32 s{S+2}, {nbytes}
        s_mov_b32 s{S+3}, 0x00020000
        ''')
    def finish():
        if DIAG == 1:
            e(f'''
            @rt 63
            s_getreg_b32 s94, hwreg(HW_REG_XCC_ID)
            v_writelane_b32 v167, s94, 62
            v_writelane_b32 v167, s{sTO}, 61
            s_mul_i32 s{sT0}, s2, 3072
            s_lshl_b32 s{sT1}, s{sW}, 8
            s_add_u32 s{sT0}, s{sT0}, s{sT1}
            s_add_u32 s{sT0}, s{sT0}, {WS_DIAG}
            v_lshlrev_b32 v{vWT}, 2, v{vL}
            buffer_store_dword v167, v{vWT}, {srd(S_WS)}, s{sT0} offen
            ''')
        e('s_endpgm')
    vM15=4; vG4=5; a=6; b=7; c=8; d=9
    e(f'''
    s_cmp_ge_u32 s2, 256
    s_cbranch_scc1 L_end
    s_load_dwordx16 s[4:19], s[0:1], 0
    s_load_dwordx16 s[20:35], s[0:1], 64
    @stamp start
    @rt 60
    v_and_b32 v{vL}, 63, v0
    v_lshrrev_b32 v{a}, 6, v0
    v_lshlrev_b32 v{vL16}, 4, v{vL}
    v_readfirstlane_b32 s{sW}, v{a}
    v_mov_b32 v{vC}, {PC}
    v_lshl_add_u32 v{a}, v{vL}, 2, v{vC}
    v_mov_b32 v{b}, 0
    ds_write_b32 v{a}, v{b}
    v_mov_b32 v{vOne}, 1
    s_mov_b32 s{sTO}, 0x100000
    s_and_b32 s{sT0}, s2, 7
    s_lshr_b32 s{sT1}, s2, 3
    s_lshr_b32 s{sT2}, s{sT1}, 3
    s_lshl_b32 s{sRB}, s{sT0}, 2
    s_add_u32 s{sRB}, s{sRB}, s{sT2}
    s_and_b32 s{sCB}, s{sT1}, 7
    s_lshl_b32 s{sD0}, s{sT0}, 6
    s_lshl_b32 s{sT1}, s{sT1}, 1
    s_add_u32 s{sD0}, s{sD0}, s{sT1}
    s_lshr_b32 s{sKAP}, s{sCB}, 2
    s_mov_b32 s{sXCD}, s{sT0}
    v_and_b32 v{vM15}, 15, v{vL}
    v_lshrrev_b32 v{vG4}, 4, v{vL}
    s_bfe_u32 s{sT0}, s{sW}, 0x10001
    s_add_u32 s{sT0}, s{sD0}, s{sT0}
    s_lshl_b32 s{sT0}, s{sT0}, 8
    s_and_b32 s{sT1}, s{sW}, 1
    s_lshl_b32 s{sT1}, s{sT1}, 6
    s_add_u32 s{sT0}, s{sT0}, s{sT1}
    s_lshr_b32 s{sT1}, s{sW}, 3
    s_lshl_b32 s{sT1}, s{sT1}, 7
    s_add_u32 s{sT0}, s{sT0}, s{sT1}
    v_and_b32 v{a}, 31, v{vL}
    v_lshlrev_b32 v{a}, 1, v{a}
    v_add_u32 v{a}, s{sT0}, v{a}
    s_cmp_lt_u32 s{sW}, 4
    s_waitcnt lgkmcnt(0)
    s_cbranch_scc1 L_nopar
    global_load_ushort v14, v{a}, {sp(P_LAR)}
    global_load_ushort v15, v{a}, {sp(P_AIM)}
    global_load_ushort v16, v{a}, {sp(P_CR)}
    global_load_ushort v17, v{a}, {sp(P_CI)}
    L_nopar:
    s_barrier
    ''')
    mk(S_X, P_X, 2097152)
    mk(S_WS, P_WS, WS_SIZE)
    mk(S_WQ, P_WQ, 524288)
    mk(S_GATE, P_GATE, 1024)
    e(f'''
    s_bitcmp1_b32 s{sCB}, 0
    s_cselect_b32 s{S_WKV}, s{P_WV}, s{P_WK}
    s_cselect_b32 s{S_WKV+1}, s{P_WV+1}, s{P_WK+1}
    s_and_b32 s{S_WKV+1}, s{S_WKV+1}, 0xffff
    s_mov_b32 s{S_WKV+2}, 16384
    s_mov_b32 s{S_WKV+3}, 0x00020000
    s_lshl_b32 s{sT4}, s{sD0}, 1
    s_load_dword s{sLDT}, {sp(P_LDT)}, s{sT4}
    s_load_dword s{sDSK}, {sp(P_DSK)}, s{sT4}
    s_cmp_ge_u32 s{sW}, 4
    s_cbranch_scc1 L_main
    s_setprio 3
    v_mov_b32 v11, {WS_GEN}
    buffer_load_dword v164, v11, {srd(S_WS)}, 0 offen sc1
    s_cmp_eq_u32 s{sW}, 1
    s_cbranch_scc1 L_h1
    s_cmp_ge_u32 s{sW}, 2
    s_cbranch_scc1 L_h23
    ''')
    XF=16; WF=80; GF=112; dk=144; dg=148; xk=152
    def xrows(lbl, n):
        e(f's_mov_b32 s{sCNT}, 0')
        e(f'L_xp{lbl}:')
        for j in range(16):
            e(f'''
            s_mov_b32 m0, s{sT1}
            v_xor_b32 v{a}, {16*j}, v{vL16}
            buffer_load_dwordx4 v{a}, {srd(S_X)}, s{sT0} offen lds
            s_add_u32 s{sT1}, s{sT1}, 1024
            s_add_u32 s{sT0}, s{sT0}, 1024
            ''')
        if n > 16:
            e(f'''
            s_add_u32 s{sCNT}, s{sCNT}, 1
            s_cmp_lt_u32 s{sCNT}, 2
            s_cbranch_scc1 L_xp{lbl}
            ''')
    e(f'''
    s_lshl_b32 s{sT0}, s{sRB}, 16
    s_lshr_b32 s{sT1}, s{sCB}, 1
    s_lshl_b32 s{sT1}, s{sT1}, 14
    s_add_u32 s{sT0}, s{sT0}, s{sT1}          ; row0*1024
    s_and_b32 s{sT1}, s{sT1}, 0x4000
    s_add_u32 s{sT1}, s{sT1}, {XH}
    v_lshlrev_b32 v{xk}, 10, v{vM15}
    v_xor_b32 v{b}, v{vG4}, v{vM15}
    v_lshl_add_u32 v{xk}, v{b}, 4, v{xk}
    v_add_u32 v{xk}, s{sT1}, v{xk}
    ''')
    xrows('k', 16)
    e(f'''
    s_mov_b32 m0, {PG}
    s_mov_b32 s{sT1}, 0
    buffer_load_dwordx4 v{vL16}, {srd(S_GATE)}, 0 offen lds
    v_xor_b32 v{xk+1}, 64, v{xk}
    v_xor_b32 v{xk+2}, 0x80, v{xk}
    v_xor_b32 v{xk+3}, 0xc0, v{xk}
    ''')
    for s4 in range(4):
        e(f's_mov_b32 m0, {PA + s4*4096}')
        for i in range(4):
            e(f'buffer_load_dwordx4 v{vL16}, {srd(S_WKV)}, s{sT1} offen offset:{i*1024} lds')
        e(f's_add_u32 s{sT1}, s{sT1}, 4096')
    e(f'''
    @stamp h_issued
    v_lshlrev_b32 v{a}, 8, v{vG4}
    v_lshl_add_u32 v{a}, v{vM15}, 3, v{a}
    v_add_u32 v{a}, {PA}, v{a}                ; PA + g*256 + (l&15)*8
    v_lshlrev_b32 v{b}, 4, v{vG4}
    v_add_u32 v{b}, {PG}, v{b}
    s_lshl_b32 s{sT0}, s{sRB}, 2
    s_lshr_b32 s{sT1}, s{sCB}, 1
    s_add_u32 s{sT0}, s{sT0}, s{sT1}          ; kb
    s_lshr_b32 s{sT1}, s{sT0}, 1
    s_lshl_b32 s{sT1}, s{sT1}, 11
    s_and_b32 s{sT2}, s{sT0}, 1
    s_lshl_b32 s{sT2}, s{sT2}, 8
    s_add_u32 s{sT1}, s{sT1}, s{sT2}
    s_and_b32 s{sT2}, s{sCB}, 1
    s_lshl_b32 s{sT2}, s{sT2}, 10
    s_add_u32 s{sT1}, s{sT1}, s{sT2}
    s_lshl_b32 s{sT0}, s{sT0}, 6
    s_add_u32 s{sT0}, s{sT0}, {WS_G}
    v_and_b32 v{c}, 1, v{vG4}
    v_lshrrev_b32 v{d}, 1, v{vG4}
    s_add_u32 s{sT2}, s{sT1}, {LDELTA}
    s_mov_b32 s{sT3}, {LDELTA}
    s_mul_i32 s{sT4}, s{sXCD}, {FST}
    s_lshr_b32 s{sT5}, s2, 3
    s_lshl_b32 s{sT5}, s{sT5}, 2
    s_add_u32 s{sT4}, s{sT4}, s{sT5}
    s_add_u32 s{sT4}, s{sT4}, {WS_F1}
    v_mov_b32 v11, s{sT4}
    s_waitcnt vmcnt(33) lgkmcnt(0)
    ''')
    def nonce():
        e(f'''
        v_readfirstlane_b32 s{sNON}, v164
        s_mul_i32 s{sNON}, s{sNON}, 0x9e3779b1
        s_add_u32 s{sNON}, s{sNON}, 0x7f4a7c15
        ''')
    nonce()
    e(f'''
    s_getreg_b32 s{sT4}, hwreg(HW_REG_XCC_ID, 0, 4)
    s_xor_b32 s{sT4}, s{sT4}, s{sNON}
    v_mov_b32 v12, s{sT4}
    s_waitcnt vmcnt(17)
    ''')
    signal(C_T0)
    for s_ in range(16):
        e(f'ds_read_b128 {v(XF+4*s_,4)}, v{xk+(s_&3)} offset:{(s_>>2)*256}')
    signal(C_QH)
    e(f'''
    s_bitcmp1_b32 s{sCB}, 0
    s_cbranch_scc1 L_kv_v
    ''')
    def kvloop(isv):
        n = 2 if isv else 3
        for g in range(5):
            if g < 4:
                e(f's_waitcnt vmcnt({4*(3-g)})')
                for s in range(4*g, 4*g+4):
                    bi = s % 8
                    e(f'ds_read_b64_tr_b16 {v(WF+4*bi,2)}, v{a} offset:{s*1024}')
                    e(f'ds_read_b64_tr_b16 {v(WF+4*bi+2,2)}, v{a} offset:{s*1024+128}')
                    if not isv: e(f'ds_read_b128 {v(GF+4*bi,4)}, v{b} offset:{s*64}')
            if g >= 1:
                if g < 4: e(f's_waitcnt lgkmcnt({4*n})')
                for p in range(4*g-4, 4*g):
                    if g == 4: e(f's_waitcnt lgkmcnt({n*(15-p)})')
                    mm(p, p % 8, isv)
    def mm(p, pb, isv):
        cc = '0' if p == 0 else v(dk,4)
        if isv:
            e(f'v_mfma_f32_16x16x32_bf16 {v(dk,4)}, {v(XF+4*p,4)}, {v(WF+4*pb,4)}, {cc}')
        else:
            e(f'v_mfma_f32_16x16x32_bf16 {v(dk,4)}, {v(WF+4*pb,4)}, {v(XF+4*p,4)}, {cc}')
            e(f'v_mfma_f32_16x16x32_bf16 {v(dg,4)}, {v(GF+4*pb,4)}, {v(XF+4*p,4)}, {"0" if p==0 else v(dg,4)}')
    kvloop(False)
    e(f'''
    v_lshlrev_b32 v{a}, 9, v{d}
    v_lshl_add_u32 v{a}, v{c}, 3, v{a}        ; K: (g>>1)*512 + (g&1)*8
    v_lshl_add_u32 v{a}, v{vM15}, 4, v{a}
    v_lshlrev_b32 v{b}, 2, v{vL}
    v_cvt_pk_bf16_f32 v{dk}, v{dk}, v{dk+1}
    v_cvt_pk_bf16_f32 v{dk+1}, v{dk+2}, v{dk+3}
    buffer_store_dwordx2 {v(dk,2)}, v{a}, {srd(S_WS)}, s{sT2} offen
    buffer_store_dwordx2 {v(dk,2)}, v{a}, {srd(S_WS)}, s{sT1} offen sc1
    v_cvt_pk_bf16_f32 v{dg}, v{dg}, v{dg}
    v_lshlrev_b32 v{dg}, 16, v{dg}
    v_mul_f32 v{dg}, {f32(-LOG2E)}, v{dg}
    v_exp_f32 v{dg}, v{dg}
    v_add_f32 v{dg}, 1.0, v{dg}
    v_rcp_f32 v{dg}, v{dg}
    v_cvt_pk_bf16_f32 v{dg}, v{dg}, v{dg}
    v_lshlrev_b32 v{dg}, 16, v{dg}
    s_mov_b64 exec, 1
    s_waitcnt vmcnt(1)
    buffer_store_dword v12, v11, {srd(S_WS)}, s{sT3} offen
    s_mov_b64 exec, 0xffff
    buffer_store_dword v{dg}, v{b}, {srd(S_WS)}, s{sT0} offen sc1
    s_mov_b64 exec, -1
    s_branch L_kv_d
    L_kv_v:
    ''')
    kvloop(True)
    e(f'''
    v_lshlrev_b32 v{a}, 9, v{c}
    v_lshl_add_u32 v{a}, v{d}, 3, v{a}        ; V: (g&1)*512 + (g>>1)*8
    v_lshl_add_u32 v{a}, v{vM15}, 4, v{a}
    v_cvt_pk_bf16_f32 v{dk}, v{dk}, v{dk+1}
    v_cvt_pk_bf16_f32 v{dk+1}, v{dk+2}, v{dk+3}
    buffer_store_dwordx2 {v(dk,2)}, v{a}, {srd(S_WS)}, s{sT2} offen
    buffer_store_dwordx2 {v(dk,2)}, v{a}, {srd(S_WS)}, s{sT1} offen sc1
    s_mov_b64 exec, 1
    s_waitcnt vmcnt(1)
    buffer_store_dword v12, v11, {srd(S_WS)}, s{sT3} offen
    s_mov_b64 exec, -1
    L_kv_d:
    @stamp h_a
    ''')
    signal(C_KV+8)
    e(f'''
    s_mov_b64 exec, 1
    s_waitcnt vmcnt(0)
    buffer_store_dword v12, v11, {srd(S_WS)}, 0 offen sc1
    s_mov_b64 exec, -1
    @stamp h_b
    ''')
    def gpoll(lbl, sbase, sleep):
        e(f'''
        v_and_b32 v{a}, 31, v{vL}
        v_lshlrev_b32 v{a}, 2, v{a}
        L_poll{lbl}:
        buffer_load_dword v{b}, v{a}, {srd(S_WS)}, s{sbase} offen sc1
        s_waitcnt vmcnt(0)
        v_xor_b32 v{b}, s{sNON}, v{b}
        v_cmp_lt_u32 vcc, 15, v{b}
        s_cbranch_vccz L_polled{lbl}
        s_sleep {sleep}
        s_sub_u32 s{sTO}, s{sTO}, 16
        s_cbranch_scc0 L_poll{lbl}
        s_mov_b32 s{sTO}, 0
        L_polled{lbl}:
        ''')
    e(f's_mov_b32 s{sPOS}, 2')
    e('s_branch L_h023')
    e(f'''
    L_h1:
    s_lshl_b32 s{sT0}, s{sRB}, 16
    s_lshr_b32 s{sT1}, s{sCB}, 1
    s_xor_b32 s{sT1}, s{sT1}, 1
    s_lshl_b32 s{sT1}, s{sT1}, 14
    s_add_u32 s{sT0}, s{sT0}, s{sT1}
    s_and_b32 s{sT1}, s{sT1}, 0x4000
    s_add_u32 s{sT1}, s{sT1}, {XH}
    ''')
    xrows('h', 16)
    signal(C_ISS)
    e('@stamp h_issued')
    TR=16; T2=24
    e(f'''
    v_bfe_u32 v{a}, v{vL}, 2, 2               ; r
    v_lshl_add_u32 v{b}, v{vG4}, 3, v{a}      ; row = 8g + r
    v_and_b32 v{c}, 15, v{b}
    s_lshl_b32 s{sT4}, s{sCB}, 3
    v_bfe_u32 v{d}, v{vL}, 1, 1
    v_or_b32 v{d}, s{sT4}, v{d}               ; c16 (q = 0)
    v_xor_b32 v{d}, v{d}, v{c}
    v_lshlrev_b32 v{d}, 4, v{d}
    v_lshl_add_u32 v{d}, v{b}, 10, v{d}
    v_and_b32 v{a}, 1, v{vL}
    v_lshl_add_u32 v{d}, v{a}, 3, v{d}
    ''')
    e('s_waitcnt vmcnt(0) lgkmcnt(0)')
    e('@stamp h_a')
    signal(C_T0)
    wait(C_QH, 1, sleep=1)
    def xtr(hog):
        for q in range(4):
            e(f'v_xor_b32 v{a}, {32*q}, v{d}')
            e(f'v_xor_b32 v{b}, {(32*q) ^ 64}, v{d}')
            e(f'ds_read_b64_tr_b16 {v(T2+8*q+4*hog,2)}, v{a} offset:{XH if hog else XFL}')
            e(f'ds_read_b64_tr_b16 {v(T2+8*q+4*hog+2,2)}, v{b} offset:{(XH if hog else XFL)+4096}')
    xtr(1)
    signal(C_QH)
    wait(C_ISS, 3, sleep=1)
    wait(C_TAB, 8, sleep=1)
    e(f'''
    s_lshl_b32 s{sT0}, s{sRB}, 16
    s_xor_b32 s{sT1}, s{sKAP}, 1
    s_lshl_b32 s{sT1}, s{sT1}, 15
    s_add_u32 s{sT0}, s{sT0}, s{sT1}
    s_mov_b32 s{sT1}, {XFL}
    ''')
    xrows('f', 32)
    e('@stamp h_b')
    nonce()
    e(f'''
    v_mov_b32 v{TR}, -1
    v_mov_b32 v{TR+1}, -1
    v_mov_b32 v{TR+2}, -1
    v_mov_b32 v{TR+3}, -1
    s_lshl_b32 s{sT0}, s{sRB}, 16
    s_lshl_b32 s{sT1}, s{sCB}, 12
    s_add_u32 s{sT0}, s{sT0}, s{sT1}
    s_add_u32 s{sT0}, s{sT0}, {WS_O}
    s_add_u32 s{sT1}, s{sT0}, 32768
    s_lshl_b32 s{sT2}, s{sD0}, 12
    s_add_u32 s{sT2}, s{sT2}, {WS_B}
    s_add_u32 s{sT3}, s{sT2}, 4096
    v_lshlrev_b32 v{c}, 12, v{vM15}
    v_lshl_add_u32 v{c}, v{vG4}, 4, v{c}
    s_lshl_b32 s{sT4}, s{sKAP}, 6
    v_add_u32 v13, s{sT4}, v{c}
    v_xor_b32 v{c}, 64, v13
    s_lshl_b32 s{sT4}, s{sCB}, 18
    s_lshl_b32 s{sT5}, s{sRB}, 7
    s_add_u32 s{sT4}, s{sT4}, s{sT5}
    s_add_u32 s{sT4}, s{sT4}, {WS_XT}
    s_waitcnt vmcnt(0)
    ''')
    signal(C_T2)
    e('@stamp h_c')
    xtr(0)
    signal(C_QA)
    wait(C_KISS, 3, sleep=3)
    for q in range(8):
        e(f'buffer_store_dwordx4 {v(T2+4*q,4)}, v{13 if q&1 else c}, {srd(S_WS)}, s{sT4} offen sc1')
        if q & 1: e(f's_add_u32 s{sT4}, s{sT4}, 65536')
    for sr in (sT0, sT1, sT2, sT3):
        for j in range(4):
            e(f'buffer_store_dwordx4 {v(TR,4)}, v{vL16}, {srd(S_WS)}, s{sr} offen offset:{j*1024} sc1')
    e(f'''
    s_mul_i32 s{sT0}, s{sCB}, {FST}
    s_lshl_b32 s{sT1}, s{sRB}, 2
    s_add_u32 s{sT0}, s{sT0}, s{sT1}
    s_add_u32 s{sT0}, s{sT0}, {WS_F2}
    v_mov_b32 v11, s{sT0}
    v_mov_b32 v{a}, s{sNON}
    s_mov_b64 exec, 1
    s_waitcnt vmcnt(0)
    buffer_store_dword v{a}, v11, {srd(S_WS)}, 0 offen sc1
    s_mov_b64 exec, -1
    ''')
    signal(C_ST)
    e('s_branch L_hkvd')
    e('L_h23:')
    e(f'''
    v_lshrrev_b32 v{a}, 3, v{vL}
    v_lshlrev_b32 v{a}, 10, v{a}
    v_and_b32 v{b}, 7, v{vL}
    v_bfe_u32 v{c}, v{vL}, 4, 1
    v_lshlrev_b32 v{c}, 1, v{c}
    v_xor_b32 v{b}, v{b}, v{c}
    v_lshl_add_u32 v{c}, v{b}, 4, v{a}
    v_xor_b32 v{d}, 64, v{c}
    s_sub_u32 s{sPOS}, s{sW}, 1               ; 1 or 2
    s_lshl_b32 s{sT0}, s{sPOS}, 2
    v_add_u32 v10, s{sT0}, v{vC}
    ''')
    wait(C_ISS, f's{sPOS}', sleep=1)
    e(f'''
    s_and_b32 s{sT2}, s{sW}, 1
    s_lshl_b32 s{sT0}, s{sT2}, 18
    s_lshl_b32 s{sT1}, s{sCB}, 7
    s_add_u32 s{sT0}, s{sT0}, s{sT1}
    s_lshl_b32 s{sT1}, s{sT2}, 15
    s_add_u32 s{sT1}, s{sT1}, {WQ}
    s_mov_b32 s{sCNT}, 0
    L_wp:
    ''')
    for j in range(4):
        e(f'''
        s_mov_b32 m0, s{sT1}
        s_add_u32 s{sT1}, s{sT1}, 1024
        buffer_load_dwordx4 v{d if j&1 else c}, {srd(S_WQ)}, s{sT0} offen lds
        s_add_u32 s{sT0}, s{sT0}, 8192
        ''')
    e(f'''
    s_add_u32 s{sCNT}, s{sCNT}, 1
    s_cmp_lt_u32 s{sCNT}, 8
    s_cbranch_scc1 L_wp
    ''')
    signal(C_ISS)
    e('@stamp h_issued')
    e('s_waitcnt vmcnt(0)')
    signal(C_ISS, addr=10)
    e('@stamp h_a')
    nonce()
    e(f's_sub_u32 s{sPOS}, s{sPOS}, 1')
    e('L_h023:')
    e(f'''
    L_kvl:
    s_add_u32 s{sT1}, s{sXCD}, s{sPOS}
    s_and_b32 s{sT1}, s{sT1}, 7
    s_mul_i32 s{sT2}, s{sT1}, {FST}
    s_add_u32 s{sT2}, s{sT2}, {WS_F1}
    s_lshl_b32 s{sT1}, s{sT1}, 14
    s_cmp_ge_u32 s{sPOS}, 3
    s_cbranch_scc1 L_kvp
    s_cmp_eq_u32 s{sPOS}, 0
    s_cbranch_scc0 L_kvw1
    ''')
    wait(C_KV+8, 1, sleep=1)
    e(f'''
    s_getreg_b32 s{sT3}, hwreg(HW_REG_XCC_ID, 0, 4)
    s_xor_b32 s{sT3}, s{sT3}, s{sNON}
    s_add_u32 s{sT4}, s{sT2}, {LDELTA}
    s_mov_b32 s{sCNT}, 0
    v_and_b32 v{a}, 31, v{vL}
    v_lshlrev_b32 v{a}, 2, v{a}
    L_lpoll:
    buffer_load_dword v{b}, v{a}, {srd(S_WS)}, s{sT4} offen sc1
    s_waitcnt vmcnt(0)
    v_cmp_ne_u32 vcc, s{sT3}, v{b}
    v_xor_b32 v{b}, s{sNON}, v{b}
    s_cbranch_vccz L_lok
    s_sleep 2
    s_add_u32 s{sCNT}, s{sCNT}, 1
    s_cmp_lt_u32 s{sCNT}, 12
    s_cbranch_scc1 L_lpoll
    s_branch L_kvp
    L_lok:
    s_add_u32 s{sT1}, s{sT1}, {LDELTA}
    @stamp h_p0
    s_branch L_kvgo
    L_kvw1:
    ''')
    wait(C_KISS, 1, sleep=1)
    e('L_kvp:')
    gpoll(1, sT2, 6)
    e(f'''
    s_cmp_eq_u32 s{sPOS}, 0
    s_cbranch_scc1 L_kvgo
    s_cmp_ge_u32 s{sPOS}, 3
    s_cbranch_scc1 L_kvw2
    ''')
    wait(C_QH, 6, sleep=1)
    e('s_branch L_kvgo')
    e('L_kvw2:')
    wait(C_QA, 9, sleep=2)
    e('L_kvgo:')
    wait(C_KISS, f's{sPOS}', sleep=1)
    e(f'''
    s_lshl_b32 s{sT0}, s{sPOS}, 14
    ''')
    for j in range(4):
        e(f's_mov_b32 m0, s{sT0}')
        for i in range(4):
            e(f'buffer_load_dwordx4 v{vL16}, {srd(S_WS)}, s{sT1} offen offset:{i*1024} sc1 lds')
        e(f's_add_u32 s{sT0}, s{sT0}, 4096')
        e(f's_add_u32 s{sT1}, s{sT1}, 4096')
    signal(C_KISS)
    e(f'''
    s_lshl_b32 s{sT0}, s{sPOS}, 2
    v_add_u32 v{d}, s{sT0}, v{vC}
    s_cmp_lg_u32 s{sPOS}, 0
    s_cbranch_scc1 L_noloc
    s_getreg_b32 s{sT1}, hwreg(HW_REG_XCC_ID, 0, 4)
    v_cmp_ne_u32 vcc, s{sT1}, v{b}
    s_and_b32 s{sT0}, s{sRB}, 3
    s_lshl_b32 s{sT0}, s{sT0}, 3
    s_lshr_b32 s{sT0}, vcc_lo, s{sT0}
    s_and_b32 s{sT0}, s{sT0}, 0xff
    s_cbranch_scc1 L_noloc
    ''')
    signal(C_KVOK)
    e('L_noloc:')
    e(f'''
    s_cmp_lg_u32 s{sPOS}, 7
    s_cbranch_scc1 L_no7
    s_mul_i32 s{sT2}, s{sXCD}, {FST}
    s_add_u32 s{sT2}, s{sT2}, {WS_F1}
    ''')
    gpoll(2, sT2, 6)
    e(f'''
    L_no7:
    s_cmp_eq_u32 s{sPOS}, 7
    s_cselect_b32 s{sT0}, 2, 1
    v_mov_b32 v{a}, s{sT0}
    s_mov_b64 exec, 1
    s_waitcnt vmcnt(0)
    ds_add_u32 v{d}, v{a} offset:{4*C_KV}
    s_mov_b64 exec, -1
    ''')
    e(f'''
    s_cmp_ge_u32 s{sPOS}, 3
    s_cbranch_scc1 L_nostamp
    @stamp h_kv0
    L_nostamp:
    s_add_u32 s{sPOS}, s{sPOS}, 3
    s_cmp_lt_u32 s{sPOS}, 8
    s_cbranch_scc1 L_kvl
    L_hkvd:
    @stamp h_kvd
    ''')
    mk(S_WO, P_WO, 524288)
    mk(S_OUT, P_OUT, 2097152)
    e(f'''
    s_lshr_b32 s{sCH}, s{sW}, 1
    s_and_b32 s{sHF}, s{sW}, 1
    s_lshl_b32 s{sT0}, s{sCH}, 2
    v_add_u32 v10, s{sT0}, v{vC}
    ''')
    import os
    if os.environ.get('SKIPH'):
        e(f'v_mov_b32 v11, 0\nv_mov_b32 v{d}, 0\ns_branch L_hfin')
    wait(C_QA, 9, sleep=4)
    e(f'''
    s_cmp_eq_u32 s{sW}, 1
    s_cbranch_scc1 L_sg1
    s_cmp_eq_u32 s{sW}, 2
    s_cbranch_scc1 L_sg2
    s_cmp_eq_u32 s{sW}, 3
    s_cbranch_scc1 L_sg3
    v_mov_b32 v{a}, 0
    v_mov_b32 v{b}, 0
    v_lshlrev_b32 v11, 3, v{vL}
    v_add_u32 v{c}, {KREV+4096}, v11
    v_sub_u32 v11, {KREV+4088}, v11
    v_add_u32 v{d}, {PB+12}, v{vL16}
    s_mov_b64 exec, 0xff
    ds_write_b64 v{c}, {v(a,2)}
    ds_write_b64 v{c}, {v(a,2)} offset:{KREV_O}
    ds_write_b64 v{c}, {v(a,2)} offset:{KREV_CH}
    ds_write_b64 v{c}, {v(a,2)} offset:{KREV_CH+KREV_O}
    s_mov_b64 exec, -1
    ''')
    for ch in range(2):
        g0 = 16 + 16*ch
        for pp in range(2):
            e(f'ds_read_b128 {v(g0+6*pp,4)}, v{d} offset:{(2*ch+pp)*GW+4}')
            e(f'ds_read_b32 v{g0+6*pp+4}, v{d} offset:{(2*ch+pp)*GW}')
    for ch in range(2):
        g0 = 16 + 16*ch
        e(f's_waitcnt lgkmcnt({4 if ch==0 else 2})')
        for k in range(5): e(f'v_add_f32 v{g0+k}, v{g0+k}, v{g0+6+k}')
        e(f'''
        v_cvt_pk_bf16_f32 v{g0+12}, v{g0+3}, v{g0+2}
        v_cvt_pk_bf16_f32 v{g0+13}, v{g0+1}, v{g0}
        v_cvt_pk_bf16_f32 v{g0+14}, v{g0+2}, v{g0+1}
        v_cvt_pk_bf16_f32 v{g0+15}, v{g0}, v{g0+4}
        ds_write_b64 v11, {v(g0+12,2)} offset:{ch*KREV_CH}
        ds_write_b64 v11, {v(g0+14,2)} offset:{ch*KREV_CH+KREV_O}
        ''')
    e('s_branch L_sgd')
    def seg(sg):
        n = 2 << sg
        p0 = 128 << sg
        ta = {1:2, 2:3, 3:5}[sg]; tb = {1:3, 2:6, 3:12}[sg]
        val = lambda r: 0 if r < ta else (1 if r < tb else 2)
        e(f'''
        L_sg{sg}:
        v_lshlrev_b32 v{d}, 3, v{vL}
        v_add_u32 v{d}, {PB+16+(128+128*sg)*4-4}, v{d}
        v_lshlrev_b32 v11, {sg+2}, v{vL}
        v_sub_u32 v11, {KREV+(2047-(p0+n-1))*2}, v11
        ''')
        if sg == 1: e(f'v_cmp_eq_u32 vcc, 0, v{vL}')
        for ch in range(2):
            g0 = 16 + 32*ch
            for pp in range(2):
                e(f'ds_read_b64 {v(g0+4*pp,2)}, v{d} offset:{(2*ch+pp)*GW+4}')
                e(f'ds_read_b32 v{g0+4*pp+2}, v{d} offset:{(2*ch+pp)*GW+12}')
                if sg == 1: e(f'ds_read_b32 v{g0+4*pp+3}, v{d} offset:{(2*ch+pp)*GW}')
        e('s_waitcnt lgkmcnt(0)')
        for ch in range(2):
            g0 = 16 + 32*ch
            for k in range(4 if sg == 1 else 3): e(f'v_add_f32 v{g0+k}, v{g0+k}, v{g0+4+k}')
            if sg == 1: e(f'v_cndmask_b32 v{g0+3}, v{g0}, v{g0+3}, vcc')
            reg = lambda r: (g0+3 if sg == 1 else g0) if r < 0 else g0+val(r)
            E = g0+8; Oc = g0+16
            for i in range(n//2):
                r = n-1-2*i
                e(f'v_cvt_pk_bf16_f32 v{E+i}, v{reg(r)}, v{reg(r-1)}')
                e(f'v_cvt_pk_bf16_f32 v{Oc+i}, v{reg(r-1)}, v{reg(r-2)}')
            for (X, off) in ((E, 0), (Oc, KREV_O)):
                if sg == 1: e(f'ds_write_b64 v11, {v(X,2)} offset:{ch*KREV_CH+off}')
                else:
                    for hh in range(n//8): e(f'ds_write_b128 v11, {v(X+4*hh,4)} offset:{ch*KREV_CH+off+16*hh}')
        if sg < 3: e('s_branch L_sgd')
    for sg in (1,2,3): seg(sg)
    e('L_sgd:')
    signal(C_KREV)
    e('@stamp h_krev')
    e(f'''
    s_mul_i32 s{sT2}, s{sXCD}, {FST}
    s_add_u32 s{sT2}, s{sT2}, {WS_F2}
    s_cmp_eq_u32 s{sHF}, 1
    s_cbranch_scc1 L_polled3
    ''')
    gpoll(3, sT2, 8)
    e('@stamp h_f2')
    wait(C_KREV, 4, sleep=4)
    e(f'''
    s_mul_i32 s{sT1}, s{sCH}, {XC_CH}
    s_add_u32 s{sT1}, s{sT1}, {XC}
    s_cmp_eq_u32 s{sHF}, 1
    s_cbranch_scc1 L_xpad
    s_add_u32 s{sT1}, s{sT1}, 512
    s_mov_b32 m0, s{sT1}
    s_add_u32 s{sT0}, s{sD0}, s{sCH}
    s_lshl_b32 s{sT0}, s{sT0}, 12
    s_add_u32 s{sT0}, s{sT0}, {WS_XT}
    ''')
    for i in range(4):
        e(f'buffer_load_dwordx4 v{vL16}, {srd(S_WS)}, s{sT0} offen offset:{i*1024} sc1 lds')
    e(f'''
    s_branch L_xpad_d
    L_xpad:
    v_mov_b32 v{a}, 0
    v_mov_b32 v{b}, 0
    v_lshlrev_b32 v{c}, 3, v{vL}
    v_add_u32 v{c}, s{sT1}, v{c}
    ds_write_b64 v{c}, {v(a,2)}
    L_xpad_d:
    s_waitcnt vmcnt(0)
    ''')
    signal(C_XT, addr=10)
    e('@stamp h_kv1')
    aA=12; aB=20; CA=24; CB=56; CACC=120
    e(f'''
    v_lshrrev_b32 v{a}, 1, v{vG4}
    v_lshlrev_b32 v{a}, 4, v{a}
    v_add_u32 v{a}, v{a}, v{vM15}
    v_and_b32 v{b}, 1, v{vG4}
    v_lshlrev_b32 v{c}, 3, v{b}
    v_sub_u32 v{a}, v{a}, v{c}
    v_sub_u32 v{a}, 2047, v{a}                 ; r00
    v_and_b32 v{c}, 1, v{a}
    v_sub_u32 v{a}, v{a}, v{c}
    v_lshlrev_b32 v{a}, 1, v{a}
    v_mul_u32_u24 v{c}, {KREV_O}, v{c}
    v_add_u32 v{a}, v{a}, v{c}
    s_mul_i32 s{sT0}, s{sCH}, {KREV_CH}
    s_add_u32 s{sT0}, s{sT0}, {KREV - 192}
    s_lshl_b32 s{sT1}, s{sHF}, 8
    s_sub_u32 s{sT0}, s{sT0}, s{sT1}
    v_add_u32 v{aA}, s{sT0}, v{a}
    ''')
    for u in range(1,8):
        e(f'v_subrev_u32 v{aA+u}, {512*u}, v{aA}')
    e(f'''
    v_lshrrev_b32 v{a}, 1, v{vG4}
    v_sub_u32 v{a}, v{vM15}, v{a}
    v_lshlrev_b32 v{a}, 5, v{a}
    v_lshl_add_u32 v{a}, v{b}, 4, v{a}
    s_mul_i32 s{sT0}, s{sCH}, {XC_CH}
    s_add_u32 s{sT0}, s{sT0}, {XC + 512 - 192}
    s_sub_u32 s{sT0}, s{sT0}, s{sT1}
    v_add_u32 v{aB}, s{sT0}, v{a}
    ''')
    def rdA(wq, u):
        o = 16*(3-wq)
        e(f'ds_read2_b32 {v(CA+4*u,2)}, v{aA+u} offset0:{o} offset1:{o+1}')
        e(f'ds_read2_b32 {v(CA+4*u+2,2)}, v{aA+u} offset0:{o+2} offset1:{o+3}')
    def rdB(wq, s):
        e(f'ds_read_b128 {v(CB+32*(wq&1)+4*s,4)}, v{aB} offset:{s*512+(3-wq)*64}')
    for u in range(8): rdA(0, u)
    wait(C_XT, 2, addr=10, sleep=4)
    e('s_setprio 2')
    for s in range(8): rdB(0, s)
    for wq in range(4):
        e('s_waitcnt lgkmcnt(0)')
        B = CB + 32*(wq&1)
        for u in range(7,-1,-1):
            for nt in range(u, 8):
                e(f'v_mfma_f32_16x16x32_bf16 {v(CACC+4*nt,4)}, {v(CA+4*u,4)}, {v(B+4*(nt-u),4)}, {"0" if (wq==0 and nt==u) else v(CACC+4*nt,4)}')
            if wq < 3:
                rdA(wq+1, u)
                rdB(wq+1, u)
    e('s_setprio 3')
    signal(C_CR, addr=10)
    e(f'''
    @stamp h_conv
    s_cmp_eq_u32 s{sHF}, 0
    s_cbranch_scc1 L_noswap
    s_nop 7
    ''')
    for i in range(16): e(f'v_swap_b32 v{CACC+i}, v{CACC+16+i}')
    e(f'''
    L_noswap:
    s_mul_i32 s{sT0}, s{sCH}, {KREV_CH}
    s_add_u32 s{sT0}, s{sT0}, {KREV}
    s_lshl_b32 s{sT1}, s{sHF}, 12
    s_add_u32 s{sT2}, s{sT0}, s{sT1}
    s_xor_b32 s{sT1}, s{sT1}, 4096
    s_add_u32 s{sT0}, s{sT0}, s{sT1}
    v_add_u32 v{a}, s{sT2}, v{vL16}
    v_add_u32 v{b}, s{sT0}, v{vL16}
    ''')
    wait(C_CR, 2, addr=10, sleep=3)
    for q in range(4):
        e(f'ds_write_b128 v{a}, {v(CACC+16+4*q,4)} offset:{q*1024}')
    signal(C_CW, addr=10)
    e(f'''
    v_lshlrev_b32 v{c}, 5, v{vM15}
    v_lshl_add_u32 v{c}, v{vG4}, 3, v{c}
    s_lshl_b32 s{sT1}, s{sHF}, 11
    v_add_u32 v{c}, s{sT1}, v{c}
    s_mul_i32 s{sT0}, s{sCH}, {XC_CH}
    s_add_u32 s{sT0}, s{sT0}, {XC+512}
    v_add_u32 v{d}, s{sT0}, v{c}
    s_add_u32 s{sT0}, s{sD0}, s{sCH}
    s_lshl_b32 s{sT0}, s{sT0}, 12
    s_add_u32 s{sT0}, s{sT0}, {WS_B}
    s_lshl_b32 s{sT1}, s{sCH}, 4
    s_lshr_b32 s{sT1}, s{sDSK}, s{sT1}
    s_lshl_b32 s{sT1}, s{sT1}, 16
    s_mov_b32 s{sT2}, 0xfffefffe
    ''')
    wait(C_ST, 1, sleep=1)
    wait(C_CW, 2, addr=10, sleep=3)
    XV=24; T=40
    for q in range(4):
        e(f'ds_read_b128 {v(CACC+16+4*q,4)}, v{b} offset:{q*1024}')
        e(f'ds_read_b64 {v(XV+2*q,2)}, v{d} offset:{q*512}')
    signal(C_CONV)
    for q in range(4):
        y=CACC+4*q
        e(f's_waitcnt lgkmcnt({7-2*q})')
        for r in range(4): e(f'v_add_f32 v{y+r}, v{y+r}, v{y+16+r}')
        for hh in range(2):
            x=XV+2*q+hh
            e(f'''
            v_lshlrev_b32 v{T+1}, 16, v{x}
            v_and_b32 v{T+2}, 0xffff0000, v{x}
            v_fmac_f32 v{y+2*hh}, s{sT1}, v{T+1}
            v_fmac_f32 v{y+2*hh+1}, s{sT1}, v{T+2}
            v_cvt_pk_bf16_f32 v{x}, v{y+2*hh}, v{y+2*hh+1}
            v_pk_min_u16 v{x}, v{x}, s{sT2}
            ''')
        e(f'buffer_store_dwordx2 {v(XV+2*q,2)}, v{c}, {srd(S_WS)}, s{sT0} offen offset:{q*512} sc1')
    e('@stamp h_bout')
    WOF=36; ACC=12; BP=28; GV=10; OA=11
    NS=6
    e(f'''
    v_lshrrev_b32 v{a}, 2, v{vL}
    v_lshlrev_b32 v{a}, 10, v{a}
    v_and_b32 v{b}, 3, v{vL}
    v_lshl_add_u32 v{a}, v{b}, 4, v{a}
    s_lshr_b32 s{sT0}, s{sCB}, 1
    s_lshl_b32 s{sT0}, s{sT0}, 8
    s_lshl_b32 s{sT1}, s{sW}, 6
    s_add_u32 s{sT0}, s{sT0}, s{sT1}
    s_mul_i32 s{sT2}, s{sW}, {NS*1024}
    s_add_u32 s{sT2}, s{sT2}, {POOL}
    v_bfe_u32 v{c}, v{vL}, 2, 2
    v_lshrrev_b32 v{d}, 5, v{vL}
    v_lshl_add_u32 v{c}, v{d}, 2, v{c}         ; 4h + r
    v_lshlrev_b32 v{c}, 6, v{c}
    v_bfe_u32 v{d}, v{vL}, 4, 1
    v_lshl_add_u32 v{c}, v{d}, 5, v{c}
    v_lshl_add_u32 v{c}, v{b}, 3, v{c}
    v_add_u32 v{c}, s{sT2}, v{c}
    s_waitcnt vmcnt(0)
    ''')
    wait(C_CONV, 4, sleep=4)
    def wodma(k):
        e(f'''
        s_add_u32 s{sT3}, s{sT2}, {(k%NS)*1024}
        s_mov_b32 m0, s{sT3}
        s_nop 0
        buffer_load_dwordx4 v{a}, {srd(S_WO)}, s{sT0} offen lds
        s_add_u32 s{sT0}, s{sT0}, 16384
        ''')
    for k in range(NS): wodma(k)
    for k in range(28):
        e(f's_waitcnt vmcnt({min(NS-1, 31-k)})')
        e(f'ds_read_b64_tr_b16 {v(WOF+4*k,2)}, v{c} offset:{(k%NS)*1024}')
        e(f'ds_read_b64_tr_b16 {v(WOF+4*k+2,2)}, v{c} offset:{(k%NS)*1024+512}')
        if k+NS < 32:
            e('s_waitcnt lgkmcnt(0)')
            wodma(k+NS)
    e(f'v_mov_b32 v{d}, v{c}')
    e('@stamp h_wo')
    e(f'''
    s_mov_b32 s{sT0}, {WS_F2}
    v_lshrrev_b32 v{a}, 3, v{vL}
    v_mul_u32_u24 v{a}, {FST}, v{a}
    v_and_b32 v{b}, 7, v{vL}
    v_lshl_add_u32 v{a}, v{b}, 4, v{a}
    L_pollA:
    buffer_load_dwordx4 {v(ACC,4)}, v{a}, {srd(S_WS)}, s{sT0} offen sc1
    s_waitcnt vmcnt(0)
    v_xor_b32 v{ACC}, s{sNON}, v{ACC}
    v_xor_b32 v{ACC+1}, s{sNON}, v{ACC+1}
    v_xor_b32 v{ACC+2}, s{sNON}, v{ACC+2}
    v_xor_b32 v{ACC+3}, s{sNON}, v{ACC+3}
    v_or3_b32 v{ACC}, v{ACC}, v{ACC+1}, v{ACC+2}
    v_or_b32 v{ACC}, v{ACC}, v{ACC+3}
    v_cmp_ne_u32 vcc, 0, v{ACC}
    s_cbranch_vccz L_polledA
    s_sleep 8
    s_sub_u32 s{sTO}, s{sTO}, 16
    s_cbranch_scc0 L_pollA
    s_mov_b32 s{sTO}, 0
    L_polledA:
    s_or_b32 s{sT0}, s2, s{sW}
    s_cmp_lg_u32 s{sT0}, 0
    s_cbranch_scc1 L_nogen
    v_mov_b32 v{a}, {WS_GEN}
    v_mov_b32 v{b}, s{sNON}
    s_mov_b64 exec, 1
    buffer_store_dword v{b}, v{a}, {srd(S_WS)}, 0 offen sc1
    s_mov_b64 exec, -1
    L_nogen:
    ''')
    e(f'''
    s_lshl_b32 s{sT0}, s{sRB}, 6
    s_and_b32 s{sT1}, s{sCB}, 1
    s_lshl_b32 s{sT1}, s{sT1}, 5
    s_add_u32 s{sT0}, s{sT0}, s{sT1}
    v_and_b32 v{a}, 31, v{vL}
    v_add_u32 v{a}, s{sT0}, v{a}               ; row
    s_lshr_b32 s{sT0}, s{sCB}, 1
    s_lshl_b32 s{sT0}, s{sT0}, 7
    s_lshl_b32 s{sT1}, s{sW}, 5
    s_add_u32 s{sT0}, s{sT0}, s{sT1}
    v_lshrrev_b32 v{b}, 5, v{vL}
    v_lshlrev_b32 v{b}, 2, v{b}
    v_add_u32 v{b}, s{sT0}, v{b}
    v_lshlrev_b32 v{OA}, 10, v{a}
    v_lshl_add_u32 v{OA}, v{b}, 1, v{OA}
    v_lshrrev_b32 v{c}, 5, v{vL}
    v_lshl_add_u32 v{OA}, v{c}, 3, v{OA}
    v_lshlrev_b32 v{b}, 12, v{b}
    v_lshl_add_u32 v{b}, v{a}, 1, v{b}
    v_add_u32 v{b}, {WS_B}, v{b}
    v_lshlrev_b32 v{a}, 2, v{a}
    s_mov_b32 s{sT0}, {WS_G}
    buffer_load_dword v{GV}, v{a}, {srd(S_WS)}, s{sT0} offen sc1
    L_bpoll:
    ''')
    for i in range(16):
        col = (i>>2)*8 + (i&3)
        e(f's_mov_b32 s{sT0}, {col*4096}')
        e(f'buffer_load_ushort v{ACC+i}, v{b}, {srd(S_WS)}, s{sT0} offen sc1')
    e(f's_waitcnt vmcnt(0)')
    e(f'v_max3_u32 v{c}, v{ACC}, v{ACC+1}, v{ACC+2}')
    for i in range(3,15,2): e(f'v_max3_u32 v{c}, v{c}, v{ACC+i}, v{ACC+i+1}')
    e(f'''
    v_max_u32 v{c}, v{c}, v{ACC+15}
    v_cmp_eq_u32 vcc, 0xffff, v{c}
    s_cbranch_vccz L_bok
    s_sleep 8
    s_sub_u32 s{sTO}, s{sTO}, 16
    s_cbranch_scc0 L_bpoll
    s_mov_b32 s{sTO}, 0
    L_bok:
    v_sub_f32 v{c}, 1.0, v{GV}
    ''')
    for i in range(16):
        e(f'v_lshlrev_b32 v{ACC+i}, 16, v{ACC+i}')
        e(f'v_mul_f32 v{ACC+i}, v{ACC+i}, v{c}')
    OST = 0x10000
    if os.environ.get('OM','2') != '0':
        two = os.environ.get('OM','2') == '2'
        e(f'''
        v_and_b32 v{a}, 31, v{vL}
        v_mul_u32_u24 v4, 272, v{a}
        v_lshrrev_b32 v{a}, 5, v{vL}
        v_lshl_add_u32 v4, v{a}, 4, v4
        s_lshl_b32 s{sT0}, s{sW}, 6
        s_add_u32 s{sT0}, s{sT0}, {OST}
        v_add_u32 v4, s{sT0}, v4
        s_lshl_b32 s{sT2}, s{sRB}, 16
        s_and_b32 s{sT1}, s{sCB}, 1
        s_lshl_b32 s{sT1}, s{sT1}, 15
        s_add_u32 s{sT2}, s{sT2}, s{sT1}
        s_lshr_b32 s{sT1}, s{sCB}, 1
        s_lshl_b32 s{sT1}, s{sT1}, 8
        s_add_u32 s{sT2}, s{sT2}, s{sT1}
        ''')
        if two:
            e(f'''
            v_lshrrev_b32 v{a}, 4, v{vL}
            v_and_b32 v{b}, 15, v{vL}
            v_mul_u32_u24 v5, 272, v{a}
            v_lshl_add_u32 v5, v{b}, 4, v5
            s_mul_i32 s{sT0}, s{sW}, {8*272}
            s_add_u32 s{sT0}, s{sT0}, {OST}
            v_add_u32 v5, s{sT0}, v5
            v_lshlrev_b32 v{OA}, 10, v{a}
            v_lshl_add_u32 v{OA}, v{b}, 4, v{OA}
            s_lshl_b32 s{sT0}, s{sW}, 13
            s_add_u32 s{sT0}, s{sT0}, s{sT2}
            s_add_u32 s{sT1}, s{sT0}, 4096
            ''')
        else:
            e(f'''
            v_lshrrev_b32 v{a}, 2, v{vL}
            v_and_b32 v{b}, 3, v{vL}
            v_mul_u32_u24 v5, 272, v{a}
            v_lshl_add_u32 v5, v{b}, 4, v5
            v_add_u32 v5, s{sT0}, v5
            v_lshlrev_b32 v{OA}, 10, v{a}
            v_lshl_add_u32 v{OA}, v{b}, 4, v{OA}
            s_lshl_b32 s{sT0}, s{sW}, 6
            s_add_u32 s{sT0}, s{sT0}, s{sT2}
            s_add_u32 s{sT1}, s{sT0}, 16384
            ''')
    e('@stamp h_bok')
    OF0=4
    e('L_hfin:')
    e('s_barrier')
    e('s_barrier')
    e('@stamp h_o0')
    OB=148
    q=[]
    def ds(tag, txt): e(txt); q.append(tag)
    def need_(tags):
        idx=max(i for i,t in enumerate(q) if t in tags) if any(t in tags for t in q) else -1
        if idx >= 0:
            e(f's_waitcnt lgkmcnt({len(q)-1-idx})')
            del q[:idx+1]
    for k in range(4): ds(('o',k), f'ds_read_b128 {v(OB+4*k,4)}, v{vL16} offset:{k*1024}')
    for k in range(32):
        need_({('o',k),('w',k)})
        W = WOF+4*k if k < 28 else WOF+4*(k-28)
        e(f'v_mfma_f32_32x32x16_bf16 {v(ACC,16)}, {v(W,4)}, {v(OB+4*(k%4),4)}, {v(ACC,16)}')
        if k+4 < 32: ds(('o',k+4), f'ds_read_b128 {v(OB+4*(k%4),4)}, v{vL16} offset:{(k+4)*1024}')
        if k < 4:
            kk=28+k
            ds(('w',kk), f'ds_read_b64_tr_b16 {v(WOF+4*k,2)}, v{d} offset:{(kk%NS)*1024}')
            ds(('w',kk), f'ds_read_b64_tr_b16 {v(WOF+4*k+2,2)}, v{d} offset:{(kk%NS)*1024+512}')
    e('@stamp h_mm')
    T=WOF+16
    for i in range(8):
        e(f'v_cvt_pk_bf16_f32 v{T+i}, v{ACC+2*i}, v{ACC+2*i+1}')
    import os
    OM = os.environ.get('OM','2')
    for hh in range(2):
        e(f'v_permlane32_swap_b32 v{T+4*hh}, v{T+4*hh+2}')
        e(f'v_permlane32_swap_b32 v{T+4*hh+1}, v{T+4*hh+3}')
        if OM == '0': e(f'buffer_store_dwordx4 {v(T+4*hh,4)}, v{OA}, {srd(S_OUT)}, 0 offen offset:{hh*32}')
        else: e(f'ds_write_b128 v4, {v(T+4*hh,4)} offset:{hh*32}')
    if OM == '2':
        e('s_waitcnt lgkmcnt(0)')
        e('s_barrier')
    if OM != '0':
        for hh in range(2): e(f'ds_read_b128 {v(T+8+4*hh,4)}, v5 offset:{hh*(1088 if OM=="2" else 16*272)}')
        for hh in range(2):
            e(f's_waitcnt lgkmcnt({1-hh})')
            e(f'buffer_store_dwordx4 {v(T+8+4*hh,4)}, v{OA}, {srd(S_OUT)}, s{sT1 if hh else sT0} offen')
    e('@stamp h_end')
    finish()
    vQ=10
    PR=14
    R=24; s1=40; s2=42; mu=44; tt=46; pk=48; wa=18; ra=20; FA=96; FB=146; vG=24
    al=66; bh=67; bl=68; dt=21; p1=22; p2=23; ee=69
    NM=16; S0=40; S1=56; P=72; O=80; KF=96; VF=112; ad=14; mx=15; kvf=144; fl=145
    e(f'''
    L_main:
    s_sub_u32 s{sM}, s{sW}, 4
    s_lshr_b32 s{sRT}, s{sM}, 2
    s_and_b32 s{sHD}, s{sM}, 3
    s_lshr_b32 s{sCH}, s{sHD}, 1
    s_setprio 1
    s_cmp_eq_u32 s{sRT}, 0
    s_cbranch_scc1 L_np
    s_setprio 3
    L_np:
    ''')
    e(f'''
    v_and_b32 v{a}, 27, v{vL}
    v_cmp_eq_u32 vcc, 16, v{a}
    v_mov_b32 v{b}, 0x3f803f80
    v_cndmask_b32 v{VF}, 0, v{b}, vcc
    ''')
    for i in range(1,32): e(f'v_mov_b32 v{VF+i}, v{VF}')
    for i in range(16): e(f'v_mov_b32 v{O+i}, 0')
    for i in range(4): e(f'v_mov_b32 v{P+4+i}, 0')
    def exp_acc(dst, x, t, u):
        e(f'''
        v_mul_f32 v{t}, {f32(L2E_HI)}, v{x}
        v_fma_f32 v{u}, v{x}, s{sT4}, -v{t}
        v_fmac_f32 v{u}, {f32(L2E_LO)}, v{x}
        v_exp_f32 v{dst}, v{t}
        v_mul_f32 v{u}, {f32(math.log(2.0))}, v{u}
        v_fma_f32 v{dst}, v{dst}, v{u}, v{dst}
        v_cvt_pk_bf16_f32 v{dst}, v{dst}, v{dst}
        v_lshlrev_b32 v{dst}, 16, v{dst}
        ''')
    def cmul(D, X, Y, T=None):
        T = D if T is None else T
        e(f'''
        v_pk_mul_f32 {v(T,2)}, {v(X,2)}, {v(Y,2)} op_sel:[0,0] op_sel_hi:[0,1]
        v_pk_fma_f32 {v(D,2)}, {v(X,2)}, {v(Y,2)}, {v(T,2)} op_sel:[1,1,0] op_sel_hi:[1,0,1] neg_lo:[1,0,0]
        ''')
    def cmul_inplace(idxs, Y):
        for k,i in enumerate(idxs):
            e(f'v_pk_mul_f32 {v(56+2*(k%4),2)}, {v(R+2*i,2)}, {v(Y,2)} op_sel:[0,0] op_sel_hi:[0,1]')
            if k >= 1:
                j = idxs[k-1]
                e(f'v_pk_fma_f32 {v(R+2*j,2)}, {v(R+2*j,2)}, {v(Y,2)}, {v(56+2*((k-1)%4),2)} op_sel:[1,1,0] op_sel_hi:[1,0,1] neg_lo:[1,0,0]')
        k = len(idxs)-1; j = idxs[k]
        e(f'v_pk_fma_f32 {v(R+2*j,2)}, {v(R+2*j,2)}, {v(Y,2)}, {v(56+2*(k%4),2)} op_sel:[1,1,0] op_sel_hi:[1,0,1] neg_lo:[1,0,0]')
    e(f'''
    s_mov_b32 s{sT4}, {f32(L2E_HI)}
    s_mov_b32 s{sT5}, {f32(I2P_HI)}
    v_cmp_lt_u32 s[{sM0}:{sM0+1}], 31, v{vL}
    v_mov_b32 v{b}, {f32(8.0)}
    v_cndmask_b32 v{p1}, v{b}, 1.0, s[{sM0}:{sM0+1}]
    v_mov_b32 v{b}, {f32(64.0)}
    v_mov_b32 v{c}, {f32(256.0)}
    v_cndmask_b32 v{p2}, v{b}, v{c}, s[{sM0}:{sM0+1}]
    s_lshl_b32 s{sT0}, s{sM}, 12
    s_add_u32 s{sT3}, s{sT0}, {XFL}
    v_lshrrev_b32 v{a}, 5, v{vL}
    v_lshlrev_b32 v{a}, 11, v{a}
    v_and_b32 v{b}, 31, v{vL}
    v_lshl_add_u32 v{a}, v{b}, 4, v{a}
    v_add_u32 v{wa}, s{sT3}, v{a}
    v_xor_b32 v{wa+1}, 0x80, v{wa}
    v_lshrrev_b32 v{a}, 2, v{vL}              ; 4g + r
    v_lshlrev_b32 v{a}, 4, v{a}
    v_bfe_u32 v{b}, v{vL}, 1, 1               ; gh
    v_mul_u32_u24 v{b}, 0x280, v{b}
    v_xor_b32 v{a}, v{a}, v{b}
    v_and_b32 v{b}, 1, v{vL}
    v_lshl_add_u32 v{a}, v{b}, 3, v{a}
    v_add_u32 v{ra}, s{sT3}, v{a}
    s_waitcnt lgkmcnt(0)
    s_lshl_b32 s{sT0}, s{sCH}, 4
    s_lshr_b32 s{sT1}, s{sLDT}, s{sT0}
    s_lshl_b32 s{sT1}, s{sT1}, 16
    v_mov_b32 v{a}, s{sT1}
    ''')
    exp_acc(dt, a, b, c)
    e(f'''
    s_waitcnt vmcnt(0)
    @stamp m_par
    v_and_b32 v{a}, 0x7fff, v{PR+2}
    v_and_b32 v{b}, 0x7fff, v{PR+3}
    v_max_u32 v{a}, v{a}, v{b}
    v_max_u32_dpp v{a}, v{a}, v{a} row_shr:1 row_mask:0xf bank_mask:0xf
    v_max_u32_dpp v{a}, v{a}, v{a} row_shr:2 row_mask:0xf bank_mask:0xf
    v_max_u32_dpp v{a}, v{a}, v{a} row_shr:4 row_mask:0xf bank_mask:0xf
    v_max_u32_dpp v{a}, v{a}, v{a} row_shr:8 row_mask:0xf bank_mask:0xf
    v_readlane_b32 s{sT0}, v{a}, 15
    v_readlane_b32 s{sT1}, v{a}, 31
    s_max_u32 s{sT0}, s{sT0}, s{sT1}
    s_lshr_b32 s{sT0}, s{sT0}, 7
    s_max_u32 s{sT0}, s{sT0}, 1
    s_min_u32 s{sT0}, s{sT0}, 253
    s_lshl_b32 s{sSC}, s{sT0}, 23
    s_sub_u32 s{sT0}, 254, s{sT0}
    s_lshl_b32 s{sSCI}, s{sT0}, 23
    v_lshlrev_b32 v{a}, 16, v{PR}
    ''')
    exp_acc(al, a, b, c)
    e(f'''
    v_mul_f32 v{al}, v{al}, v{dt}
    v_mul_f32 v{al}, {f32(-LOG2E)}, v{al}
    v_lshlrev_b32 v{a}, 16, v{PR+1}
    v_mul_f32 v{a}, v{a}, v{dt}
    v_cndmask_b32 v{a}, v{a}, -v{a}, s[{sM0}:{sM0+1}]
    v_mul_f32 v{bh}, {f32(I2P_HI)}, v{a}
    v_fma_f32 v{bl}, v{a}, s{sT5}, -v{bh}
    v_fmac_f32 v{bl}, {f32(I2P_LO)}, v{a}
    ''')
    for (S, p) in ((s1,p1),(s2,p2)):
        e(f'''
        v_mul_f32 v{a}, v{al}, v{p}
        v_mul_f32 v{b}, v{bh}, v{p}
        v_exp_f32 v{ee}, v{a}
        v_fract_f32 v{b}, v{b}
        v_fmac_f32 v{b}, v{bl}, v{p}
        v_cos_f32 v{c}, v{b}
        v_sin_f32 v{d}, v{b}
        v_mul_f32 v{S}, v{ee}, v{c}
        v_mul_f32 v{S+1}, v{ee}, v{d}
        ''')
    e(f'''
    v_lshlrev_b32 v{a}, 16, v{PR+2}
    v_lshlrev_b32 v{b}, 16, v{PR+3}
    v_mul_f32 v{a}, s{sSCI}, v{a}
    v_mul_f32 v{b}, s{sSCI}, v{b}
    v_cndmask_b32 v{R}, 1.0, v{a}, s[{sM0}:{sM0+1}]
    v_cndmask_b32 v{R+1}, 0, -v{b}, s[{sM0}:{sM0+1}]
    ''')
    cmul(tt, s1, s1)
    cmul(R+2, R, s1)
    cmul(mu, s2, s2)
    cmul(R+4, R, tt)
    cmul(R+6, R+2, tt)
    cmul(64, tt, tt)
    e(f'''
    v_cndmask_b32 v{mu}, v{s1}, v{mu}, s[{sM0}:{sM0+1}]
    v_cndmask_b32 v{mu+1}, v{s1+1}, v{mu+1}, s[{sM0}:{sM0+1}]
    ''')
    for i in range(4): cmul(R+8+2*i, R+2*i, 64)
    def flush(rnd):
        for i in range(4): e(f'v_cvt_pk_f16_f32 v{pk+i}, v{R+4*i}, v{R+4*i+2}')
        e(f'ds_write_b128 v{wa+(rnd&1)}, {v(pk,4)} offset:{512*(rnd&1)}')
        for i in range(4): e(f'v_cvt_pk_f16_f32 v{pk+4+i}, v{R+4*i+1}, v{R+4*i+3}')
        e(f'ds_write_b128 v{wa+(rnd&1)}, {v(pk+4,4)} offset:{512*(rnd&1)+1024}')
        if rnd & 1:
            rho = rnd >> 1
            for (F, part) in ((FB,0),(FA,1)):
                for s_ in range(2):
                    e(f'ds_read_b64_tr_b16 {v(F+8*rho+4*s_,2)}, v{ra} offset:{part*2048+s_*256}')
                    e(f'ds_read_b64_tr_b16 {v(F+8*rho+4*s_+2,2)}, v{ra} offset:{part*2048+s_*256+1024}')
    flush(0)
    cmul_inplace(list(range(8)), s2)
    flush(1)
    for rnd in (2,3):
        cmul_inplace([0,4,5], s2)
        cmul(R+2, R, mu)
        cmul_inplace([6,7], s2)
        cmul(R+4, R+2, mu)
        cmul(R+6, R+4, mu)
        flush(rnd)
    e(f'''
    v_add_f32 v{dt}, v{dt}, v{dt}
    v_mul_f32 v{dt}, s{sSC}, v{dt}
    s_lshl_b32 s{sT0}, s{sHD}, 2
    v_add_u32 v{d}, s{sT0}, v{vC}
    s_mul_i32 s{sT0}, s{sHD}, {GW}
    s_add_u32 s{sT0}, s{sT0}, {PB+16}
    v_and_b32 v{a}, 1, v{vG4}
    v_lshrrev_b32 v{c}, 1, v{vG4}
    v_lshlrev_b32 v40, 5, v{vM15}
    v_lshl_add_u32 v40, v{a}, 4, v40           ; n*32 + (g&1)*16
    v_lshrrev_b32 v41, 1, v40
    v_add_u32 v41, 1024, v41
    v_cndmask_b32 v40, v40, v41, s[{sM0}:{sM0+1}]
    v_add_u32 v40, s{sT0}, v40
    v_lshlrev_b32 v41, 3, v{vM15}
    v_lshl_add_u32 v41, v{a}, 2, v41
    v_lshl_add_u32 v41, v{c}, 8, v41
    v_add_u32 v41, s{sT0}, v41
    v_lshlrev_b32 v42, 2, v{vM15}
    v_lshl_add_u32 v42, v{c}, 7, v42
    v_add_u32 v42, s{sT0}, v42
    v_subrev_u32 v{c}, 4, v42
    v_mov_b32 v{a}, 0
    ''')
    signal(C_TAB)
    e('s_waitcnt lgkmcnt(1)')
    A1=40; A3=41; A4=42
    for s_ in range(2):
        for ra_ in range(2):
            for rb_ in range(2):
                D = vG + 8*ra_ + 4*rb_
                e(f'v_mfma_f32_16x16x32_f16 {v(D,4)}, {v(FA+8*ra_+4*s_,4)}, {v(FB+8*rb_+4*s_,4)}, {"0" if s_==0 else v(D,4)}')
    for r in range(15): e(f'v_mul_f32 v{vG+r}, v{vG+r}, v{dt}')
    e(f'''
    @stamp m_kg1
    s_cmp_eq_u32 s{sRT}, 1
    s_cbranch_scc1 L_kgw
    ''')
    wait(C_GH, 1, addr=d, sleep=1)
    H=FA
    e(f'''
    s_mov_b32 exec_hi, 0
    ds_read_b128 {v(H,4)}, v{A1}
    ds_read_b128 {v(H+4,4)}, v{A1} offset:512
    s_mov_b64 exec, s[{sM0}:{sM0+1}]
    ds_read_b32 v{H}, v{A1}
    ds_read_b32 v{H+2}, v{A1} offset:4
    ds_read_b32 v{H+4}, v{A1} offset:256
    ds_read_b32 v{H+6}, v{A1} offset:260
    s_mov_b64 exec, -1
    ds_read_b32 v{H+8}, v{A3} offset:1536
    ds_read_b32 v{H+12}, v{A3} offset:{1536+128}
    ds_read_b32 v{H+9}, v{A4} offset:2048
    ds_read_b32 v{H+13}, v{A4} offset:{2048+64}
    ds_read_b32 v{H+10}, v{A4} offset:{2048+256}
    ds_read_b32 v{H+14}, v{A4} offset:{2048+256+64}
    ds_read_b32 v{H+11}, v{A4} offset:{2048+512}
    s_waitcnt lgkmcnt(0)
    ''')
    for r in range(15): e(f'v_add_f32 v{vG+r}, v{vG+r}, v{H+r}')
    e(f'''
    L_kgw:
    ds_write_b32 v{A3}, v{vG+8} offset:1536
    ds_write_b32 v{A3}, v{vG+12} offset:{1536+128}
    s_mov_b32 exec_hi, 0
    ds_write_b128 v{A1}, {v(vG,4)}
    ds_write_b128 v{A1}, {v(vG+4,4)} offset:512
    s_mov_b64 exec, s[{sM0}:{sM0+1}]
    ds_write2_b32 v{A1}, v{vG}, v{vG+2} offset0:0 offset1:1
    ds_write2_b32 v{A1}, v{vG+4}, v{vG+6} offset0:64 offset1:65
    s_mov_b32 exec_lo, 0xffff
    s_mov_b32 exec_hi, 0xffff
    ds_write_b32 v{A4}, v{vG+9} offset:2048
    ds_write_b32 v{A4}, v{vG+13} offset:{2048+64}
    ds_write_b32 v{A4}, v{vG+10} offset:{2048+256}
    ds_write_b32 v{A4}, v{vG+14} offset:{2048+256+64}
    s_mov_b64 exec, 1
    ds_write_b32 v{A4}, v{vG+11} offset:{2048+512}
    ds_write_b32 v{c}, v{a}
    ds_add_u32 v{d}, v{vOne} offset:{4*C_GH}
    s_mov_b64 exec, -1
    ''')
    e('@stamp m_kgen')
    xa=146; wadr=150; acc=152; QX=16; QW=48
    e(f'''
    L_q:
    s_mul_i32 s{sT0}, s{sRT}, {XH-XFL}
    s_add_u32 s{sT0}, s{sT0}, {XFL}
    v_lshlrev_b32 v{a}, 10, v{vM15}
    v_xor_b32 v{b}, v{vG4}, v{vM15}
    v_lshl_add_u32 v{a}, v{b}, 4, v{a}
    v_add_u32 v{xa}, s{sT0}, v{a}
    v_xor_b32 v{xa+1}, 64, v{xa}
    v_xor_b32 v{xa+2}, 0x80, v{xa}
    v_xor_b32 v{xa+3}, 0xc0, v{xa}
    v_bfe_u32 v{a}, v{vL}, 2, 2                ; r
    v_lshrrev_b32 v{b}, 1, v{a}
    v_and_b32 v{c}, 1, v{vG4}
    v_lshl_add_u32 v{b}, v{c}, 1, v{b}         ; swz
    v_xor_b32 v{b}, s{sHD}, v{b}
    v_lshl_add_u32 v{a}, v{vG4}, 3, v{a}       ; 8g + r
    v_lshlrev_b32 v{a}, 7, v{a}
    v_lshl_add_u32 v{a}, v{b}, 5, v{a}
    v_and_b32 v{b}, 3, v{vL}
    v_lshl_add_u32 v{a}, v{b}, 3, v{a}
    v_add_u32 v{wadr}, {WQ}, v{a}
    ''')
    def qchunk(ck):
        def rd(s):
            S = 8*ck + s
            e(f'ds_read_b64_tr_b16 {v(QW+4*(s&3),2)}, v{wadr} offset:{S*4096}')
            e(f'ds_read_b64_tr_b16 {v(QW+4*(s&3)+2,2)}, v{wadr} offset:{S*4096+512}')
            e(f'ds_read_b128 {v(QX+8*(s&3),4)}, v{xa+(s&3)} offset:{(S>>2)*256}')
            e(f'ds_read_b128 {v(QX+8*(s&3)+4,4)}, v{xa+(s&3)} offset:{(S>>2)*256+16384}')
        for s in range(3): rd(s)
        for s in range(8):
            if s+3 < 8:
                rd(s+3); e('s_waitcnt lgkmcnt(12)')
            else:
                x = 0
                if ck == 1:
                    x = 2
                    if s == 5:
                        signal(C_QA); signal(C_QH, addr=d)
                e(f's_waitcnt lgkmcnt({4*(7-s)+x})')
            z = ck == 0 and s == 0
            e(f'v_mfma_f32_16x16x32_bf16 {v(acc,4)}, {v(QW+4*(s&3),4)}, {v(QX+8*(s&3),4)}, {"0" if z else v(acc,4)}')
            e(f'v_mfma_f32_16x16x32_bf16 {v(acc+4,4)}, {v(QW+4*(s&3),4)}, {v(QX+8*(s&3)+4,4)}, {"0" if z else v(acc+4,4)}')
    e(f'''
    s_xor_b32 s{sT0}, s{sRT}, 1
    s_mul_i32 s{sT0}, s{sT0}, {4*(40-C_QH)}
    v_add_u32 v{d}, s{sT0}, v{vC}
    s_cmp_eq_u32 s{sRT}, 1
    s_cbranch_scc1 L_qh
    ''')
    wait(C_T2, 1)
    wait(C_QH, 6)
    e('s_setprio 3')
    e('L_qh:')
    wait(C_T0, 3, sleep=1)
    e('@stamp m_t0')
    qchunk(0)
    e('@stamp m_q0')
    wait(C_T1, 1, sleep=1)
    e('@stamp m_t1')
    qchunk(1)
    e(f'''
    s_mov_b32 s{sT0}, {f32(0.25*LOG2E)}
    s_mov_b32 s{sFB}, 0
    s_mov_b32 s{sM0}, 0xffff
    s_mov_b32 s{sM0+1}, 0xffff
    s_xor_b32 s{sRT}, s{sRT}, s{sKAP}
    s_xor_b32 s{sRT}, s{sRT}, 1
    s_lshl_b32 s{sT1}, s{sRB}, 1
    s_add_u32 s{sT1}, s{sT1}, s{sRT}
    s_lshl_b32 s{sT1}, s{sT1}, 5
    s_lshl_b32 s{sT2}, s{sCB}, 2
    s_add_u32 s{sT1}, s{sT1}, s{sT2}
    s_add_u32 s{sT1}, s{sT1}, s{sHD}
    s_lshl_b32 s{sT1}, s{sT1}, 10
    s_add_u32 s{sOB}, s{sT1}, {WS_O}
    ''')
    for r in range(8): e(f'v_mul_f32 v{acc+r}, s{sT0}, v{acc+r}')
    e(f'''
    v_cvt_pk_bf16_f32 v{vQ}, v{acc}, v{acc+1}
    v_cvt_pk_bf16_f32 v{vQ+1}, v{acc+2}, v{acc+3}
    v_cvt_pk_bf16_f32 v{vQ+2}, v{acc+4}, v{acc+5}
    v_cvt_pk_bf16_f32 v{vQ+3}, v{acc+6}, v{acc+7}
    v_permlane16_swap_b32 v{vQ}, v{vQ+2}
    v_permlane16_swap_b32 v{vQ+1}, v{vQ+3}
    ''')
    e('@stamp m_q1')
    wait(C_KV, 1, sleep=1)
    e(f'''
    @stamp m_att0
    s_setprio 1
    s_cmp_lt_u32 s{sM}, 4
    s_cbranch_scc1 L_pr
    s_setprio 3
    L_pr:
    s_mov_b32 s{sCNT}, 0
    v_mov_b32 v{ad}, v{vL16}
    v_add_u32 v{kvf}, {4*(C_KV+1)}, v{vC}
    ds_read_b128 {v(KF+8,4)}, v{ad}
    ds_read_b128 {v(KF,4)}, v{ad} offset:2048
    ds_read_b128 {v(KF+4,4)}, v{ad} offset:4096
    s_mov_b64 exec, s[{sM0}:{sM0+1}]
    ds_read_b128 {v(VF,4)}, v{ad} offset:1024
    ds_read_b128 {v(VF+4,4)}, v{ad} offset:1280
    ds_read_b128 {v(VF+8,4)}, v{ad} offset:3072
    ds_read_b128 {v(VF+12,4)}, v{ad} offset:3328
    s_mov_b64 exec, -1
    s_cmp_lg_u32 s{sFB}, 0
    s_waitcnt lgkmcnt(6)
    s_cbranch_scc1 L_setm
    v_mfma_f32_32x32x16_bf16 {v(S0,16)}, {v(KF+8,4)}, {v(vQ,4)}, 0
    v_max3_f32 v{mx}, v{S0}, v{S0+1}, v{S0+2}
    ''')
    for i in range(3,15,2): e(f'v_max3_f32 v{mx}, v{mx}, v{S0+i}, v{S0+i+1}')
    e(f'''
    v_max_f32 v{mx}, v{mx}, v{S0+15}
    L_setm:
    v_mov_b32 v{a}, v{mx}
    v_permlane32_swap_b32 v{a}, v{mx}
    v_max_f32 v{mx}, v{mx}, v{a}
    ''')
    for i in range(16): e(f'v_sub_f32 v{NM+i}, 0, v{mx}')
    e(f'''
    v_mfma_f32_32x32x16_bf16 {v(S0,16)}, {v(KF+8,4)}, {v(vQ,4)}, {v(NM,16)}
    s_nop 9
    .p2align 6
    L_loop:
    ''')
    def step(tt):
        par = tt & 1; pr = tt >> 1; st = pr & 1
        Sc = S0 if par == 0 else S1
        Sn = S1 if par == 0 else S0
        Kn = KF + 8*st + 4*par
        Vc = VF + 16*st + 8*par
        Vp = (VF + 16*st + 4) if par == 1 else (VF + 16*(1-st) + 12)
        ex = lambda i: e(f'v_exp_f32 v{Sc+i}, v{Sc+i}')
        cv = lambda i: e(f'v_cvt_pk_bf16_f32 v{P+i}, v{Sc+2*i}, v{Sc+2*i+1}')
        if par == 0: e('s_waitcnt lgkmcnt(0)')
        e(f'v_mfma_f32_32x32x16_bf16 {v(Sn,16)}, {v(Kn,4)}, {v(vQ,4)}, {v(NM,16)}')
        ex(0); ex(1); ex(2); ex(3)
        e(f'v_mfma_f32_32x32x16_bf16 {v(O,16)}, {v(Vp,4)}, {v(P+4,4)}, {v(O,16)}')
        if tt == 4:
            e(f's_cmp_lg_u32 s{sWT}, 1')
            e(f's_cbranch_scc1 L_chk')
            e(f'L_chk_ret:')
        if par == 0:
            o = 1-st
            e(f'ds_read_b128 {v(KF+8*o,4)}, v{ad} offset:{(tt+3)*2048}')
            e(f'ds_read_b128 {v(KF+8*o+4,4)}, v{ad} offset:{(tt+4)*2048}')
            e(f's_mov_b64 exec, s[{sM0}:{sM0+1}]')
            e(f'ds_read_b128 {v(VF+16*o,4)}, v{ad} offset:{(tt+2)*2048+1024}')
            e(f'ds_read_b128 {v(VF+16*o+4,4)}, v{ad} offset:{(tt+2)*2048+1280}')
            e(f'ds_read_b128 {v(VF+16*o+8,4)}, v{ad} offset:{(tt+3)*2048+1024}')
            e(f'ds_read_b128 {v(VF+16*o+12,4)}, v{ad} offset:{(tt+3)*2048+1280}')
            e(f's_mov_b64 exec, -1')
            if tt == 0: e(f'ds_read_b32 v{fl}, v{kvf}')
        if tt == 3: e(f'v_readfirstlane_b32 s{sWT}, v{fl}')
        cv(0); ex(4); ex(5); cv(1); ex(6); ex(7); cv(2); ex(8); cv(3); ex(9); ex(10)
        e(f'v_mfma_f32_32x32x16_bf16 {v(O,16)}, {v(Vc,4)}, {v(P,4)}, {v(O,16)}')
        ex(11); cv(4); ex(12); ex(13); cv(5); ex(14); ex(15); cv(6); cv(7)
    for tt in range(8): step(tt)
    e(f'''
    v_add_u32 v{ad}, 0x4000, v{ad}
    v_add_u32 v{kvf}, 4, v{kvf}
    ''')
    if DIAG:
        e(f'''
        s_memtime s[94:95]
        s_add_u32 s{sT5}, s{sCNT}, 48
        s_waitcnt lgkmcnt(0)
        s_mov_b32 m0, s{sT5}
        v_writelane_b32 v167, s94, m0
        ''')
    e(f'''
    s_add_u32 s{sCNT}, s{sCNT}, 1
    s_cmp_lt_u32 s{sCNT}, 8
    s_cbranch_scc1 L_loop
    v_mfma_f32_32x32x16_bf16 {v(O,16)}, {v(VF+28,4)}, {v(P+4,4)}, {v(O,16)}
    s_mov_b32 s{sT0}, {f32(2.0**40)}
    s_waitcnt vmcnt(0) lgkmcnt(0)
    s_nop 9
    v_rcp_f32 v{S0}, v{O+8}
    v_cmp_nlt_f32 vcc, v{O+8}, s{sT0}
    v_mul_f32 v{S0}, v{S0}, v146
    ''')
    for i in range(8): e(f'v_mul_f32 v{O+i}, v{O+i}, v{S0}')
    e(f'''
    v_add_f32 v{S0+2}, v{O+3}, v{O+4}
    v_add_f32 v{S0+3}, v{O+5}, v{O+6}
    v_add_f32 v{S0+2}, v{S0+2}, v{O+7}
    v_add_f32 v{S0+3}, v{S0+3}, v{O}
    v_add_f32 v{S0+2}, v{S0+2}, v{O+1}
    v_add_f32 v{S0+3}, v{S0+3}, v{O+2}
    v_add_f32 v{S0+2}, v{S0+2}, v{S0+3}
    v_mov_b32 v{S0+4}, 0x207
    v_cmp_class_f32 s[{sM1}:{sM1+1}], v{S0+2}, v{S0+4}
    s_or_b64 vcc, vcc, s[{sM1}:{sM1+1}]
    s_cbranch_vccz L_att_ok
    s_cmp_lg_u32 s{sFB}, 0
    s_cbranch_scc1 L_att_ok
    s_mov_b32 s{sFB}, 1
    v_mov_b32 v{ad}, v{vL16}
    v_mov_b32 v{mx}, 0xff7fffff
    s_mov_b32 s{sCNT}, 0
    L_maxloop:
    ds_read_b128 {v(KF,4)}, v{ad}
    v_add_u32 v{ad}, 2048, v{ad}
    s_waitcnt lgkmcnt(0)
    v_mfma_f32_32x32x16_bf16 {v(S0,16)}, {v(KF,4)}, {v(vQ,4)}, 0
    ''')
    for i in range(0,16,2): e(f'v_max3_f32 v{mx}, v{mx}, v{S0+i}, v{S0+i+1}')
    e(f'''
    s_add_u32 s{sCNT}, s{sCNT}, 1
    s_cmp_lt_u32 s{sCNT}, 64
    s_cbranch_scc1 L_maxloop
    ''')
    for i in range(16): e(f'v_mov_b32 v{O+i}, 0')
    for i in range(4): e(f'v_mov_b32 v{P+4+i}, 0')
    e('s_branch L_pr')
    e('L_chk:')
    wait(0, 1, addr=kvf, sleep=1)
    e(f'''
    s_cmp_lt_u32 s{sWT}, 2
    s_cbranch_scc1 L_chk_ret
    s_lshl_b32 s{sT0}, s{sRB}, 8
    s_lshl_b32 s{sT1}, s{sRT}, 7
    s_add_u32 s{sT0}, s{sT0}, s{sT1}
    s_add_u32 s{sT0}, s{sT0}, {WS_G}
    v_and_b32 v{a}, 31, v{vL}
    v_lshlrev_b32 v{a}, 2, v{a}
    buffer_load_dword v146, v{a}, {srd(S_WS)}, s{sT0} offen sc1
    ds_read_b32 v147, v{vC} offset:{4*C_KVOK}
    ''')
    wait(C_ST, 1, sleep=4)
    e(f'''
    v_readfirstlane_b32 s{sSC}, v147
    s_setprio 0
    s_branch L_chk_ret
    L_att_ok:
    @stamp m_att1
    ''')
    e(f's_mov_b32 s{sT0}, 0xfffffffe')
    for i in range(4):
        e(f'v_cvt_pk_bf16_f32 v{P+i}, v{O+2*i}, v{O+2*i+1}')
        e(f'v_min_u32 v{P+i}, s{sT0}, v{P+i}')
    e(f'''
    s_cmp_eq_u32 s{sSC}, 1
    s_cbranch_scc1 L_oloc
    buffer_store_dwordx4 {v(P,4)}, v{vL16}, {srd(S_WS)}, s{sOB} offen sc1
    s_branch L_ost
    L_oloc:
    buffer_store_dwordx4 {v(P,4)}, v{vL16}, {srd(S_WS)}, s{sOB} offen
    L_ost:
    ''')
    e(f'''
    s_lshl_b32 s{sT0}, s{sRB}, 1
    s_and_b32 s{sT1}, s{sCB}, 1
    s_add_u32 s{sT0}, s{sT0}, s{sT1}
    s_lshl_b32 s{sT0}, s{sT0}, 15
    s_lshl_b32 s{sT1}, s{sM}, 12
    s_add_u32 s{sT0}, s{sT0}, s{sT1}
    s_add_u32 s{sT0}, s{sT0}, {WS_O}
    v_add_u32 v{a}, s{sT1}, v{vL16}
    s_lshl_b32 s{sT1}, s{sM}, 2
    v_add_u32 v{b}, s{sT1}, v{vC}
    ''')
    e('s_barrier')
    e('@stamp m_all')
    e('L_opoll:')
    for i in range(4):
        e(f'buffer_load_dwordx4 {v(S0+4*i,4)}, v{vL16}, {srd(S_WS)}, s{sT0} offen offset:{i*1024} sc1')
    e(f's_waitcnt vmcnt(0)')
    e(f'v_max3_u32 v{c}, v{S0}, v{S0+1}, v{S0+2}')
    for i in range(3,15,2): e(f'v_max3_u32 v{c}, v{c}, v{S0+i}, v{S0+i+1}')
    e(f'''
    v_max_u32 v{c}, v{c}, v{S0+15}
    v_cmp_eq_u32 vcc, -1, v{c}
    s_cbranch_vccz L_ook
    s_sub_u32 s{sTO}, s{sTO}, 16
    s_cbranch_scc0 L_opoll
    s_mov_b32 s{sTO}, 0
    L_ook:
    ''')
    for i in range(4):
        e(f'ds_write_b128 v{a}, {v(S0+4*i,4)} offset:{i*1024}')
    e('s_waitcnt lgkmcnt(0)')
    e('s_barrier')
    e('@stamp m_end')
    if e.probe:
        e(f'''
        s_cmp_lt_u32 s{sM}, 4
        s_cbranch_scc1 L_end
        s_memrealtime s[60:61]
        s_waitcnt lgkmcnt(0)
        s_mul_i32 s63, s63, {PK}
        s_min_u32 s63, s63, 20000
        s_mov_b32 s62, s60
        L_probe:
        s_memrealtime s[60:61]
        s_waitcnt lgkmcnt(0)
        s_sub_u32 s60, s60, s62
        s_cmp_lt_u32 s60, s63
        s_cbranch_scc1 L_probe
        ''')
    finish()
    e('''
    L_end:
    s_endpgm
    ''')
    return e.text()

HEAD = open('cdna_kernels/%s.s.ref' % NAME).read().split('; Override launch geometry')[0]
def full():
    body = gen()
    s = HEAD
    s += f'; @launch grid=(256,1,1) block=(768,1,1) lds={LDS_BYTES}\n'
    s += f'''.amdgcn_target "amdgcn-amd-amdhsa--gfx950"
.text
.globl {NAME}_kernel
.p2align 8
.type {NAME}_kernel,@function
{NAME}_kernel:
{body}
.section .rodata,"a"
.p2align 6
.amdhsa_kernel {NAME}_kernel
  .amdhsa_next_free_vgpr 168
  .amdhsa_next_free_sgpr 102
  .amdhsa_accum_offset 168
  .amdhsa_group_segment_fixed_size 0
  .amdhsa_kernarg_size 128
  .amdhsa_user_sgpr_count 2
  .amdhsa_user_sgpr_kernarg_segment_ptr 1
  .amdhsa_system_sgpr_workgroup_id_x 1
.end_amdhsa_kernel
'''
    return s
if __name__ == '__main__':
    if len(sys.argv) > 1 and sys.argv[1].startswith('diag'):
        DIAG = 1
        open('dev/%s.s' % sys.argv[1], 'w').write(full())
        import json; json.dump(gen.e.stamps, open('diag.json','w'))
    else:
        out = sys.argv[1] if len(sys.argv) > 1 else f'cdna_kernels/{NAME}.s'
        open(out, 'w').write(full())
```

```python
import sys, struct, math
from asmlib import Asm

NAME = 'gated_mix__grouped_kv_mqa__ssm_conv_s4d__prompt'
def f32(x): return '0x%08x' % struct.unpack('<I', struct.pack('<f', x))[0]
def f32v(x): return struct.unpack('<f', struct.pack('<f', x))[0]

WS_KV = 0x0
WS_G  = 0x20000
FST = 0x1100
WS_F1 = 0x30000
WS_F2 = 0x40000
WS_GEN = 0x50000
LDELTA = 0x80000
WS_O  = 0x100000
WS_B  = 0x400000
WS_XT = 0x600000
WS_DIAG = 0x800000
WS_SIZE = 0x900000
POOL = 131072
PA = 0; XH = 0x4000; XFL = 0xC000; WQ = 0x14000
KREV = POOL; KREV_CH = 8320; KREV_O = 4160
PB = POOL + 16640; GW = 2592
XC = PB; XC_CH = 4608
PC = POOL + 31488
PG = PC + 256
LDS_BYTES = 163840
C_ISS,C_T0,C_T1,C_QH,C_QA,C_TAB,C_T2,C_KREV,C_ST,C_KVOK,C_KISS = range(11)
C_XT=11; C_CR=13; C_CW=15; C_CONV=17; C_GH=18; C_KV=24

P_X=4; P_WQ=6; P_WK=8; P_WV=10; P_WO=12; P_LAR=16; P_AIM=18; P_CR=20; P_CI=22; P_LDT=24; P_DSK=26; P_GATE=28; P_OUT=30; P_DBG=32; P_WS=34
S_X=36; S_WQ=40; S_WKV=44; S_WS=48; S_OUT=52; S_GATE=56; S_DBG=60; S_WO=64
sW=68; sRB=69; sCB=70; sD0=71; sLDT=72; sDSK=73; sT0=74; sT1=75; sT2=76; sT3=77; sRT=78; sHD=79; sM=80; sCNT=81; sFB=82; sTO=83
sM0=84; sM1=86
sOB=88; sT4=89; sT5=90; sSC=91; sSCI=92; sWT=93
sCH=96; sHF=97; sKAP=98; sNON=99; sPOS=100; sXCD=101

def srd(n): return f's[{n}:{n+3}]'
def sp(n): return f's[{n}:{n+1}]'
def v(n, k=1): return f'v{n}' if k == 1 else f'v[{n}:{n+k-1}]'

LOG2E = 1.4426950408889634
L2E_HI = f32v(LOG2E); L2E_LO = LOG2E - L2E_HI
INV2PI = 1.0/(2*math.pi); I2P_HI = f32v(INV2PI); I2P_LO = INV2PI - I2P_HI

DIAG = False
def gen():
    e = Asm(DIAG)
    gen.e = e
    import os
    e.probe = os.environ.get('PROBE')
    PK = int(os.environ.get('PK','4'))
    vL=1; vL16=2; vC=3; vOne=166; vWT=165
    uid = [0]
    def wait(c, target, addr=vC, sleep=1):
        uid[0] += 1; u = uid[0]
        e(f'''
        L_wt{u}:
        ds_read_b32 v{vWT}, v{addr} offset:{4*c}
        s_waitcnt lgkmcnt(0)
        v_readfirstlane_b32 s{sWT}, v{vWT}
        s_cmp_ge_u32 s{sWT}, {target}
        s_cbranch_scc1 L_wd{u}
        s_sleep {sleep}
        s_sub_u32 s{sTO}, s{sTO}, 1
        s_cbranch_scc0 L_wt{u}
        s_mov_b32 s{sTO}, 0
        L_wd{u}:
        ''')
    def signal(c, addr=vC):
        e(f'''
        s_mov_b64 exec, 1
        ds_add_u32 v{addr}, v{vOne} offset:{4*c}
        s_mov_b64 exec, -1
        ''')
    def mk(S, P, nbytes):
        e(f'''
        s_mov_b32 s{S}, s{P}
        s_and_b32 s{S+1}, s{P+1}, 0xffff
        s_mov_b32 s{S+2}, {nbytes}
        s_mov_b32 s{S+3}, 0x00020000
        ''')
    def finish():
        if DIAG == 1:
            e(f'''
            @rt 63
            s_getreg_b32 s94, hwreg(HW_REG_XCC_ID)
            v_writelane_b32 v167, s94, 62
            v_writelane_b32 v167, s{sTO}, 61
            s_mul_i32 s{sT0}, s2, 3072
            s_lshl_b32 s{sT1}, s{sW}, 8
            s_add_u32 s{sT0}, s{sT0}, s{sT1}
            s_add_u32 s{sT0}, s{sT0}, {WS_DIAG}
            v_lshlrev_b32 v{vWT}, 2, v{vL}
            buffer_store_dword v167, v{vWT}, {srd(S_WS)}, s{sT0} offen
            ''')
        e('s_endpgm')
    vM15=4; vG4=5; a=6; b=7; c=8; d=9
    e(f'''
    s_cmp_ge_u32 s2, 256
    s_cbranch_scc1 L_end
    s_load_dwordx16 s[4:19], s[0:1], 0
    s_load_dwordx16 s[20:35], s[0:1], 64
    @stamp start
    @rt 60
    v_and_b32 v{vL}, 63, v0
    v_lshrrev_b32 v{a}, 6, v0
    v_lshlrev_b32 v{vL16}, 4, v{vL}
    v_readfirstlane_b32 s{sW}, v{a}
    v_mov_b32 v{vC}, {PC}
    v_lshl_add_u32 v{a}, v{vL}, 2, v{vC}
    v_mov_b32 v{b}, 0
    ds_write_b32 v{a}, v{b}
    v_mov_b32 v{vOne}, 1
    s_mov_b32 s{sTO}, 0x100000
    s_and_b32 s{sT0}, s2, 7
    s_lshr_b32 s{sT1}, s2, 3
    s_lshr_b32 s{sT2}, s{sT1}, 3
    s_lshl_b32 s{sRB}, s{sT0}, 2
    s_add_u32 s{sRB}, s{sRB}, s{sT2}
    s_and_b32 s{sCB}, s{sT1}, 7
    s_lshl_b32 s{sD0}, s{sT0}, 6
    s_lshl_b32 s{sT1}, s{sT1}, 1
    s_add_u32 s{sD0}, s{sD0}, s{sT1}
    s_lshr_b32 s{sKAP}, s{sCB}, 2
    s_mov_b32 s{sXCD}, s{sT0}
    v_and_b32 v{vM15}, 15, v{vL}
    v_lshrrev_b32 v{vG4}, 4, v{vL}
    s_bfe_u32 s{sT0}, s{sW}, 0x10001
    s_add_u32 s{sT0}, s{sD0}, s{sT0}
    s_lshl_b32 s{sT0}, s{sT0}, 8
    s_and_b32 s{sT1}, s{sW}, 1
    s_lshl_b32 s{sT1}, s{sT1}, 6
    s_add_u32 s{sT0}, s{sT0}, s{sT1}
    s_lshr_b32 s{sT1}, s{sW}, 3
    s_lshl_b32 s{sT1}, s{sT1}, 7
    s_add_u32 s{sT0}, s{sT0}, s{sT1}
    v_and_b32 v{a}, 31, v{vL}
    v_lshlrev_b32 v{a}, 1, v{a}
    v_add_u32 v{a}, s{sT0}, v{a}
    s_cmp_lt_u32 s{sW}, 4
    s_waitcnt lgkmcnt(0)
    s_cbranch_scc1 L_nopar
    global_load_ushort v14, v{a}, {sp(P_LAR)}
    global_load_ushort v15, v{a}, {sp(P_AIM)}
    global_load_ushort v16, v{a}, {sp(P_CR)}
    global_load_ushort v17, v{a}, {sp(P_CI)}
    L_nopar:
    s_barrier
    ''')
    mk(S_X, P_X, 2097152)
    mk(S_WS, P_WS, WS_SIZE)
    mk(S_WQ, P_WQ, 524288)
    mk(S_GATE, P_GATE, 1024)
    e(f'''
    s_bitcmp1_b32 s{sCB}, 0
    s_cselect_b32 s{S_WKV}, s{P_WV}, s{P_WK}
    s_cselect_b32 s{S_WKV+1}, s{P_WV+1}, s{P_WK+1}
    s_and_b32 s{S_WKV+1}, s{S_WKV+1}, 0xffff
    s_mov_b32 s{S_WKV+2}, 16384
    s_mov_b32 s{S_WKV+3}, 0x00020000
    s_lshl_b32 s{sT4}, s{sD0}, 1
    s_load_dword s{sLDT}, {sp(P_LDT)}, s{sT4}
    s_load_dword s{sDSK}, {sp(P_DSK)}, s{sT4}
    s_cmp_ge_u32 s{sW}, 4
    s_cbranch_scc1 L_main
    s_setprio 3
    v_mov_b32 v11, {WS_GEN}
    buffer_load_dword v164, v11, {srd(S_WS)}, 0 offen sc1
    s_cmp_eq_u32 s{sW}, 1
    s_cbranch_scc1 L_h1
    s_cmp_ge_u32 s{sW}, 2
    s_cbranch_scc1 L_h23
    ''')
    XF=16; WF=80; GF=112; dk=144; dg=148; xk=152
    def xrows(lbl, n):
        e(f's_mov_b32 s{sCNT}, 0')
        e(f'L_xp{lbl}:')
        for j in range(16):
            e(f'''
            s_mov_b32 m0, s{sT1}
            v_xor_b32 v{a}, {16*j}, v{vL16}
            buffer_load_dwordx4 v{a}, {srd(S_X)}, s{sT0} offen lds
            s_add_u32 s{sT1}, s{sT1}, 1024
            s_add_u32 s{sT0}, s{sT0}, 1024
            ''')
        if n > 16:
            e(f'''
            s_add_u32 s{sCNT}, s{sCNT}, 1
            s_cmp_lt_u32 s{sCNT}, 2
            s_cbranch_scc1 L_xp{lbl}
            ''')
    e(f'''
    s_lshl_b32 s{sT0}, s{sRB}, 16
    s_lshr_b32 s{sT1}, s{sCB}, 1
    s_lshl_b32 s{sT1}, s{sT1}, 14
    s_add_u32 s{sT0}, s{sT0}, s{sT1}          ; row0*1024
    s_and_b32 s{sT1}, s{sT1}, 0x4000
    s_add_u32 s{sT1}, s{sT1}, {XH}
    v_lshlrev_b32 v{xk}, 10, v{vM15}
    v_xor_b32 v{b}, v{vG4}, v{vM15}
    v_lshl_add_u32 v{xk}, v{b}, 4, v{xk}
    v_add_u32 v{xk}, s{sT1}, v{xk}
    ''')
    xrows('k', 16)
    e(f'''
    s_mov_b32 m0, {PG}
    s_mov_b32 s{sT1}, 0
    buffer_load_dwordx4 v{vL16}, {srd(S_GATE)}, 0 offen lds
    v_xor_b32 v{xk+1}, 64, v{xk}
    v_xor_b32 v{xk+2}, 0x80, v{xk}
    v_xor_b32 v{xk+3}, 0xc0, v{xk}
    ''')
    for s4 in range(4):
        e(f's_mov_b32 m0, {PA + s4*4096}')
        for i in range(4):
            e(f'buffer_load_dwordx4 v{vL16}, {srd(S_WKV)}, s{sT1} offen offset:{i*1024} lds')
        e(f's_add_u32 s{sT1}, s{sT1}, 4096')
    e(f'''
    @stamp h_issued
    v_lshlrev_b32 v{a}, 8, v{vG4}
    v_lshl_add_u32 v{a}, v{vM15}, 3, v{a}
    v_add_u32 v{a}, {PA}, v{a}                ; PA + g*256 + (l&15)*8
    v_lshlrev_b32 v{b}, 4, v{vG4}
    v_add_u32 v{b}, {PG}, v{b}
    s_lshl_b32 s{sT0}, s{sRB}, 2
    s_lshr_b32 s{sT1}, s{sCB}, 1
    s_add_u32 s{sT0}, s{sT0}, s{sT1}          ; kb
    s_lshr_b32 s{sT1}, s{sT0}, 1
    s_lshl_b32 s{sT1}, s{sT1}, 11
    s_and_b32 s{sT2}, s{sT0}, 1
    s_lshl_b32 s{sT2}, s{sT2}, 8
    s_add_u32 s{sT1}, s{sT1}, s{sT2}
    s_and_b32 s{sT2}, s{sCB}, 1
    s_lshl_b32 s{sT2}, s{sT2}, 10
    s_add_u32 s{sT1}, s{sT1}, s{sT2}
    s_lshl_b32 s{sT0}, s{sT0}, 6
    s_add_u32 s{sT0}, s{sT0}, {WS_G}
    v_and_b32 v{c}, 1, v{vG4}
    v_lshrrev_b32 v{d}, 1, v{vG4}
    s_add_u32 s{sT2}, s{sT1}, {LDELTA}
    s_mov_b32 s{sT3}, {LDELTA}
    s_mul_i32 s{sT4}, s{sXCD}, {FST}
    s_lshr_b32 s{sT5}, s2, 3
    s_lshl_b32 s{sT5}, s{sT5}, 2
    s_add_u32 s{sT4}, s{sT4}, s{sT5}
    s_add_u32 s{sT4}, s{sT4}, {WS_F1}
    v_mov_b32 v11, s{sT4}
    s_waitcnt vmcnt(33) lgkmcnt(0)
    ''')
    def nonce():
        e(f'''
        v_readfirstlane_b32 s{sNON}, v164
        s_mul_i32 s{sNON}, s{sNON}, 0x9e3779b1
        s_add_u32 s{sNON}, s{sNON}, 0x7f4a7c15
        ''')
    nonce()
    e(f'''
    s_getreg_b32 s{sT4}, hwreg(HW_REG_XCC_ID, 0, 4)
    s_xor_b32 s{sT4}, s{sT4}, s{sNON}
    v_mov_b32 v12, s{sT4}
    s_waitcnt vmcnt(17)
    ''')
    signal(C_T0)
    for s_ in range(16):
        e(f'ds_read_b128 {v(XF+4*s_,4)}, v{xk+(s_&3)} offset:{(s_>>2)*256}')
    signal(C_QH)
    e(f'''
    s_bitcmp1_b32 s{sCB}, 0
    s_cbranch_scc1 L_kv_v
    ''')
    def kvloop(isv):
        n = 2 if isv else 3
        for g in range(5):
            if g < 4:
                e(f's_waitcnt vmcnt({4*(3-g)})')
                for s in range(4*g, 4*g+4):
                    bi = s % 8
                    e(f'ds_read_b64_tr_b16 {v(WF+4*bi,2)}, v{a} offset:{s*1024}')
                    e(f'ds_read_b64_tr_b16 {v(WF+4*bi+2,2)}, v{a} offset:{s*1024+128}')
                    if not isv: e(f'ds_read_b128 {v(GF+4*bi,4)}, v{b} offset:{s*64}')
            if g >= 1:
                if g < 4: e(f's_waitcnt lgkmcnt({4*n})')
                for p in range(4*g-4, 4*g):
                    if g == 4: e(f's_waitcnt lgkmcnt({n*(15-p)})')
                    mm(p, p % 8, isv)
    def mm(p, pb, isv):
        cc = '0' if p == 0 else v(dk,4)
        if isv:
            e(f'v_mfma_f32_16x16x32_bf16 {v(dk,4)}, {v(XF+4*p,4)}, {v(WF+4*pb,4)}, {cc}')
        else:
            e(f'v_mfma_f32_16x16x32_bf16 {v(dk,4)}, {v(WF+4*pb,4)}, {v(XF+4*p,4)}, {cc}')
            e(f'v_mfma_f32_16x16x32_bf16 {v(dg,4)}, {v(GF+4*pb,4)}, {v(XF+4*p,4)}, {"0" if p==0 else v(dg,4)}')
    kvloop(False)
    e(f'''
    v_lshlrev_b32 v{a}, 9, v{d}
    v_lshl_add_u32 v{a}, v{c}, 3, v{a}        ; K: (g>>1)*512 + (g&1)*8
    v_lshl_add_u32 v{a}, v{vM15}, 4, v{a}
    v_lshlrev_b32 v{b}, 2, v{vL}
    v_cvt_pk_bf16_f32 v{dk}, v{dk}, v{dk+1}
    v_cvt_pk_bf16_f32 v{dk+1}, v{dk+2}, v{dk+3}
    buffer_store_dwordx2 {v(dk,2)}, v{a}, {srd(S_WS)}, s{sT2} offen
    buffer_store_dwordx2 {v(dk,2)}, v{a}, {srd(S_WS)}, s{sT1} offen sc1
    v_cvt_pk_bf16_f32 v{dg}, v{dg}, v{dg}
    v_lshlrev_b32 v{dg}, 16, v{dg}
    v_mul_f32 v{dg}, {f32(-LOG2E)}, v{dg}
    v_exp_f32 v{dg}, v{dg}
    v_add_f32 v{dg}, 1.0, v{dg}
    v_rcp_f32 v{dg}, v{dg}
    v_cvt_pk_bf16_f32 v{dg}, v{dg}, v{dg}
    v_lshlrev_b32 v{dg}, 16, v{dg}
    s_mov_b64 exec, 1
    s_waitcnt vmcnt(1)
    buffer_store_dword v12, v11, {srd(S_WS)}, s{sT3} offen
    s_mov_b64 exec, 0xffff
    buffer_store_dword v{dg}, v{b}, {srd(S_WS)}, s{sT0} offen sc1
    s_mov_b64 exec, -1
    s_branch L_kv_d
    L_kv_v:
    ''')
    kvloop(True)
    e(f'''
    v_lshlrev_b32 v{a}, 9, v{c}
    v_lshl_add_u32 v{a}, v{d}, 3, v{a}        ; V: (g&1)*512 + (g>>1)*8
    v_lshl_add_u32 v{a}, v{vM15}, 4, v{a}
    v_cvt_pk_bf16_f32 v{dk}, v{dk}, v{dk+1}
    v_cvt_pk_bf16_f32 v{dk+1}, v{dk+2}, v{dk+3}
    buffer_store_dwordx2 {v(dk,2)}, v{a}, {srd(S_WS)}, s{sT2} offen
    buffer_store_dwordx2 {v(dk,2)}, v{a}, {srd(S_WS)}, s{sT1} offen sc1
    s_mov_b64 exec, 1
    s_waitcnt vmcnt(1)
    buffer_store_dword v12, v11, {srd(S_WS)}, s{sT3} offen
    s_mov_b64 exec, -1
    L_kv_d:
    @stamp h_a
    ''')
    signal(C_KV+8)
    e(f'''
    s_mov_b64 exec, 1
    s_waitcnt vmcnt(0)
    buffer_store_dword v12, v11, {srd(S_WS)}, 0 offen sc1
    s_mov_b64 exec, -1
    @stamp h_b
    ''')
    def gpoll(lbl, sbase, sleep):
        e(f'''
        v_and_b32 v{a}, 31, v{vL}
        v_lshlrev_b32 v{a}, 2, v{a}
        L_poll{lbl}:
        buffer_load_dword v{b}, v{a}, {srd(S_WS)}, s{sbase} offen sc1
        s_waitcnt vmcnt(0)
        v_xor_b32 v{b}, s{sNON}, v{b}
        v_cmp_lt_u32 vcc, 15, v{b}
        s_cbranch_vccz L_polled{lbl}
        s_sleep {sleep}
        s_sub_u32 s{sTO}, s{sTO}, 16
        s_cbranch_scc0 L_poll{lbl}
        s_mov_b32 s{sTO}, 0
        L_polled{lbl}:
        ''')
    e(f's_mov_b32 s{sPOS}, 2')
    e('s_branch L_h023')
    e(f'''
    L_h1:
    s_lshl_b32 s{sT0}, s{sRB}, 16
    s_lshr_b32 s{sT1}, s{sCB}, 1
    s_xor_b32 s{sT1}, s{sT1}, 1
    s_lshl_b32 s{sT1}, s{sT1}, 14
    s_add_u32 s{sT0}, s{sT0}, s{sT1}
    s_and_b32 s{sT1}, s{sT1}, 0x4000
    s_add_u32 s{sT1}, s{sT1}, {XH}
    ''')
    xrows('h', 16)
    signal(C_ISS)
    e('@stamp h_issued')
    TR=16; T2=24
    e(f'''
    v_bfe_u32 v{a}, v{vL}, 2, 2               ; r
    v_lshl_add_u32 v{b}, v{vG4}, 3, v{a}      ; row = 8g + r
    v_and_b32 v{c}, 15, v{b}
    s_lshl_b32 s{sT4}, s{sCB}, 3
    v_bfe_u32 v{d}, v{vL}, 1, 1
    v_or_b32 v{d}, s{sT4}, v{d}               ; c16 (q = 0)
    v_xor_b32 v{d}, v{d}, v{c}
    v_lshlrev_b32 v{d}, 4, v{d}
    v_lshl_add_u32 v{d}, v{b}, 10, v{d}
    v_and_b32 v{a}, 1, v{vL}
    v_lshl_add_u32 v{d}, v{a}, 3, v{d}
    ''')
    e('s_waitcnt vmcnt(0) lgkmcnt(0)')
    e('@stamp h_a')
    signal(C_T0)
    wait(C_QH, 1, sleep=1)
    def xtr(hog):
        for q in range(4):
            e(f'v_xor_b32 v{a}, {32*q}, v{d}')
            e(f'v_xor_b32 v{b}, {(32*q) ^ 64}, v{d}')
            e(f'ds_read_b64_tr_b16 {v(T2+8*q+4*hog,2)}, v{a} offset:{XH if hog else XFL}')
            e(f'ds_read_b64_tr_b16 {v(T2+8*q+4*hog+2,2)}, v{b} offset:{(XH if hog else XFL)+4096}')
    xtr(1)
    signal(C_QH)
    wait(C_ISS, 3, sleep=1)
    wait(C_TAB, 8, sleep=1)
    e(f'''
    s_lshl_b32 s{sT0}, s{sRB}, 16
    s_xor_b32 s{sT1}, s{sKAP}, 1
    s_lshl_b32 s{sT1}, s{sT1}, 15
    s_add_u32 s{sT0}, s{sT0}, s{sT1}
    s_mov_b32 s{sT1}, {XFL}
    ''')
    xrows('f', 32)
    e('@stamp h_b')
    nonce()
    e(f'''
    v_mov_b32 v{TR}, -1
    v_mov_b32 v{TR+1}, -1
    v_mov_b32 v{TR+2}, -1
    v_mov_b32 v{TR+3}, -1
    s_lshl_b32 s{sT0}, s{sRB}, 16
    s_lshl_b32 s{sT1}, s{sCB}, 12
    s_add_u32 s{sT0}, s{sT0}, s{sT1}
    s_add_u32 s{sT0}, s{sT0}, {WS_O}
    s_add_u32 s{sT1}, s{sT0}, 32768
    s_lshl_b32 s{sT2}, s{sD0}, 12
    s_add_u32 s{sT2}, s{sT2}, {WS_B}
    s_add_u32 s{sT3}, s{sT2}, 4096
    v_lshlrev_b32 v{c}, 12, v{vM15}
    v_lshl_add_u32 v{c}, v{vG4}, 4, v{c}
    s_lshl_b32 s{sT4}, s{sKAP}, 6
    v_add_u32 v13, s{sT4}, v{c}
    v_xor_b32 v{c}, 64, v13
    s_lshl_b32 s{sT4}, s{sCB}, 18
    s_lshl_b32 s{sT5}, s{sRB}, 7
    s_add_u32 s{sT4}, s{sT4}, s{sT5}
    s_add_u32 s{sT4}, s{sT4}, {WS_XT}
    s_waitcnt vmcnt(0)
    ''')
    signal(C_T2)
    e('@stamp h_c')
    xtr(0)
    signal(C_QA)
    wait(C_KISS, 3, sleep=3)
    for q in range(8):
        e(f'buffer_store_dwordx4 {v(T2+4*q,4)}, v{13 if q&1 else c}, {srd(S_WS)}, s{sT4} offen sc1')
        if q & 1: e(f's_add_u32 s{sT4}, s{sT4}, 65536')
    for sr in (sT0, sT1, sT2, sT3):
        for j in range(4):
            e(f'buffer_store_dwordx4 {v(TR,4)}, v{vL16}, {srd(S_WS)}, s{sr} offen offset:{j*1024} sc1')
    e(f'''
    s_mul_i32 s{sT0}, s{sCB}, {FST}
    s_lshl_b32 s{sT1}, s{sRB}, 2
    s_add_u32 s{sT0}, s{sT0}, s{sT1}
    s_add_u32 s{sT0}, s{sT0}, {WS_F2}
    v_mov_b32 v11, s{sT0}
    v_mov_b32 v{a}, s{sNON}
    s_mov_b64 exec, 1
    s_waitcnt vmcnt(0)
    buffer_store_dword v{a}, v11, {srd(S_WS)}, 0 offen sc1
    s_mov_b64 exec, -1
    ''')
    signal(C_ST)
    e('s_branch L_hkvd')
    e('L_h23:')
    e(f'''
    v_lshrrev_b32 v{a}, 3, v{vL}
    v_lshlrev_b32 v{a}, 10, v{a}
    v_and_b32 v{b}, 7, v{vL}
    v_bfe_u32 v{c}, v{vL}, 4, 1
    v_lshlrev_b32 v{c}, 1, v{c}
    v_xor_b32 v{b}, v{b}, v{c}
    v_lshl_add_u32 v{c}, v{b}, 4, v{a}
    v_xor_b32 v{d}, 64, v{c}
    s_sub_u32 s{sPOS}, s{sW}, 1               ; 1 or 2
    s_lshl_b32 s{sT0}, s{sPOS}, 2
    v_add_u32 v10, s{sT0}, v{vC}
    ''')
    wait(C_ISS, f's{sPOS}', sleep=1)
    e(f'''
    s_and_b32 s{sT2}, s{sW}, 1
    s_lshl_b32 s{sT0}, s{sT2}, 18
    s_lshl_b32 s{sT1}, s{sCB}, 7
    s_add_u32 s{sT0}, s{sT0}, s{sT1}
    s_lshl_b32 s{sT1}, s{sT2}, 15
    s_add_u32 s{sT1}, s{sT1}, {WQ}
    s_mov_b32 s{sCNT}, 0
    L_wp:
    ''')
    for j in range(4):
        e(f'''
        s_mov_b32 m0, s{sT1}
        s_add_u32 s{sT1}, s{sT1}, 1024
        buffer_load_dwordx4 v{d if j&1 else c}, {srd(S_WQ)}, s{sT0} offen lds
        s_add_u32 s{sT0}, s{sT0}, 8192
        ''')
    e(f'''
    s_add_u32 s{sCNT}, s{sCNT}, 1
    s_cmp_lt_u32 s{sCNT}, 8
    s_cbranch_scc1 L_wp
    ''')
    signal(C_ISS)
    e('@stamp h_issued')
    e('s_waitcnt vmcnt(0)')
    signal(C_ISS, addr=10)
    e('@stamp h_a')
    nonce()
    e(f's_sub_u32 s{sPOS}, s{sPOS}, 1')
    e('L_h023:')
    e(f'''
    L_kvl:
    s_add_u32 s{sT1}, s{sXCD}, s{sPOS}
    s_and_b32 s{sT1}, s{sT1}, 7
    s_mul_i32 s{sT2}, s{sT1}, {FST}
    s_add_u32 s{sT2}, s{sT2}, {WS_F1}
    s_lshl_b32 s{sT1}, s{sT1}, 14
    s_cmp_ge_u32 s{sPOS}, 3
    s_cbranch_scc1 L_kvp
    s_cmp_eq_u32 s{sPOS}, 0
    s_cbranch_scc0 L_kvw1
    ''')
    wait(C_KV+8, 1, sleep=1)
    e(f'''
    s_getreg_b32 s{sT3}, hwreg(HW_REG_XCC_ID, 0, 4)
    s_xor_b32 s{sT3}, s{sT3}, s{sNON}
    s_add_u32 s{sT4}, s{sT2}, {LDELTA}
    s_mov_b32 s{sCNT}, 0
    v_and_b32 v{a}, 31, v{vL}
    v_lshlrev_b32 v{a}, 2, v{a}
    L_lpoll:
    buffer_load_dword v{b}, v{a}, {srd(S_WS)}, s{sT4} offen sc1
    s_waitcnt vmcnt(0)
    v_cmp_ne_u32 vcc, s{sT3}, v{b}
    v_xor_b32 v{b}, s{sNON}, v{b}
    s_cbranch_vccz L_lok
    s_sleep 2
    s_add_u32 s{sCNT}, s{sCNT}, 1
    s_cmp_lt_u32 s{sCNT}, 12
    s_cbranch_scc1 L_lpoll
    s_branch L_kvp
    L_lok:
    s_add_u32 s{sT1}, s{sT1}, {LDELTA}
    @stamp h_p0
    s_branch L_kvgo
    L_kvw1:
    ''')
    wait(C_KISS, 1, sleep=1)
    e('L_kvp:')
    gpoll(1, sT2, 6)
    e(f'''
    s_cmp_eq_u32 s{sPOS}, 0
    s_cbranch_scc1 L_kvgo
    s_cmp_ge_u32 s{sPOS}, 3
    s_cbranch_scc1 L_kvw2
    ''')
    wait(C_QH, 6, sleep=1)
    e('s_branch L_kvgo')
    e('L_kvw2:')
    wait(C_QA, 9, sleep=2)
    e('L_kvgo:')
    wait(C_KISS, f's{sPOS}', sleep=1)
    e(f'''
    s_lshl_b32 s{sT0}, s{sPOS}, 14
    ''')
    for j in range(4):
        e(f's_mov_b32 m0, s{sT0}')
        for i in range(4):
            e(f'buffer_load_dwordx4 v{vL16}, {srd(S_WS)}, s{sT1} offen offset:{i*1024} sc1 lds')
        e(f's_add_u32 s{sT0}, s{sT0}, 4096')
        e(f's_add_u32 s{sT1}, s{sT1}, 4096')
    signal(C_KISS)
    e(f'''
    s_lshl_b32 s{sT0}, s{sPOS}, 2
    v_add_u32 v{d}, s{sT0}, v{vC}
    s_cmp_lg_u32 s{sPOS}, 0
    s_cbranch_scc1 L_noloc
    s_getreg_b32 s{sT1}, hwreg(HW_REG_XCC_ID, 0, 4)
    v_cmp_ne_u32 vcc, s{sT1}, v{b}
    s_and_b32 s{sT0}, s{sRB}, 3
    s_lshl_b32 s{sT0}, s{sT0}, 3
    s_lshr_b32 s{sT0}, vcc_lo, s{sT0}
    s_and_b32 s{sT0}, s{sT0}, 0xff
    s_cbranch_scc1 L_noloc
    ''')
    signal(C_KVOK)
    e('L_noloc:')
    e(f'''
    s_cmp_lg_u32 s{sPOS}, 7
    s_cbranch_scc1 L_no7
    s_mul_i32 s{sT2}, s{sXCD}, {FST}
    s_add_u32 s{sT2}, s{sT2}, {WS_F1}
    ''')
    gpoll(2, sT2, 6)
    e(f'''
    L_no7:
    s_cmp_eq_u32 s{sPOS}, 7
    s_cselect_b32 s{sT0}, 2, 1
    v_mov_b32 v{a}, s{sT0}
    s_mov_b64 exec, 1
    s_waitcnt vmcnt(0)
    ds_add_u32 v{d}, v{a} offset:{4*C_KV}
    s_mov_b64 exec, -1
    ''')
    e(f'''
    s_cmp_ge_u32 s{sPOS}, 3
    s_cbranch_scc1 L_nostamp
    @stamp h_kv0
    L_nostamp:
    s_add_u32 s{sPOS}, s{sPOS}, 3
    s_cmp_lt_u32 s{sPOS}, 8
    s_cbranch_scc1 L_kvl
    L_hkvd:
    @stamp h_kvd
    ''')
    mk(S_WO, P_WO, 524288)
    mk(S_OUT, P_OUT, 2097152)
    e(f'''
    s_lshr_b32 s{sCH}, s{sW}, 1
    s_and_b32 s{sHF}, s{sW}, 1
    s_lshl_b32 s{sT0}, s{sCH}, 2
    v_add_u32 v10, s{sT0}, v{vC}
    ''')
    import os
    if os.environ.get('SKIPH'):
        e(f'v_mov_b32 v11, 0\nv_mov_b32 v{d}, 0\ns_branch L_hfin')
    wait(C_QA, 9, sleep=4)
    e(f'''
    s_cmp_eq_u32 s{sW}, 1
    s_cbranch_scc1 L_sg1
    s_cmp_eq_u32 s{sW}, 2
    s_cbranch_scc1 L_sg2
    s_cmp_eq_u32 s{sW}, 3
    s_cbranch_scc1 L_sg3
    v_mov_b32 v{a}, 0
    v_mov_b32 v{b}, 0
    v_lshlrev_b32 v11, 3, v{vL}
    v_add_u32 v{c}, {KREV+4096}, v11
    v_sub_u32 v11, {KREV+4088}, v11
    v_add_u32 v{d}, {PB+12}, v{vL16}
    s_mov_b64 exec, 0xff
    ds_write_b64 v{c}, {v(a,2)}
    ds_write_b64 v{c}, {v(a,2)} offset:{KREV_O}
    ds_write_b64 v{c}, {v(a,2)} offset:{KREV_CH}
    ds_write_b64 v{c}, {v(a,2)} offset:{KREV_CH+KREV_O}
    s_mov_b64 exec, -1
    ''')
    for ch in range(2):
        g0 = 16 + 16*ch
        for pp in range(2):
            e(f'ds_read_b128 {v(g0+6*pp,4)}, v{d} offset:{(2*ch+pp)*GW+4}')
            e(f'ds_read_b32 v{g0+6*pp+4}, v{d} offset:{(2*ch+pp)*GW}')
    for ch in range(2):
        g0 = 16 + 16*ch
        e(f's_waitcnt lgkmcnt({4 if ch==0 else 2})')
        for k in range(5): e(f'v_add_f32 v{g0+k}, v{g0+k}, v{g0+6+k}')
        e(f'''
        v_cvt_pk_bf16_f32 v{g0+12}, v{g0+3}, v{g0+2}
        v_cvt_pk_bf16_f32 v{g0+13}, v{g0+1}, v{g0}
        v_cvt_pk_bf16_f32 v{g0+14}, v{g0+2}, v{g0+1}
        v_cvt_pk_bf16_f32 v{g0+15}, v{g0}, v{g0+4}
        ds_write_b64 v11, {v(g0+12,2)} offset:{ch*KREV_CH}
        ds_write_b64 v11, {v(g0+14,2)} offset:{ch*KREV_CH+KREV_O}
        ''')
    e('s_branch L_sgd')
    def seg(sg):
        n = 2 << sg
        p0 = 128 << sg
        ta = {1:2, 2:3, 3:5}[sg]; tb = {1:3, 2:6, 3:12}[sg]
        val = lambda r: 0 if r < ta else (1 if r < tb else 2)
        e(f'''
        L_sg{sg}:
        v_lshlrev_b32 v{d}, 3, v{vL}
        v_add_u32 v{d}, {PB+16+(128+128*sg)*4-4}, v{d}
        v_lshlrev_b32 v11, {sg+2}, v{vL}
        v_sub_u32 v11, {KREV+(2047-(p0+n-1))*2}, v11
        ''')
        if sg == 1: e(f'v_cmp_eq_u32 vcc, 0, v{vL}')
        for ch in range(2):
            g0 = 16 + 32*ch
            for pp in range(2):
                e(f'ds_read_b64 {v(g0+4*pp,2)}, v{d} offset:{(2*ch+pp)*GW+4}')
                e(f'ds_read_b32 v{g0+4*pp+2}, v{d} offset:{(2*ch+pp)*GW+12}')
                if sg == 1: e(f'ds_read_b32 v{g0+4*pp+3}, v{d} offset:{(2*ch+pp)*GW}')
        e('s_waitcnt lgkmcnt(0)')
        for ch in range(2):
            g0 = 16 + 32*ch
            for k in range(4 if sg == 1 else 3): e(f'v_add_f32 v{g0+k}, v{g0+k}, v{g0+4+k}')
            if sg == 1: e(f'v_cndmask_b32 v{g0+3}, v{g0}, v{g0+3}, vcc')
            reg = lambda r: (g0+3 if sg == 1 else g0) if r < 0 else g0+val(r)
            E = g0+8; Oc = g0+16
            for i in range(n//2):
                r = n-1-2*i
                e(f'v_cvt_pk_bf16_f32 v{E+i}, v{reg(r)}, v{reg(r-1)}')
                e(f'v_cvt_pk_bf16_f32 v{Oc+i}, v{reg(r-1)}, v{reg(r-2)}')
            for (X, off) in ((E, 0), (Oc, KREV_O)):
                if sg == 1: e(f'ds_write_b64 v11, {v(X,2)} offset:{ch*KREV_CH+off}')
                else:
                    for hh in range(n//8): e(f'ds_write_b128 v11, {v(X+4*hh,4)} offset:{ch*KREV_CH+off+16*hh}')
        if sg < 3: e('s_branch L_sgd')
    for sg in (1,2,3): seg(sg)
    e('L_sgd:')
    signal(C_KREV)
    e('@stamp h_krev')
    e(f'''
    s_mul_i32 s{sT2}, s{sXCD}, {FST}
    s_add_u32 s{sT2}, s{sT2}, {WS_F2}
    s_cmp_eq_u32 s{sHF}, 1
    s_cbranch_scc1 L_polled3
    ''')
    gpoll(3, sT2, 8)
    e('@stamp h_f2')
    wait(C_KREV, 4, sleep=4)
    e(f'''
    s_mul_i32 s{sT1}, s{sCH}, {XC_CH}
    s_add_u32 s{sT1}, s{sT1}, {XC}
    s_cmp_eq_u32 s{sHF}, 1
    s_cbranch_scc1 L_xpad
    s_add_u32 s{sT1}, s{sT1}, 512
    s_mov_b32 m0, s{sT1}
    s_add_u32 s{sT0}, s{sD0}, s{sCH}
    s_lshl_b32 s{sT0}, s{sT0}, 12
    s_add_u32 s{sT0}, s{sT0}, {WS_XT}
    ''')
    for i in range(4):
        e(f'buffer_load_dwordx4 v{vL16}, {srd(S_WS)}, s{sT0} offen offset:{i*1024} sc1 lds')
    e(f'''
    s_branch L_xpad_d
    L_xpad:
    v_mov_b32 v{a}, 0
    v_mov_b32 v{b}, 0
    v_lshlrev_b32 v{c}, 3, v{vL}
    v_add_u32 v{c}, s{sT1}, v{c}
    ds_write_b64 v{c}, {v(a,2)}
    L_xpad_d:
    s_waitcnt vmcnt(0)
    ''')
    signal(C_XT, addr=10)
    e('@stamp h_kv1')
    aA=12; aB=20; CA=24; CB=56; CACC=120
    e(f'''
    v_lshrrev_b32 v{a}, 1, v{vG4}
    v_lshlrev_b32 v{a}, 4, v{a}
    v_add_u32 v{a}, v{a}, v{vM15}
    v_and_b32 v{b}, 1, v{vG4}
    v_lshlrev_b32 v{c}, 3, v{b}
    v_sub_u32 v{a}, v{a}, v{c}
    v_sub_u32 v{a}, 2047, v{a}                 ; r00
    v_and_b32 v{c}, 1, v{a}
    v_sub_u32 v{a}, v{a}, v{c}
    v_lshlrev_b32 v{a}, 1, v{a}
    v_mul_u32_u24 v{c}, {KREV_O}, v{c}
    v_add_u32 v{a}, v{a}, v{c}
    s_mul_i32 s{sT0}, s{sCH}, {KREV_CH}
    s_add_u32 s{sT0}, s{sT0}, {KREV - 192}
    s_lshl_b32 s{sT1}, s{sHF}, 8
    s_sub_u32 s{sT0}, s{sT0}, s{sT1}
    v_add_u32 v{aA}, s{sT0}, v{a}
    ''')
    for u in range(1,8):
        e(f'v_subrev_u32 v{aA+u}, {512*u}, v{aA}')
    e(f'''
    v_lshrrev_b32 v{a}, 1, v{vG4}
    v_sub_u32 v{a}, v{vM15}, v{a}
    v_lshlrev_b32 v{a}, 5, v{a}
    v_lshl_add_u32 v{a}, v{b}, 4, v{a}
    s_mul_i32 s{sT0}, s{sCH}, {XC_CH}
    s_add_u32 s{sT0}, s{sT0}, {XC + 512 - 192}
    s_sub_u32 s{sT0}, s{sT0}, s{sT1}
    v_add_u32 v{aB}, s{sT0}, v{a}
    ''')
    def rdA(wq, u):
        o = 16*(3-wq)
        e(f'ds_read2_b32 {v(CA+4*u,2)}, v{aA+u} offset0:{o} offset1:{o+1}')
        e(f'ds_read2_b32 {v(CA+4*u+2,2)}, v{aA+u} offset0:{o+2} offset1:{o+3}')
    def rdB(wq, s):
        e(f'ds_read_b128 {v(CB+32*(wq&1)+4*s,4)}, v{aB} offset:{s*512+(3-wq)*64}')
    for u in range(8): rdA(0, u)
    wait(C_XT, 2, addr=10, sleep=4)
    e('s_setprio 2')
    for s in range(8): rdB(0, s)
    for wq in range(4):
        e('s_waitcnt lgkmcnt(0)')
        B = CB + 32*(wq&1)
        for u in range(7,-1,-1):
            for nt in range(u, 8):
                e(f'v_mfma_f32_16x16x32_bf16 {v(CACC+4*nt,4)}, {v(CA+4*u,4)}, {v(B+4*(nt-u),4)}, {"0" if (wq==0 and nt==u) else v(CACC+4*nt,4)}')
            if wq < 3:
                rdA(wq+1, u)
                rdB(wq+1, u)
    e('s_setprio 3')
    signal(C_CR, addr=10)
    e(f'''
    @stamp h_conv
    s_cmp_eq_u32 s{sHF}, 0
    s_cbranch_scc1 L_noswap
    s_nop 7
    ''')
    for i in range(16): e(f'v_swap_b32 v{CACC+i}, v{CACC+16+i}')
    e(f'''
    L_noswap:
    s_mul_i32 s{sT0}, s{sCH}, {KREV_CH}
    s_add_u32 s{sT0}, s{sT0}, {KREV}
    s_lshl_b32 s{sT1}, s{sHF}, 12
    s_add_u32 s{sT2}, s{sT0}, s{sT1}
    s_xor_b32 s{sT1}, s{sT1}, 4096
    s_add_u32 s{sT0}, s{sT0}, s{sT1}
    v_add_u32 v{a}, s{sT2}, v{vL16}
    v_add_u32 v{b}, s{sT0}, v{vL16}
    ''')
    wait(C_CR, 2, addr=10, sleep=3)
    for q in range(4):
        e(f'ds_write_b128 v{a}, {v(CACC+16+4*q,4)} offset:{q*1024}')
    signal(C_CW, addr=10)
    e(f'''
    v_lshlrev_b32 v{c}, 5, v{vM15}
    v_lshl_add_u32 v{c}, v{vG4}, 3, v{c}
    s_lshl_b32 s{sT1}, s{sHF}, 11
    v_add_u32 v{c}, s{sT1}, v{c}
    s_mul_i32 s{sT0}, s{sCH}, {XC_CH}
    s_add_u32 s{sT0}, s{sT0}, {XC+512}
    v_add_u32 v{d}, s{sT0}, v{c}
    s_add_u32 s{sT0}, s{sD0}, s{sCH}
    s_lshl_b32 s{sT0}, s{sT0}, 12
    s_add_u32 s{sT0}, s{sT0}, {WS_B}
    s_lshl_b32 s{sT1}, s{sCH}, 4
    s_lshr_b32 s{sT1}, s{sDSK}, s{sT1}
    s_lshl_b32 s{sT1}, s{sT1}, 16
    s_mov_b32 s{sT2}, 0xfffefffe
    ''')
    wait(C_ST, 1, sleep=1)
    wait(C_CW, 2, addr=10, sleep=3)
    XV=24; T=40
    for q in range(4):
        e(f'ds_read_b128 {v(CACC+16+4*q,4)}, v{b} offset:{q*1024}')
        e(f'ds_read_b64 {v(XV+2*q,2)}, v{d} offset:{q*512}')
    signal(C_CONV)
    for q in range(4):
        y=CACC+4*q
        e(f's_waitcnt lgkmcnt({7-2*q})')
        for r in range(4): e(f'v_add_f32 v{y+r}, v{y+r}, v{y+16+r}')
        for hh in range(2):
            x=XV+2*q+hh
            e(f'''
            v_lshlrev_b32 v{T+1}, 16, v{x}
            v_and_b32 v{T+2}, 0xffff0000, v{x}
            v_fmac_f32 v{y+2*hh}, s{sT1}, v{T+1}
            v_fmac_f32 v{y+2*hh+1}, s{sT1}, v{T+2}
            v_cvt_pk_bf16_f32 v{x}, v{y+2*hh}, v{y+2*hh+1}
            v_pk_min_u16 v{x}, v{x}, s{sT2}
            ''')
        e(f'buffer_store_dwordx2 {v(XV+2*q,2)}, v{c}, {srd(S_WS)}, s{sT0} offen offset:{q*512} sc1')
    e('@stamp h_bout')
    WOF=36; ACC=12; BP=28; GV=10; OA=11
    NS=6
    e(f'''
    v_lshrrev_b32 v{a}, 2, v{vL}
    v_lshlrev_b32 v{a}, 10, v{a}
    v_and_b32 v{b}, 3, v{vL}
    v_lshl_add_u32 v{a}, v{b}, 4, v{a}
    s_lshr_b32 s{sT0}, s{sCB}, 1
    s_lshl_b32 s{sT0}, s{sT0}, 8
    s_lshl_b32 s{sT1}, s{sW}, 6
    s_add_u32 s{sT0}, s{sT0}, s{sT1}
    s_mul_i32 s{sT2}, s{sW}, {NS*1024}
    s_add_u32 s{sT2}, s{sT2}, {POOL}
    v_bfe_u32 v{c}, v{vL}, 2, 2
    v_lshrrev_b32 v{d}, 5, v{vL}
    v_lshl_add_u32 v{c}, v{d}, 2, v{c}         ; 4h + r
    v_lshlrev_b32 v{c}, 6, v{c}
    v_bfe_u32 v{d}, v{vL}, 4, 1
    v_lshl_add_u32 v{c}, v{d}, 5, v{c}
    v_lshl_add_u32 v{c}, v{b}, 3, v{c}
    v_add_u32 v{c}, s{sT2}, v{c}
    s_waitcnt vmcnt(0)
    ''')
    wait(C_CONV, 4, sleep=4)
    def wodma(k):
        e(f'''
        s_add_u32 s{sT3}, s{sT2}, {(k%NS)*1024}
        s_mov_b32 m0, s{sT3}
        s_nop 0
        buffer_load_dwordx4 v{a}, {srd(S_WO)}, s{sT0} offen lds
        s_add_u32 s{sT0}, s{sT0}, 16384
        ''')
    for k in range(NS): wodma(k)
    for k in range(28):
        e(f's_waitcnt vmcnt({min(NS-1, 31-k)})')
        e(f'ds_read_b64_tr_b16 {v(WOF+4*k,2)}, v{c} offset:{(k%NS)*1024}')
        e(f'ds_read_b64_tr_b16 {v(WOF+4*k+2,2)}, v{c} offset:{(k%NS)*1024+512}')
        if k+NS < 32:
            e('s_waitcnt lgkmcnt(0)')
            wodma(k+NS)
    e(f'v_mov_b32 v{d}, v{c}')
    e('@stamp h_wo')
    e(f'''
    s_mov_b32 s{sT0}, {WS_F2}
    v_lshrrev_b32 v{a}, 3, v{vL}
    v_mul_u32_u24 v{a}, {FST}, v{a}
    v_and_b32 v{b}, 7, v{vL}
    v_lshl_add_u32 v{a}, v{b}, 4, v{a}
    L_pollA:
    buffer_load_dwordx4 {v(ACC,4)}, v{a}, {srd(S_WS)}, s{sT0} offen sc1
    s_waitcnt vmcnt(0)
    v_xor_b32 v{ACC}, s{sNON}, v{ACC}
    v_xor_b32 v{ACC+1}, s{sNON}, v{ACC+1}
    v_xor_b32 v{ACC+2}, s{sNON}, v{ACC+2}
    v_xor_b32 v{ACC+3}, s{sNON}, v{ACC+3}
    v_or3_b32 v{ACC}, v{ACC}, v{ACC+1}, v{ACC+2}
    v_or_b32 v{ACC}, v{ACC}, v{ACC+3}
    v_cmp_ne_u32 vcc, 0, v{ACC}
    s_cbranch_vccz L_polledA
    s_sleep 8
    s_sub_u32 s{sTO}, s{sTO}, 16
    s_cbranch_scc0 L_pollA
    s_mov_b32 s{sTO}, 0
    L_polledA:
    s_or_b32 s{sT0}, s2, s{sW}
    s_cmp_lg_u32 s{sT0}, 0
    s_cbranch_scc1 L_nogen
    v_mov_b32 v{a}, {WS_GEN}
    v_mov_b32 v{b}, s{sNON}
    s_mov_b64 exec, 1
    buffer_store_dword v{b}, v{a}, {srd(S_WS)}, 0 offen sc1
    s_mov_b64 exec, -1
    L_nogen:
    ''')
    e(f'''
    s_lshl_b32 s{sT0}, s{sRB}, 6
    s_and_b32 s{sT1}, s{sCB}, 1
    s_lshl_b32 s{sT1}, s{sT1}, 5
    s_add_u32 s{sT0}, s{sT0}, s{sT1}
    v_and_b32 v{a}, 31, v{vL}
    v_add_u32 v{a}, s{sT0}, v{a}               ; row
    s_lshr_b32 s{sT0}, s{sCB}, 1
    s_lshl_b32 s{sT0}, s{sT0}, 7
    s_lshl_b32 s{sT1}, s{sW}, 5
    s_add_u32 s{sT0}, s{sT0}, s{sT1}
    v_lshrrev_b32 v{b}, 5, v{vL}
    v_lshlrev_b32 v{b}, 2, v{b}
    v_add_u32 v{b}, s{sT0}, v{b}
    v_lshlrev_b32 v{OA}, 10, v{a}
    v_lshl_add_u32 v{OA}, v{b}, 1, v{OA}
    v_lshrrev_b32 v{c}, 5, v{vL}
    v_lshl_add_u32 v{OA}, v{c}, 3, v{OA}
    v_lshlrev_b32 v{b}, 12, v{b}
    v_lshl_add_u32 v{b}, v{a}, 1, v{b}
    v_add_u32 v{b}, {WS_B}, v{b}
    v_lshlrev_b32 v{a}, 2, v{a}
    s_mov_b32 s{sT0}, {WS_G}
    buffer_load_dword v{GV}, v{a}, {srd(S_WS)}, s{sT0} offen sc1
    s_mov_b64 exec, 1
    buffer_load_dword v4, v{OA}, {srd(S_OUT)}, 0 offen sc1
    s_mov_b64 exec, -1
    L_bpoll:
    ''')
    for i in range(16):
        col = (i>>2)*8 + (i&3)
        e(f's_mov_b32 s{sT0}, {col*4096}')
        e(f'buffer_load_ushort v{ACC+i}, v{b}, {srd(S_WS)}, s{sT0} offen sc1')
    e(f's_waitcnt vmcnt(0)')
    e(f'v_max3_u32 v{c}, v{ACC}, v{ACC+1}, v{ACC+2}')
    for i in range(3,15,2): e(f'v_max3_u32 v{c}, v{c}, v{ACC+i}, v{ACC+i+1}')
    e(f'''
    v_max_u32 v{c}, v{c}, v{ACC+15}
    v_cmp_eq_u32 vcc, 0xffff, v{c}
    s_cbranch_vccz L_bok
    s_sleep 8
    s_sub_u32 s{sTO}, s{sTO}, 16
    s_cbranch_scc0 L_bpoll
    s_mov_b32 s{sTO}, 0
    L_bok:
    v_sub_f32 v{c}, 1.0, v{GV}
    ''')
    for i in range(16):
        e(f'v_lshlrev_b32 v{ACC+i}, 16, v{ACC+i}')
        e(f'v_mul_f32 v{ACC+i}, v{ACC+i}, v{c}')
    e('@stamp h_bok')
    OF0=4
    e('L_hfin:')
    e('s_barrier')
    e('s_barrier')
    e('@stamp h_o0')
    OB=148
    q=[]
    def ds(tag, txt): e(txt); q.append(tag)
    def need_(tags):
        idx=max(i for i,t in enumerate(q) if t in tags) if any(t in tags for t in q) else -1
        if idx >= 0:
            e(f's_waitcnt lgkmcnt({len(q)-1-idx})')
            del q[:idx+1]
    for k in range(4): ds(('o',k), f'ds_read_b128 {v(OB+4*k,4)}, v{vL16} offset:{k*1024}')
    for k in range(32):
        need_({('o',k),('w',k)})
        W = WOF+4*k if k < 28 else WOF+4*(k-28)
        e(f'v_mfma_f32_32x32x16_bf16 {v(ACC,16)}, {v(W,4)}, {v(OB+4*(k%4),4)}, {v(ACC,16)}')
        if k+4 < 32: ds(('o',k+4), f'ds_read_b128 {v(OB+4*(k%4),4)}, v{vL16} offset:{(k+4)*1024}')
        if k < 4:
            kk=28+k
            ds(('w',kk), f'ds_read_b64_tr_b16 {v(WOF+4*k,2)}, v{d} offset:{(kk%NS)*1024}')
            ds(('w',kk), f'ds_read_b64_tr_b16 {v(WOF+4*k+2,2)}, v{d} offset:{(kk%NS)*1024+512}')
    e('@stamp h_mm')
    T=WOF+16
    for i in range(8):
        e(f'v_cvt_pk_bf16_f32 v{T+i}, v{ACC+2*i}, v{ACC+2*i+1}')
    for hh in range(2):
        e(f'v_permlane32_swap_b32 v{T+4*hh}, v{T+4*hh+2}')
        e(f'v_permlane32_swap_b32 v{T+4*hh+1}, v{T+4*hh+3}')
        e(f'buffer_store_dwordx4 {v(T+4*hh,4)}, v{OA}, {srd(S_OUT)}, 0 offen offset:{hh*32}')
    e('@stamp h_end')
    finish()
    vQ=10
    PR=14
    R=24; s1=40; s2=42; mu=44; tt=46; pk=48; wa=18; ra=20; FA=96; FB=146; vG=24
    al=66; bh=67; bl=68; dt=21; p1=22; p2=23; ee=69
    NM=16; S0=40; S1=56; P=72; O=80; KF=96; VF=112; ad=14; mx=15; kvf=144; fl=145
    e(f'''
    L_main:
    s_sub_u32 s{sM}, s{sW}, 4
    s_lshr_b32 s{sRT}, s{sM}, 2
    s_and_b32 s{sHD}, s{sM}, 3
    s_lshr_b32 s{sCH}, s{sHD}, 1
    s_setprio 1
    s_cmp_eq_u32 s{sRT}, 0
    s_cbranch_scc1 L_np
    s_setprio 3
    L_np:
    ''')
    e(f'''
    v_and_b32 v{a}, 27, v{vL}
    v_cmp_eq_u32 vcc, 16, v{a}
    v_mov_b32 v{b}, 0x3f803f80
    v_cndmask_b32 v{VF}, 0, v{b}, vcc
    ''')
    for i in range(1,32): e(f'v_mov_b32 v{VF+i}, v{VF}')
    for i in range(16): e(f'v_mov_b32 v{O+i}, 0')
    for i in range(4): e(f'v_mov_b32 v{P+4+i}, 0')
    def exp_acc(dst, x, t, u):
        e(f'''
        v_mul_f32 v{t}, {f32(L2E_HI)}, v{x}
        v_fma_f32 v{u}, v{x}, s{sT4}, -v{t}
        v_fmac_f32 v{u}, {f32(L2E_LO)}, v{x}
        v_exp_f32 v{dst}, v{t}
        v_mul_f32 v{u}, {f32(math.log(2.0))}, v{u}
        v_fma_f32 v{dst}, v{dst}, v{u}, v{dst}
        v_cvt_pk_bf16_f32 v{dst}, v{dst}, v{dst}
        v_lshlrev_b32 v{dst}, 16, v{dst}
        ''')
    def cmul(D, X, Y, T=None):
        T = D if T is None else T
        e(f'''
        v_pk_mul_f32 {v(T,2)}, {v(X,2)}, {v(Y,2)} op_sel:[0,0] op_sel_hi:[0,1]
        v_pk_fma_f32 {v(D,2)}, {v(X,2)}, {v(Y,2)}, {v(T,2)} op_sel:[1,1,0] op_sel_hi:[1,0,1] neg_lo:[1,0,0]
        ''')
    def cmul_inplace(idxs, Y):
        for k,i in enumerate(idxs):
            e(f'v_pk_mul_f32 {v(56+2*(k%4),2)}, {v(R+2*i,2)}, {v(Y,2)} op_sel:[0,0] op_sel_hi:[0,1]')
            if k >= 1:
                j = idxs[k-1]
                e(f'v_pk_fma_f32 {v(R+2*j,2)}, {v(R+2*j,2)}, {v(Y,2)}, {v(56+2*((k-1)%4),2)} op_sel:[1,1,0] op_sel_hi:[1,0,1] neg_lo:[1,0,0]')
        k = len(idxs)-1; j = idxs[k]
        e(f'v_pk_fma_f32 {v(R+2*j,2)}, {v(R+2*j,2)}, {v(Y,2)}, {v(56+2*(k%4),2)} op_sel:[1,1,0] op_sel_hi:[1,0,1] neg_lo:[1,0,0]')
    e(f'''
    s_mov_b32 s{sT4}, {f32(L2E_HI)}
    s_mov_b32 s{sT5}, {f32(I2P_HI)}
    v_cmp_lt_u32 s[{sM0}:{sM0+1}], 31, v{vL}
    v_mov_b32 v{b}, {f32(8.0)}
    v_cndmask_b32 v{p1}, v{b}, 1.0, s[{sM0}:{sM0+1}]
    v_mov_b32 v{b}, {f32(64.0)}
    v_mov_b32 v{c}, {f32(256.0)}
    v_cndmask_b32 v{p2}, v{b}, v{c}, s[{sM0}:{sM0+1}]
    s_lshl_b32 s{sT0}, s{sM}, 12
    s_add_u32 s{sT3}, s{sT0}, {XFL}
    v_lshrrev_b32 v{a}, 5, v{vL}
    v_lshlrev_b32 v{a}, 11, v{a}
    v_and_b32 v{b}, 31, v{vL}
    v_lshl_add_u32 v{a}, v{b}, 4, v{a}
    v_add_u32 v{wa}, s{sT3}, v{a}
    v_xor_b32 v{wa+1}, 0x80, v{wa}
    v_lshrrev_b32 v{a}, 2, v{vL}              ; 4g + r
    v_lshlrev_b32 v{a}, 4, v{a}
    v_bfe_u32 v{b}, v{vL}, 1, 1               ; gh
    v_mul_u32_u24 v{b}, 0x280, v{b}
    v_xor_b32 v{a}, v{a}, v{b}
    v_and_b32 v{b}, 1, v{vL}
    v_lshl_add_u32 v{a}, v{b}, 3, v{a}
    v_add_u32 v{ra}, s{sT3}, v{a}
    s_waitcnt lgkmcnt(0)
    s_lshl_b32 s{sT0}, s{sCH}, 4
    s_lshr_b32 s{sT1}, s{sLDT}, s{sT0}
    s_lshl_b32 s{sT1}, s{sT1}, 16
    v_mov_b32 v{a}, s{sT1}
    ''')
    exp_acc(dt, a, b, c)
    e(f'''
    s_waitcnt vmcnt(0)
    @stamp m_par
    v_and_b32 v{a}, 0x7fff, v{PR+2}
    v_and_b32 v{b}, 0x7fff, v{PR+3}
    v_max_u32 v{a}, v{a}, v{b}
    v_max_u32_dpp v{a}, v{a}, v{a} row_shr:1 row_mask:0xf bank_mask:0xf
    v_max_u32_dpp v{a}, v{a}, v{a} row_shr:2 row_mask:0xf bank_mask:0xf
    v_max_u32_dpp v{a}, v{a}, v{a} row_shr:4 row_mask:0xf bank_mask:0xf
    v_max_u32_dpp v{a}, v{a}, v{a} row_shr:8 row_mask:0xf bank_mask:0xf
    v_readlane_b32 s{sT0}, v{a}, 15
    v_readlane_b32 s{sT1}, v{a}, 31
    s_max_u32 s{sT0}, s{sT0}, s{sT1}
    s_lshr_b32 s{sT0}, s{sT0}, 7
    s_max_u32 s{sT0}, s{sT0}, 1
    s_min_u32 s{sT0}, s{sT0}, 253
    s_lshl_b32 s{sSC}, s{sT0}, 23
    s_sub_u32 s{sT0}, 254, s{sT0}
    s_lshl_b32 s{sSCI}, s{sT0}, 23
    v_lshlrev_b32 v{a}, 16, v{PR}
    ''')
    exp_acc(al, a, b, c)
    e(f'''
    v_mul_f32 v{al}, v{al}, v{dt}
    v_mul_f32 v{al}, {f32(-LOG2E)}, v{al}
    v_lshlrev_b32 v{a}, 16, v{PR+1}
    v_mul_f32 v{a}, v{a}, v{dt}
    v_cndmask_b32 v{a}, v{a}, -v{a}, s[{sM0}:{sM0+1}]
    v_mul_f32 v{bh}, {f32(I2P_HI)}, v{a}
    v_fma_f32 v{bl}, v{a}, s{sT5}, -v{bh}
    v_fmac_f32 v{bl}, {f32(I2P_LO)}, v{a}
    ''')
    for (S, p) in ((s1,p1),(s2,p2)):
        e(f'''
        v_mul_f32 v{a}, v{al}, v{p}
        v_mul_f32 v{b}, v{bh}, v{p}
        v_exp_f32 v{ee}, v{a}
        v_fract_f32 v{b}, v{b}
        v_fmac_f32 v{b}, v{bl}, v{p}
        v_cos_f32 v{c}, v{b}
        v_sin_f32 v{d}, v{b}
        v_mul_f32 v{S}, v{ee}, v{c}
        v_mul_f32 v{S+1}, v{ee}, v{d}
        ''')
    e(f'''
    v_lshlrev_b32 v{a}, 16, v{PR+2}
    v_lshlrev_b32 v{b}, 16, v{PR+3}
    v_mul_f32 v{a}, s{sSCI}, v{a}
    v_mul_f32 v{b}, s{sSCI}, v{b}
    v_cndmask_b32 v{R}, 1.0, v{a}, s[{sM0}:{sM0+1}]
    v_cndmask_b32 v{R+1}, 0, -v{b}, s[{sM0}:{sM0+1}]
    ''')
    cmul(tt, s1, s1)
    cmul(R+2, R, s1)
    cmul(mu, s2, s2)
    cmul(R+4, R, tt)
    cmul(R+6, R+2, tt)
    cmul(64, tt, tt)
    e(f'''
    v_cndmask_b32 v{mu}, v{s1}, v{mu}, s[{sM0}:{sM0+1}]
    v_cndmask_b32 v{mu+1}, v{s1+1}, v{mu+1}, s[{sM0}:{sM0+1}]
    ''')
    for i in range(4): cmul(R+8+2*i, R+2*i, 64)
    def flush(rnd):
        for i in range(4): e(f'v_cvt_pk_f16_f32 v{pk+i}, v{R+4*i}, v{R+4*i+2}')
        e(f'ds_write_b128 v{wa+(rnd&1)}, {v(pk,4)} offset:{512*(rnd&1)}')
        for i in range(4): e(f'v_cvt_pk_f16_f32 v{pk+4+i}, v{R+4*i+1}, v{R+4*i+3}')
        e(f'ds_write_b128 v{wa+(rnd&1)}, {v(pk+4,4)} offset:{512*(rnd&1)+1024}')
        if rnd & 1:
            rho = rnd >> 1
            for (F, part) in ((FB,0),(FA,1)):
                for s_ in range(2):
                    e(f'ds_read_b64_tr_b16 {v(F+8*rho+4*s_,2)}, v{ra} offset:{part*2048+s_*256}')
                    e(f'ds_read_b64_tr_b16 {v(F+8*rho+4*s_+2,2)}, v{ra} offset:{part*2048+s_*256+1024}')
    flush(0)
    cmul_inplace(list(range(8)), s2)
    flush(1)
    for rnd in (2,3):
        cmul_inplace([0,4,5], s2)
        cmul(R+2, R, mu)
        cmul_inplace([6,7], s2)
        cmul(R+4, R+2, mu)
        cmul(R+6, R+4, mu)
        flush(rnd)
    e(f'''
    v_add_f32 v{dt}, v{dt}, v{dt}
    v_mul_f32 v{dt}, s{sSC}, v{dt}
    s_lshl_b32 s{sT0}, s{sHD}, 2
    v_add_u32 v{d}, s{sT0}, v{vC}
    s_mul_i32 s{sT0}, s{sHD}, {GW}
    s_add_u32 s{sT0}, s{sT0}, {PB+16}
    v_and_b32 v{a}, 1, v{vG4}
    v_lshrrev_b32 v{c}, 1, v{vG4}
    v_lshlrev_b32 v40, 5, v{vM15}
    v_lshl_add_u32 v40, v{a}, 4, v40           ; n*32 + (g&1)*16
    v_lshrrev_b32 v41, 1, v40
    v_add_u32 v41, 1024, v41
    v_cndmask_b32 v40, v40, v41, s[{sM0}:{sM0+1}]
    v_add_u32 v40, s{sT0}, v40
    v_lshlrev_b32 v41, 3, v{vM15}
    v_lshl_add_u32 v41, v{a}, 2, v41
    v_lshl_add_u32 v41, v{c}, 8, v41
    v_add_u32 v41, s{sT0}, v41
    v_lshlrev_b32 v42, 2, v{vM15}
    v_lshl_add_u32 v42, v{c}, 7, v42
    v_add_u32 v42, s{sT0}, v42
    v_subrev_u32 v{c}, 4, v42
    v_mov_b32 v{a}, 0
    ''')
    signal(C_TAB)
    e('s_waitcnt lgkmcnt(1)')
    A1=40; A3=41; A4=42
    for s_ in range(2):
        for ra_ in range(2):
            for rb_ in range(2):
                D = vG + 8*ra_ + 4*rb_
                e(f'v_mfma_f32_16x16x32_f16 {v(D,4)}, {v(FA+8*ra_+4*s_,4)}, {v(FB+8*rb_+4*s_,4)}, {"0" if s_==0 else v(D,4)}')
    for r in range(15): e(f'v_mul_f32 v{vG+r}, v{vG+r}, v{dt}')
    e(f'''
    @stamp m_kg1
    s_cmp_eq_u32 s{sRT}, 1
    s_cbranch_scc1 L_kgw
    ''')
    wait(C_GH, 1, addr=d, sleep=1)
    H=FA
    e(f'''
    s_mov_b32 exec_hi, 0
    ds_read_b128 {v(H,4)}, v{A1}
    ds_read_b128 {v(H+4,4)}, v{A1} offset:512
    s_mov_b64 exec, s[{sM0}:{sM0+1}]
    ds_read_b32 v{H}, v{A1}
    ds_read_b32 v{H+2}, v{A1} offset:4
    ds_read_b32 v{H+4}, v{A1} offset:256
    ds_read_b32 v{H+6}, v{A1} offset:260
    s_mov_b64 exec, -1
    ds_read_b32 v{H+8}, v{A3} offset:1536
    ds_read_b32 v{H+12}, v{A3} offset:{1536+128}
    ds_read_b32 v{H+9}, v{A4} offset:2048
    ds_read_b32 v{H+13}, v{A4} offset:{2048+64}
    ds_read_b32 v{H+10}, v{A4} offset:{2048+256}
    ds_read_b32 v{H+14}, v{A4} offset:{2048+256+64}
    ds_read_b32 v{H+11}, v{A4} offset:{2048+512}
    s_waitcnt lgkmcnt(0)
    ''')
    for r in range(15): e(f'v_add_f32 v{vG+r}, v{vG+r}, v{H+r}')
    e(f'''
    L_kgw:
    ds_write_b32 v{A3}, v{vG+8} offset:1536
    ds_write_b32 v{A3}, v{vG+12} offset:{1536+128}
    s_mov_b32 exec_hi, 0
    ds_write_b128 v{A1}, {v(vG,4)}
    ds_write_b128 v{A1}, {v(vG+4,4)} offset:512
    s_mov_b64 exec, s[{sM0}:{sM0+1}]
    ds_write2_b32 v{A1}, v{vG}, v{vG+2} offset0:0 offset1:1
    ds_write2_b32 v{A1}, v{vG+4}, v{vG+6} offset0:64 offset1:65
    s_mov_b32 exec_lo, 0xffff
    s_mov_b32 exec_hi, 0xffff
    ds_write_b32 v{A4}, v{vG+9} offset:2048
    ds_write_b32 v{A4}, v{vG+13} offset:{2048+64}
    ds_write_b32 v{A4}, v{vG+10} offset:{2048+256}
    ds_write_b32 v{A4}, v{vG+14} offset:{2048+256+64}
    s_mov_b64 exec, 1
    ds_write_b32 v{A4}, v{vG+11} offset:{2048+512}
    ds_write_b32 v{c}, v{a}
    ds_add_u32 v{d}, v{vOne} offset:{4*C_GH}
    s_mov_b64 exec, -1
    ''')
    e('@stamp m_kgen')
    xa=146; wadr=150; acc=152; QX=16; QW=48
    e(f'''
    L_q:
    s_mul_i32 s{sT0}, s{sRT}, {XH-XFL}
    s_add_u32 s{sT0}, s{sT0}, {XFL}
    v_lshlrev_b32 v{a}, 10, v{vM15}
    v_xor_b32 v{b}, v{vG4}, v{vM15}
    v_lshl_add_u32 v{a}, v{b}, 4, v{a}
    v_add_u32 v{xa}, s{sT0}, v{a}
    v_xor_b32 v{xa+1}, 64, v{xa}
    v_xor_b32 v{xa+2}, 0x80, v{xa}
    v_xor_b32 v{xa+3}, 0xc0, v{xa}
    v_bfe_u32 v{a}, v{vL}, 2, 2                ; r
    v_lshrrev_b32 v{b}, 1, v{a}
    v_and_b32 v{c}, 1, v{vG4}
    v_lshl_add_u32 v{b}, v{c}, 1, v{b}         ; swz
    v_xor_b32 v{b}, s{sHD}, v{b}
    v_lshl_add_u32 v{a}, v{vG4}, 3, v{a}       ; 8g + r
    v_lshlrev_b32 v{a}, 7, v{a}
    v_lshl_add_u32 v{a}, v{b}, 5, v{a}
    v_and_b32 v{b}, 3, v{vL}
    v_lshl_add_u32 v{a}, v{b}, 3, v{a}
    v_add_u32 v{wadr}, {WQ}, v{a}
    ''')
    def qchunk(ck):
        def rd(s):
            S = 8*ck + s
            e(f'ds_read_b64_tr_b16 {v(QW+4*(s&3),2)}, v{wadr} offset:{S*4096}')
            e(f'ds_read_b64_tr_b16 {v(QW+4*(s&3)+2,2)}, v{wadr} offset:{S*4096+512}')
            e(f'ds_read_b128 {v(QX+8*(s&3),4)}, v{xa+(s&3)} offset:{(S>>2)*256}')
            e(f'ds_read_b128 {v(QX+8*(s&3)+4,4)}, v{xa+(s&3)} offset:{(S>>2)*256+16384}')
        for s in range(3): rd(s)
        for s in range(8):
            if s+3 < 8:
                rd(s+3); e('s_waitcnt lgkmcnt(12)')
            else:
                x = 0
                if ck == 1:
                    x = 2
                    if s == 5:
                        signal(C_QA); signal(C_QH, addr=d)
                e(f's_waitcnt lgkmcnt({4*(7-s)+x})')
            z = ck == 0 and s == 0
            e(f'v_mfma_f32_16x16x32_bf16 {v(acc,4)}, {v(QW+4*(s&3),4)}, {v(QX+8*(s&3),4)}, {"0" if z else v(acc,4)}')
            e(f'v_mfma_f32_16x16x32_bf16 {v(acc+4,4)}, {v(QW+4*(s&3),4)}, {v(QX+8*(s&3)+4,4)}, {"0" if z else v(acc+4,4)}')
    e(f'''
    s_xor_b32 s{sT0}, s{sRT}, 1
    s_mul_i32 s{sT0}, s{sT0}, {4*(40-C_QH)}
    v_add_u32 v{d}, s{sT0}, v{vC}
    s_cmp_eq_u32 s{sRT}, 1
    s_cbranch_scc1 L_qh
    ''')
    wait(C_T2, 1)
    wait(C_QH, 6)
    e('s_setprio 3')
    e('L_qh:')
    wait(C_T0, 3, sleep=1)
    e('@stamp m_t0')
    qchunk(0)
    e('@stamp m_q0')
    wait(C_T1, 1, sleep=1)
    e('@stamp m_t1')
    qchunk(1)
    e(f'''
    s_mov_b32 s{sT0}, {f32(0.25*LOG2E)}
    s_mov_b32 s{sFB}, 0
    s_mov_b32 s{sM0}, 0xffff
    s_mov_b32 s{sM0+1}, 0xffff
    s_xor_b32 s{sRT}, s{sRT}, s{sKAP}
    s_xor_b32 s{sRT}, s{sRT}, 1
    s_lshl_b32 s{sT1}, s{sRB}, 1
    s_add_u32 s{sT1}, s{sT1}, s{sRT}
    s_lshl_b32 s{sT1}, s{sT1}, 5
    s_lshl_b32 s{sT2}, s{sCB}, 2
    s_add_u32 s{sT1}, s{sT1}, s{sT2}
    s_add_u32 s{sT1}, s{sT1}, s{sHD}
    s_lshl_b32 s{sT1}, s{sT1}, 10
    s_add_u32 s{sOB}, s{sT1}, {WS_O}
    ''')
    for r in range(8): e(f'v_mul_f32 v{acc+r}, s{sT0}, v{acc+r}')
    e(f'''
    v_cvt_pk_bf16_f32 v{vQ}, v{acc}, v{acc+1}
    v_cvt_pk_bf16_f32 v{vQ+1}, v{acc+2}, v{acc+3}
    v_cvt_pk_bf16_f32 v{vQ+2}, v{acc+4}, v{acc+5}
    v_cvt_pk_bf16_f32 v{vQ+3}, v{acc+6}, v{acc+7}
    v_permlane16_swap_b32 v{vQ}, v{vQ+2}
    v_permlane16_swap_b32 v{vQ+1}, v{vQ+3}
    ''')
    e('@stamp m_q1')
    wait(C_KV, 1, sleep=1)
    e(f'''
    @stamp m_att0
    s_setprio 1
    s_cmp_lt_u32 s{sM}, 4
    s_cbranch_scc1 L_pr
    s_setprio 3
    L_pr:
    s_mov_b32 s{sCNT}, 0
    v_mov_b32 v{ad}, v{vL16}
    v_add_u32 v{kvf}, {4*(C_KV+1)}, v{vC}
    ds_read_b128 {v(KF+8,4)}, v{ad}
    ds_read_b128 {v(KF,4)}, v{ad} offset:2048
    ds_read_b128 {v(KF+4,4)}, v{ad} offset:4096
    s_mov_b64 exec, s[{sM0}:{sM0+1}]
    ds_read_b128 {v(VF,4)}, v{ad} offset:1024
    ds_read_b128 {v(VF+4,4)}, v{ad} offset:1280
    ds_read_b128 {v(VF+8,4)}, v{ad} offset:3072
    ds_read_b128 {v(VF+12,4)}, v{ad} offset:3328
    s_mov_b64 exec, -1
    s_cmp_lg_u32 s{sFB}, 0
    s_waitcnt lgkmcnt(6)
    s_cbranch_scc1 L_setm
    v_mfma_f32_32x32x16_bf16 {v(S0,16)}, {v(KF+8,4)}, {v(vQ,4)}, 0
    v_max3_f32 v{mx}, v{S0}, v{S0+1}, v{S0+2}
    ''')
    for i in range(3,15,2): e(f'v_max3_f32 v{mx}, v{mx}, v{S0+i}, v{S0+i+1}')
    e(f'''
    v_max_f32 v{mx}, v{mx}, v{S0+15}
    L_setm:
    v_mov_b32 v{a}, v{mx}
    v_permlane32_swap_b32 v{a}, v{mx}
    v_max_f32 v{mx}, v{mx}, v{a}
    ''')
    for i in range(16): e(f'v_sub_f32 v{NM+i}, 0, v{mx}')
    e(f'''
    v_mfma_f32_32x32x16_bf16 {v(S0,16)}, {v(KF+8,4)}, {v(vQ,4)}, {v(NM,16)}
    s_nop 9
    .p2align 6
    L_loop:
    ''')
    def step(tt):
        par = tt & 1; pr = tt >> 1; st = pr & 1
        Sc = S0 if par == 0 else S1
        Sn = S1 if par == 0 else S0
        Kn = KF + 8*st + 4*par
        Vc = VF + 16*st + 8*par
        Vp = (VF + 16*st + 4) if par == 1 else (VF + 16*(1-st) + 12)
        ex = lambda i: e(f'v_exp_f32 v{Sc+i}, v{Sc+i}')
        cv = lambda i: e(f'v_cvt_pk_bf16_f32 v{P+i}, v{Sc+2*i}, v{Sc+2*i+1}')
        if par == 0: e('s_waitcnt lgkmcnt(0)')
        e(f'v_mfma_f32_32x32x16_bf16 {v(Sn,16)}, {v(Kn,4)}, {v(vQ,4)}, {v(NM,16)}')
        ex(0); ex(1); ex(2); ex(3)
        e(f'v_mfma_f32_32x32x16_bf16 {v(O,16)}, {v(Vp,4)}, {v(P+4,4)}, {v(O,16)}')
        if tt == 4:
            e(f's_cmp_lg_u32 s{sWT}, 1')
            e(f's_cbranch_scc1 L_chk')
            e(f'L_chk_ret:')
        if par == 0:
            o = 1-st
            e(f'ds_read_b128 {v(KF+8*o,4)}, v{ad} offset:{(tt+3)*2048}')
            e(f'ds_read_b128 {v(KF+8*o+4,4)}, v{ad} offset:{(tt+4)*2048}')
            e(f's_mov_b64 exec, s[{sM0}:{sM0+1}]')
            e(f'ds_read_b128 {v(VF+16*o,4)}, v{ad} offset:{(tt+2)*2048+1024}')
            e(f'ds_read_b128 {v(VF+16*o+4,4)}, v{ad} offset:{(tt+2)*2048+1280}')
            e(f'ds_read_b128 {v(VF+16*o+8,4)}, v{ad} offset:{(tt+3)*2048+1024}')
            e(f'ds_read_b128 {v(VF+16*o+12,4)}, v{ad} offset:{(tt+3)*2048+1280}')
            e(f's_mov_b64 exec, -1')
            if tt == 0: e(f'ds_read_b32 v{fl}, v{kvf}')
        if tt == 3: e(f'v_readfirstlane_b32 s{sWT}, v{fl}')
        cv(0); ex(4); ex(5); cv(1); ex(6); ex(7); cv(2); ex(8); cv(3); ex(9); ex(10)
        e(f'v_mfma_f32_32x32x16_bf16 {v(O,16)}, {v(Vc,4)}, {v(P,4)}, {v(O,16)}')
        ex(11); cv(4); ex(12); ex(13); cv(5); ex(14); ex(15); cv(6); cv(7)
    for tt in range(8): step(tt)
    e(f'''
    v_add_u32 v{ad}, 0x4000, v{ad}
    v_add_u32 v{kvf}, 4, v{kvf}
    ''')
    if DIAG:
        e(f'''
        s_memtime s[94:95]
        s_add_u32 s{sT5}, s{sCNT}, 48
        s_waitcnt lgkmcnt(0)
        s_mov_b32 m0, s{sT5}
        v_writelane_b32 v167, s94, m0
        ''')
    e(f'''
    s_add_u32 s{sCNT}, s{sCNT}, 1
    s_cmp_lt_u32 s{sCNT}, 8
    s_cbranch_scc1 L_loop
    v_mfma_f32_32x32x16_bf16 {v(O,16)}, {v(VF+28,4)}, {v(P+4,4)}, {v(O,16)}
    s_mov_b32 s{sT0}, {f32(2.0**40)}
    s_waitcnt vmcnt(0) lgkmcnt(0)
    s_nop 9
    v_rcp_f32 v{S0}, v{O+8}
    v_cmp_nlt_f32 vcc, v{O+8}, s{sT0}
    v_mul_f32 v{S0}, v{S0}, v146
    ''')
    for i in range(8): e(f'v_mul_f32 v{O+i}, v{O+i}, v{S0}')
    e(f'''
    v_add_f32 v{S0+2}, v{O+3}, v{O+4}
    v_add_f32 v{S0+3}, v{O+5}, v{O+6}
    v_add_f32 v{S0+2}, v{S0+2}, v{O+7}
    v_add_f32 v{S0+3}, v{S0+3}, v{O}
    v_add_f32 v{S0+2}, v{S0+2}, v{O+1}
    v_add_f32 v{S0+3}, v{S0+3}, v{O+2}
    v_add_f32 v{S0+2}, v{S0+2}, v{S0+3}
    v_mov_b32 v{S0+4}, 0x207
    v_cmp_class_f32 s[{sM1}:{sM1+1}], v{S0+2}, v{S0+4}
    s_or_b64 vcc, vcc, s[{sM1}:{sM1+1}]
    s_cbranch_vccz L_att_ok
    s_cmp_lg_u32 s{sFB}, 0
    s_cbranch_scc1 L_att_ok
    s_mov_b32 s{sFB}, 1
    v_mov_b32 v{ad}, v{vL16}
    v_mov_b32 v{mx}, 0xff7fffff
    s_mov_b32 s{sCNT}, 0
    L_maxloop:
    ds_read_b128 {v(KF,4)}, v{ad}
    v_add_u32 v{ad}, 2048, v{ad}
    s_waitcnt lgkmcnt(0)
    v_mfma_f32_32x32x16_bf16 {v(S0,16)}, {v(KF,4)}, {v(vQ,4)}, 0
    ''')
    for i in range(0,16,2): e(f'v_max3_f32 v{mx}, v{mx}, v{S0+i}, v{S0+i+1}')
    e(f'''
    s_add_u32 s{sCNT}, s{sCNT}, 1
    s_cmp_lt_u32 s{sCNT}, 64
    s_cbranch_scc1 L_maxloop
    ''')
    for i in range(16): e(f'v_mov_b32 v{O+i}, 0')
    for i in range(4): e(f'v_mov_b32 v{P+4+i}, 0')
    e('s_branch L_pr')
    e('L_chk:')
    wait(0, 1, addr=kvf, sleep=1)
    e(f'''
    s_cmp_lt_u32 s{sWT}, 2
    s_cbranch_scc1 L_chk_ret
    s_lshl_b32 s{sT0}, s{sRB}, 8
    s_lshl_b32 s{sT1}, s{sRT}, 7
    s_add_u32 s{sT0}, s{sT0}, s{sT1}
    s_add_u32 s{sT0}, s{sT0}, {WS_G}
    v_and_b32 v{a}, 31, v{vL}
    v_lshlrev_b32 v{a}, 2, v{a}
    buffer_load_dword v146, v{a}, {srd(S_WS)}, s{sT0} offen sc1
    ds_read_b32 v147, v{vC} offset:{4*C_KVOK}
    ''')
    wait(C_ST, 1, sleep=4)
    e(f'''
    v_readfirstlane_b32 s{sSC}, v147
    s_setprio 0
    s_branch L_chk_ret
    L_att_ok:
    @stamp m_att1
    ''')
    e(f's_mov_b32 s{sT0}, 0xfffffffe')
    for i in range(4):
        e(f'v_cvt_pk_bf16_f32 v{P+i}, v{O+2*i}, v{O+2*i+1}')
        e(f'v_min_u32 v{P+i}, s{sT0}, v{P+i}')
    e(f'''
    s_cmp_eq_u32 s{sSC}, 1
    s_cbranch_scc1 L_oloc
    buffer_store_dwordx4 {v(P,4)}, v{vL16}, {srd(S_WS)}, s{sOB} offen sc1
    s_branch L_ost
    L_oloc:
    buffer_store_dwordx4 {v(P,4)}, v{vL16}, {srd(S_WS)}, s{sOB} offen
    L_ost:
    ''')
    e(f'''
    s_lshl_b32 s{sT0}, s{sRB}, 1
    s_and_b32 s{sT1}, s{sCB}, 1
    s_add_u32 s{sT0}, s{sT0}, s{sT1}
    s_lshl_b32 s{sT0}, s{sT0}, 15
    s_lshl_b32 s{sT1}, s{sM}, 12
    s_add_u32 s{sT0}, s{sT0}, s{sT1}
    s_add_u32 s{sT0}, s{sT0}, {WS_O}
    v_add_u32 v{a}, s{sT1}, v{vL16}
    s_lshl_b32 s{sT1}, s{sM}, 2
    v_add_u32 v{b}, s{sT1}, v{vC}
    ''')
    e('s_barrier')
    e('@stamp m_all')
    e('L_opoll:')
    for i in range(4):
        e(f'buffer_load_dwordx4 {v(S0+4*i,4)}, v{vL16}, {srd(S_WS)}, s{sT0} offen offset:{i*1024} sc1')
    e(f's_waitcnt vmcnt(0)')
    e(f'v_max3_u32 v{c}, v{S0}, v{S0+1}, v{S0+2}')
    for i in range(3,15,2): e(f'v_max3_u32 v{c}, v{c}, v{S0+i}, v{S0+i+1}')
    e(f'''
    v_max_u32 v{c}, v{c}, v{S0+15}
    v_cmp_eq_u32 vcc, -1, v{c}
    s_cbranch_vccz L_ook
    s_sub_u32 s{sTO}, s{sTO}, 16
    s_cbranch_scc0 L_opoll
    s_mov_b32 s{sTO}, 0
    L_ook:
    ''')
    for i in range(4):
        e(f'ds_write_b128 v{a}, {v(S0+4*i,4)} offset:{i*1024}')
    e('s_waitcnt lgkmcnt(0)')
    e('s_barrier')
    e('@stamp m_end')
    if e.probe:
        e(f'''
        s_cmp_lt_u32 s{sM}, 4
        s_cbranch_scc1 L_end
        s_memrealtime s[60:61]
        s_waitcnt lgkmcnt(0)
        s_mul_i32 s63, s63, {PK}
        s_min_u32 s63, s63, 20000
        s_mov_b32 s62, s60
        L_probe:
        s_memrealtime s[60:61]
        s_waitcnt lgkmcnt(0)
        s_sub_u32 s60, s60, s62
        s_cmp_lt_u32 s60, s63
        s_cbranch_scc1 L_probe
        ''')
    finish()
    e('''
    L_end:
    s_endpgm
    ''')
    return e.text()

HEAD = open('cdna_kernels/%s.s.ref' % NAME).read().split('; Override launch geometry')[0]
def full():
    body = gen()
    s = HEAD
    s += f'; @launch grid=(256,1,1) block=(768,1,1) lds={LDS_BYTES}\n'
    s += f'''.amdgcn_target "amdgcn-amd-amdhsa--gfx950"
.text
.globl {NAME}_kernel
.p2align 8
.type {NAME}_kernel,@function
{NAME}_kernel:
{body}
.section .rodata,"a"
.p2align 6
.amdhsa_kernel {NAME}_kernel
  .amdhsa_next_free_vgpr 168
  .amdhsa_next_free_sgpr 102
  .amdhsa_accum_offset 168
  .amdhsa_group_segment_fixed_size 0
  .amdhsa_kernarg_size 128
  .amdhsa_user_sgpr_count 2
  .amdhsa_user_sgpr_kernarg_segment_ptr 1
  .amdhsa_system_sgpr_workgroup_id_x 1
.end_amdhsa_kernel
'''
    return s
if __name__ == '__main__':
    if len(sys.argv) > 1 and sys.argv[1].startswith('diag'):
        DIAG = 1
        open('dev/%s.s' % sys.argv[1], 'w').write(full())
        import json; json.dump(gen.e.stamps, open('diag.json','w'))
    else:
        out = sys.argv[1] if len(sys.argv) > 1 else f'cdna_kernels/{NAME}.s'
        open(out, 'w').write(full())
```
